```python
import torch

def _softmax(x, axis=-1):
    return torch.softmax(x, dim=axis)

def _gelu(x):
    return torch.nn.functional.gelu(x, approximate='tanh')

def _silu(x):
    return torch.nn.functional.silu(x)

def _sigmoid(x):
    return torch.sigmoid(x)

def _layernorm(x, axis=-1, eps=1e-05):
    m = x.mean(dim=axis, keepdim=True)
    v = x.var(dim=axis, keepdim=True, unbiased=False)
    return (x - m) / torch.sqrt(v + eps)

def _scatter_add(tgt, idx, src, axis=0):
    return tgt.clone().index_add_(axis, idx, src)

def _segment_sum(src, seg, n):
    out = torch.zeros((n,) + src.shape[1:], dtype=src.dtype)
    return out.index_add_(0, seg, src)

def _pad(x, pw):
    flat = tuple((v for pair in reversed(pw) for v in pair))
    return torch.nn.functional.pad(x, flat)
kernel_name = 'adaLN_cond__sliding_block_cached__geglu_ffn__decode'

def setup_inputs():

    _w = lambda a: (lambda t: t.to(torch.bfloat16) if t.is_floating_point() else t)(torch.as_tensor(a))

    def _A_setup():
        B, Sq, D = (1, 1, 448)
        Hq, Hkv, Sk, Dh = (16, 8, 8192, 256)
        assert Hq % Hkv == 0, (Hq, Hkv)
        return {'x': _w((lambda *s: torch.randn(*s, dtype=torch.bfloat16) * 0.05)(B, Sq, D)), 'k_cache': _w((lambda *s: torch.randn(*s, dtype=torch.bfloat16) * 3.2)(B, Hkv, Sk, Dh)), 'v_cache': _w((lambda *s: torch.randn(*s, dtype=torch.bfloat16) * 0.4)(B, Hkv, Sk, Dh)), 'wq': _w((lambda *s: torch.randn(*s, dtype=torch.bfloat16) * 3.2)(D, Hq * Dh) * D ** (-0.5)), 'wo': _w((lambda *s: torch.randn(*s, dtype=torch.bfloat16) * 0.4)(Hq * Dh, D) * (Hq * Dh) ** (-0.5))}
    _A_in = _A_setup()

    def _B_setup():
        B, S, D, F = (1, 1, 448, 1792)
        return {'x': _w((lambda *s: torch.randn(*s, dtype=torch.bfloat16) * 0.05)(B, S, D)), 'w_gate': _w((lambda *s: torch.randn(*s, dtype=torch.bfloat16) * 0.05)(D, F)), 'w_up': _w((lambda *s: torch.randn(*s, dtype=torch.bfloat16) * 0.05)(D, F)), 'w_down': _w((lambda *s: torch.randn(*s, dtype=torch.bfloat16) * 0.05)(F, D))}
    _B_in = _B_setup()
    return {'A_x': _A_in['x'], 'A_k_cache': _A_in['k_cache'], 'A_v_cache': _A_in['v_cache'], 'A_wq': _A_in['wq'], 'A_wo': _A_in['wo'], 'B_x': _B_in['x'], 'B_w_gate': _B_in['w_gate'], 'B_w_up': _B_in['w_up'], 'B_w_down': _B_in['w_down'], 'c': _w((lambda *s: torch.randn(*s, dtype=torch.bfloat16) * 0.2)(1, 448) * 8.0), 'w_mod': _w((lambda *s: torch.randn(*s, dtype=torch.bfloat16) * 0.2)(448, 6 * 448) * 448 ** (-0.5) * 8.0)}

def reference(A_x, A_k_cache, A_v_cache, A_wq, A_wo, B_x, B_w_gate, B_w_up, B_w_down, c, w_mod):

    def _A_ref(x, k_cache, v_cache, wq, wo):
        B, Sq, D = x.shape
        Hq, Dh = (16, 256)
        Hkv, Sk = (k_cache.shape[1], k_cache.shape[2])
        W = min(4096, max(256, Sk // 4))
        rep = Hq // Hkv
        q = (lambda x, *d: x.permute(*d))((x @ wq).reshape(B, Sq, Hq, Dh), 0, 2, 1, 3)
        k = (lambda x, n, axis: torch.repeat_interleave(x, n, dim=axis))(k_cache[:, :, Sk - W:, :], rep, axis=1)
        v = (lambda x, n, axis: torch.repeat_interleave(x, n, dim=axis))(v_cache[:, :, Sk - W:, :], rep, axis=1)
        scores = torch.einsum('bhqd,bhkd->bhqk', q, k) * Dh ** (-0.5)
        p = _softmax(scores, axis=-1)
        o = torch.einsum('bhqk,bhkd->bhqd', p, v)
        return (lambda x, *d: x.permute(*d))(o, 0, 2, 1, 3).reshape(B, Sq, Hq * Dh) @ wo

    def _B_ref(x, w_gate, w_up, w_down):
        return _gelu(x @ w_gate) * (x @ w_up) @ w_down
    x = A_x
    mod = (_silu(c) @ w_mod).reshape(c.shape[0], 6, 1, -1)
    sa, ca, ga, sb, cb, gb = (mod[:, 0].clone(), mod[:, 1].clone(), mod[:, 2].clone(), mod[:, 3].clone(), mod[:, 4].clone(), mod[:, 5].clone())
    h = _layernorm(x, axis=-1) * (1 + ca) + sa
    x = x + ga * _A_ref(h, A_k_cache, A_v_cache, A_wq, A_wo)
    h = _layernorm(x, axis=-1) * (1 + cb) + sb
    x = x + gb * _B_ref(h, B_w_gate, B_w_up, B_w_down)
    return x
```

```python
import re
TRANS = ('v_exp_f32','v_log_f32','v_rcp_f32','v_rsq_f32','v_sqrt_f32','v_sin_f32','v_cos_f32','v_rcp_iflag_f32')
def regs_of(tok):
    tok = tok.strip()
    neg = tok.lstrip('-')
    m = re.fullmatch(r'abs\((.*)\)', neg)
    if m: neg = m.group(1)
    m = re.fullmatch(r'\|(.*)\|', neg)
    if m: neg = m.group(1)
    m = re.fullmatch(r'([vsa])(\d+)', neg)
    if m: return [(m.group(1), int(m.group(2)))]
    m = re.fullmatch(r'([vsa])\[(\d+):(\d+)\]', neg)
    if m: return [(m.group(1), i) for i in range(int(m.group(2)), int(m.group(3))+1)]
    if neg == 'vcc': return [('s','vcc')]
    if neg in ('vcc_lo','vcc_hi'): return [('s','vcc')]
    if neg == 'exec': return [('s','exec')]
    return []
class I:
    def __init__(self, text):
        self.text = text
        t = text.split(';')[0].strip()
        self.label = t.endswith(':')
        self.op = '' if self.label else t.split()[0]
        rest = '' if self.label else t[len(self.op):].strip()
        parts = [p.strip() for p in rest.split(',')] if rest else []
        ops = []; cur = ''
        for p in parts:
            cur = (cur + ',' + p) if cur else p
            if cur.count('[') == cur.count(']') and cur.count('(') == cur.count(')'):
                ops.append(cur); cur = ''
        self.mods = ''
        if ops:
            last = ops[-1].split(None, 1)
            ops[-1] = last[0]
            if len(last) > 1: self.mods = last[1]
        self.ops = ops
        op = self.op
        self.valu = op.startswith('v_') and not op.startswith('v_mfma')
        self.mfma = op.startswith('v_mfma')
        self.vmem = op.startswith(('global_','buffer_','flat_'))
        self.ds = op.startswith('ds_')
        self.dpp = op.endswith('_dpp') or any(k in self.mods for k in ('quad_perm','row_','wave_'))
        self.perml = op.startswith('v_permlane')
        self.trans = op.replace('_e32','').replace('_e64','') in TRANS
        self.rdlane = op.startswith(('v_readlane','v_readfirstlane'))
        self.wrlane = op.startswith('v_writelane')
        self.branch = op.startswith(('s_branch','s_cbranch'))
        self.wr = []; self.rd = []
        R = [regs_of(o) for o in ops]
        if self.valu or self.mfma:
            nd = 1
            if self.perml: self.wr = R[0]+R[1]; self.rd = R[0]+R[1]
            else:
                if re.match(r'v_(add|sub|subrev|addc|subb|subbrev)_co_', op) or op.startswith(('v_div_scale','v_mad_u64_u32','v_mad_i64_i32')): nd = 2
                for r in R[:nd]: self.wr += r
                for r in R[nd:]: self.rd += r
                if op.startswith(('v_fmac','v_mac','v_pk_fmac','v_dot2c')) or self.dpp or self.wrlane or 'sdwa' in op: self.rd += R[0]
                if op.startswith('v_cndmask') and len(ops) == 3: self.rd += [('s','vcc')]
                if op.startswith('v_cmpx'): self.wr += [('s','exec')]
        elif self.vmem:
            if 'load' in op and 'lds' not in op:
                self.wr = R[0];
                for r in R[1:]: self.rd += r
            else:
                for r in R: self.rd += r
            self.store_wide = ('store' in op) and op.endswith(('x3','x4'))
            self.store_data = (R[1] if op.startswith(('global_','flat_')) else R[0]) if 'store' in op else []
        elif self.ds:
            if op.startswith(('ds_read','ds_bpermute','ds_permute','ds_swizzle')) or '_rtn' in op:
                self.wr = R[0]
                for r in R[1:]: self.rd += r
            else:
                for r in R: self.rd += r
        else:
            if op.startswith(('s_cmp','s_bitcmp','s_waitcnt','s_nop','s_barrier','s_sleep','s_setprio','s_endpgm')) or self.branch:
                for r in R: self.rd += r
            elif R:
                self.wr = R[0]
                for r in R[1:]: self.rd += r
        self.states = 1
        if op == 's_nop': self.states = int(ops[0], 0) + 1

HOR = 20
def need(ins, st):
    n = 0
    def req(key, k):
        nonlocal n
        if key in st: n = max(n, k - st[key])
    vr = [r for r in ins.rd if r[0] in 'va']; sr = [r for r in ins.rd if r[0] == 's']
    vw = [r for r in ins.wr if r[0] in 'va']
    if ins.valu:
        for r in vr:
            if ins.dpp or ins.perml: req(('vw',r), 2)
            if ins.rdlane: req(('vw',r), 1)
            req(('tw',r), 1); req(('ow',r), 1)
            req(('md',r), 8)
        for r in sr:
            req(('sw',r), 4 if (ins.rdlane or ins.wrlane) else 2)
        for r in vw:
            req(('md',r), 8); req(('mc',r), 3); req(('sd',r), 2); req(('ow',r), 1)
        if ins.dpp: req(('sw',('s','exec')), 5)
    if ins.mfma:
        D = regs_of(ins.ops[0]); A = regs_of(ins.ops[1]); B = regs_of(ins.ops[2]); C = regs_of(ins.ops[3])
        for r in A+B+C: req(('vw',r), 2)
        for r in A+B: req(('md',r), 8)
        for r in C:
            if ('md',r) in st and st.get(('mdx',r,C[0],len(C)), 99) != st[('md',r)]: req(('md',r), 6)
        for r in D:
            if r not in C: req(('md',r), 8)
            req(('sd',r), 2)
    if ins.vmem or ins.ds:
        for r in vr: req(('md',r), 8)
        for r in vw: req(('md',r), 8); req(('sd',r), 1)
        if ins.vmem:
            for r in sr: req(('sw',r), 5)
    return n
def step(ins, st, states):
    ns = {k: v+states for k, v in st.items() if v+states < HOR}
    if ins is None: return ns
    if ins.valu:
        for r in ins.wr:
            if r[0] in 'va':
                ns[('vw',r)] = 0
                if ins.trans: ns[('tw',r)] = 0
                else: ns.pop(('tw',r), None)
                if ('sdwa' in ins.op and 'dst_sel' in ins.mods and 'dst_sel:DWORD' not in ins.mods) or (ins.op.startswith('v_pk_') is False and 'op_sel' in ins.mods): ns[('ow',r)] = 0
            else: ns[('sw',r)] = 0
    if ins.mfma:
        D = regs_of(ins.ops[0]); C = regs_of(ins.ops[3])
        for r in D:
            ns[('md',r)] = 0; ns[('mdx',r,D[0],len(D))] = 0
        for r in C: ns[('mc',r)] = 0
    if ins.vmem and getattr(ins,'store_wide',False):
        for r in ins.store_data: ns[('sd',r)] = 0
    return ns
def merge(a, b):
    if a is None: return dict(b)
    o = dict(a)
    for k, v in b.items():
        if k[0] == 'mdx':
            continue
        o[k] = min(o.get(k, 99), v)
    for k in list(o):
        if k[0] == 'mdx' and (k not in b or k not in a or a[k] != b[k]): del o[k]
    return o
def fix(lines):
    lines = list(lines)
    total = 0
    while True:
        ins = [I(l) for l in lines]
        at = {}
        changed = True
        for it in range(6):
            st = {}; new = {}
            dead = False
            for x in ins:
                if x.label:
                    nm = x.text.split(';')[0].strip()[:-1]
                    s = None if dead else st
                    if nm in at: s = merge(s, at[nm])
                    st = s or {}; dead = False
                    continue
                k = need(x, st)
                st = step(None, st, k) if k > 0 else st
                st = step(x, st, x.states)
                if x.branch:
                    t = x.ops[0]; new[t] = merge(new.get(t), st)
                    if x.op == 's_branch': dead = True
                if x.op == 's_endpgm': dead = True
            if new == at: break
            at = new
        out = []; st = {}; dead = False; ins_n = 0
        for x in ins:
            if x.label:
                nm = x.text.split(';')[0].strip()[:-1]
                s = None if dead else st
                if nm in at: s = merge(s, at[nm])
                st = s or {}; dead = False
                out.append(x.text); continue
            k = need(x, st)
            if k > 0:
                out.append(f's_nop {k-1}'); st = step(None, st, k); ins_n += 1
            out.append(x.text)
            st = step(x, st, x.states)
            if x.op == 's_branch' or x.op == 's_endpgm': dead = True
        lines = out; total += ins_n
        if ins_n == 0: break
    return lines, total

def taint_check(lines):
    ins = [I(l) for l in lines]
    allr = set([('v',i) for i in range(1,256)] + [('s',i) for i in range(3,104)] + [('s','vcc')])
    at = {}
    probs = set()
    for it in range(40):
        st = set(allr); new = {k: set(v) for k, v in at.items()}; dead = False; probs = set()
        for idx, x in enumerate(ins):
            if x.label:
                nm = x.text.split(';')[0].strip()[:-1]
                if dead: st = set(at.get(nm, set()))
                else: st |= at.get(nm, set())
                dead = False
                continue
            R = [regs_of(o) for o in x.ops]
            addr = []
            if x.vmem:
                if 'lds' in x.op: addr = R[0] + R[1]
                elif 'load' in x.op: addr = R[1] + R[2]
                else: addr = R[0] + R[2]
            elif x.ds:
                addr = R[1] if x.wr else R[0]
            elif x.op.startswith('s_load'):
                addr = R[1] + R[2]
            for r in addr:
                if r in st: probs.add((idx, x.text, r))
            if (x.vmem or x.ds or x.mfma):
                for r in x.wr: st.add(r)
            elif x.op.startswith('s_load'):
                k = x.ops[1] == 's[0:1]'
                for r in x.wr: (st.discard(r) if k else st.add(r))
            elif x.op.startswith('s_memrealtime') or x.op.startswith('s_memtime'):
                for r in x.wr: st.add(r)
            else:
                rd = [r for r in x.rd if r != ('s','exec')]
                t = any(r in st for r in rd)
                if x.op.startswith(('s_addc','s_cselect')) : pass
                for r in x.wr:
                    if r == ('s','exec'): continue
                    (st.add(r) if t else st.discard(r))
            if x.branch:
                tg = x.ops[0]; new[tg] = new.get(tg, set()) | st
                if x.op == 's_branch': dead = True
            if x.op == 's_endpgm': dead = True
        if new == at: break
        at = new
    return sorted(probs)
```

```python
import sys, math
from hz import fix, taint_check
KN = 'adaLN_cond__sliding_block_cached__geglu_ffn__decode_kernel'

class Cfg:
    dbg = 0
    nxe = 18
    nt = 'nt'
    ntgu = 'nt'
    wo_pos = 1
    ef_trig = 'st'
    ef_early = 0
    e_hint = 'none'
    o_sleep = 0
    outpol = ''
    vdelay = 0
cfg = Cfg()
for a in sys.argv[1:]:
    k, v = a.split('=')
    setattr(cfg, k, int(v) if v.lstrip('-').isdigit() else v)
if cfg.nt == 'none': cfg.nt = ''
if cfg.ntgu == 'none': cfg.ntgu = ''

M1 = 0x0000; EPO = 0x3C00; BD = 0x4000
M6 = 0x6000; FLAT = 0xD000; ST = 0xD000; M4 = 0xD800; M5 = 0x14800; M3 = 0x2D000
M2 = 0x80000; HD = 0xA0000
TSB = 0x100000
LOG2E = 1.4426950408889634
def f2u(x):
    import struct
    return struct.unpack('<I', struct.pack('<f', x))[0]
def fl(x): return hex(f2u(x))

L = []
def e(s):
    for line in s.split('\n'):
        line = line.strip()
        if line:
            L.append(line)
            if cfg.dbg and line.startswith('s_waitcnt') and 'lgkmcnt(0)' in line: ts_flush()
_lab = [0]
def lab(b):
    _lab[0] += 1
    return f'L_{b}_{_lab[0]}'
def vr(a, n=1): return f'v{a}' if n == 1 else f'v[{a}:{a+n-1}]'
def sr(a, n=1): return f's{a}' if n == 1 else f's[{a}:{a+n-1}]'

ts_pend = []
VTS = 5
def ts(k):
    if not cfg.dbg: return
    if len(ts_pend) == 2: e('s_waitcnt lgkmcnt(0)')
    used = [p for p, _ in ts_pend]
    p = 98 if 98 not in used else 100
    L.append(f's_memrealtime s[{p}:{p+1}]')
    ts_pend.append((p, k))
def ts_flush():
    global ts_pend
    pend, ts_pend = ts_pend, []
    for p, k in pend: L.append(f'v_writelane_b32 v{VTS}, s{p}, {k}')
def ts_sync():
    if cfg.dbg and ts_pend: e('s_waitcnt lgkmcnt(0)')
def wave_end():
    if cfg.dbg:
        ts(15); ts_sync()
        e('s_branch L_tsdump')
    else:
        e('s_endpgm')
def br(op, target):
    ts_sync(); e(f'{op} {target}')
def label(name):
    ts_sync(); e(f'{name}:')

sX, sK, sV, sWQ, sWO, sT0, sGT, sUP, sDN, sC, sWM, sOUT, sDBG, sWS = 4, 6, 8, 10, 12, 14, 16, 18, 20, 22, 24, 26, 28, 30
sWAVE = 3; sCNT = 96; sR0 = 97
sTAG = 14
vLANE, vLG, vN, vHM, vCJ = 1, 2, 3, 4, 6

def exec_set(mask):
    lo = mask & 0xffffffff; hi = mask >> 32
    if mask == (1 << 64) - 1: e('s_mov_b64 exec, -1')
    elif hi == 0 and lo < 0x80000000: e(f's_mov_b64 exec, {hex(lo)}')
    else:
        e(f's_mov_b32 exec_lo, {hex(lo)}'); e(f's_mov_b32 exec_hi, {hex(hi)}')
def rnd(dst, src, tmp=None):
    tmp = dst if tmp is None else tmp
    e(f'v_cvt_pk_bf16_f32 v{tmp}, v{src}, v{src}')
    e(f'v_and_b32 v{dst}, 0xffff0000, v{tmp}')
def red4rows(c):
    e(f'''v_permlane32_swap_b32 v{c}, v{c+2}
    v_permlane32_swap_b32 v{c+1}, v{c+3}
    v_add_f32 v{c}, v{c}, v{c+2}
    v_add_f32 v{c+1}, v{c+1}, v{c+3}
    v_permlane16_swap_b32 v{c}, v{c+1}
    v_add_f32 v{c}, v{c}, v{c+1}''')
def red4rows_multi(cs):
    for c in cs: e(f'v_permlane32_swap_b32 v{c}, v{c+2}\nv_permlane32_swap_b32 v{c+1}, v{c+3}')
    for c in cs: e(f'v_add_f32 v{c}, v{c}, v{c+2}\nv_add_f32 v{c+1}, v{c+1}, v{c+3}')
    for c in cs: e(f'v_permlane16_swap_b32 v{c}, v{c+1}')
    for c in cs: e(f'v_add_f32 v{c}, v{c}, v{c+1}')
def dpp_add(dst, src, pat, op='add'):
    e(f'v_{op}_f32_dpp v{dst}, v{src}, v{src} {pat} row_mask:0xf bank_mask:0xf')
def rowsum(v, op='add'):
    for p in ('quad_perm:[1,0,3,2]', 'quad_perm:[2,3,0,1]', 'row_half_mirror', 'row_mirror'): dpp_add(v, v, p, op)
def wavesum(v, t):
    rowsum(v)
    e(f'v_mov_b32 v{t}, v{v}\nv_permlane16_swap_b32 v{v}, v{t}\nv_add_f32 v{v}, v{v}, v{t}')
    e(f'v_mov_b32 v{t}, v{v}\nv_permlane32_swap_b32 v{v}, v{t}\nv_add_f32 v{v}, v{v}, v{t}')
def gemv_consts():
    e(f'''v_and_b32 v60, 1, v{vLANE}
    v_cmp_eq_u32 vcc, 1, v60
    v_mov_b32 v61, 0xffff
    v_mov_b32 v62, 0xffff0000
    v_cndmask_b32 v{vHM}, v61, v62, vcc
    v_bfe_u32 v60, v{vLANE}, 1, 2''')
    for j in range(4):
        e(f'v_cmp_eq_u32 vcc, {j}, v60\nv_cndmask_b32 v{vCJ+j}, 0, 1.0, vcc')
def pkmul(A, val):
    b = val & ~1
    sel = 'op_sel_hi:[0,1]' if val % 2 == 0 else 'op_sel:[1,0] op_sel_hi:[1,1]'
    e(f'v_pk_mul_f32 v[{A}:{A+1}], v[{b}:{b+1}], v[{vCJ}:{vCJ+1}] {sel}')
    e(f'v_pk_mul_f32 v[{A+2}:{A+3}], v[{b}:{b+1}], v[{vCJ+2}:{vCJ+3}] {sel}')
def gemv(steps, acc, val, A):
    n = len(steps)
    def andA(t): e(f'v_and_b32_dpp v{val+t%2}, v{steps[t][0]}, v{vHM} row_newbcast:{steps[t][1]} row_mask:0xf bank_mask:0x3')
    def andB(t): e(f'v_and_b32_dpp v{val+t%2}, v{steps[t][0]}, v{vHM} row_newbcast:{steps[t][1]+1} row_mask:0xf bank_mask:0xc')
    andA(0)
    if n > 1: andA(1)
    andB(0)
    for t in range(n):
        pkmul(A, val + t % 2)
        if t + 1 < n: andB(t + 1)
        if t + 2 < n: andA(t + 2)
        if steps[t][3]: e(steps[t][3])
        W = steps[t][2]
        e(f'v_mfma_f32_16x16x32_bf16 v[{acc}:{acc+3}], v[{A}:{A+3}], v[{W}:{W+3}], ' + ('0' if t == 0 else f'v[{acc}:{acc+3}]'))
def fold(acc, tmp):
    for r in range(4): e(f'v_permlane32_swap_b32 v{acc+r}, v{tmp+r}')
    for r in range(4): e(f'v_add_f32_dpp v{acc+r}, v{tmp+r}, v{acc+r} row_ror:8 row_mask:0xf bank_mask:0xf')
def sadd64(d, s, imm):
    e(f's_add_u32 s{d}, s{s}, {imm}\ns_addc_u32 s{d+1}, s{s+1}, 0')
def retry(top):
    ts_sync()
    e(f's_sub_i32 s{sCNT}, s{sCNT}, 1\ns_cmp_gt_i32 s{sCNT}, 0\ns_cbranch_scc1 {top}')
def poll_word(basepair, off_s=None, imm=0, want='ne_m1', tmp=32):
    top = lab('pw'); out = lab('pwo')
    label(top)
    e(f's_load_dword s{tmp}, s[{basepair}:{basepair+1}], {imm if off_s is None else "s"+str(off_s)} glc')
    e('s_waitcnt lgkmcnt(0)')
    e(f's_cmp_lg_u32 s{tmp}, {-1 if want == "ne_m1" else 0}')
    br('s_cbranch_scc1', out)
    retry(top)
    label(out)
def load_epoch():
    e(f's_load_dword s{sTAG}, s[{sWS}:{sWS+1}], {EPO}')
def make_tag():
    e(f's_add_u32 s{sTAG}, s{sTAG}, 0x01010101')
def tag_bytes(b):
    for k in range(4): e(f's_bfe_u32 s{b+k}, s{sTAG}, {hex((8 << 16) | (8 * k))}')
def vpoll_word(voff, cond, tmp=32):
    top = lab('vp'); out = lab('vpo')
    label(top)
    e(f'global_load_dword v{tmp}, v{voff}, s[{sWS}:{sWS+1}] sc1\ns_waitcnt vmcnt(0)')
    e(f'v_cmp_eq_u32 vcc, s{sTAG}, v{tmp}' if cond == 'tag' else f'v_cmp_ne_u32 vcc, -1, v{tmp}')
    br('s_cbranch_vccnz', out)
    retry(top)
    label(out)
def poll_tag(basepair, imm=0, tmp=32):
    top = lab('pt'); out = lab('pto')
    label(top)
    e(f's_load_dword s{tmp}, s[{basepair}:{basepair+1}], {imm} glc')
    e('s_waitcnt lgkmcnt(0)')
    e(f's_cmp_eq_u32 s{tmp}, s{sTAG}')
    br('s_cbranch_scc1', out)
    retry(top)
    label(out)
def poll_flags():
    top = lab('pf'); out = lab('pfo')
    label(top)
    e(f'''s_load_dwordx16 s[32:47], s[{sDBG}:{sDBG+1}], 0 glc
    s_load_dwordx16 s[48:63], s[{sDBG}:{sDBG+1}], 64 glc
    s_load_dwordx16 s[64:79], s[{sDBG}:{sDBG+1}], 128 glc
    s_load_dwordx8 s[80:87], s[{sDBG}:{sDBG+1}], 192 glc
    s_waitcnt lgkmcnt(0)''')
    for i in range(34, 88, 2): e(f's_and_b64 s[32:33], s[32:33], s[{i}:{i+1}]')
    e('s_and_b32 s32, s32, s33\ns_cmp_eq_u32 s32, -1')
    br('s_cbranch_scc1', out)
    retry(top)
    label(out)

def prologue():
    nxe = cfg.nxe; nxl = 32 - nxe
    e(f'''s_cmp_ge_u32 s2, 256
    s_cbranch_scc1 L_exit
    s_load_dwordx16 s[4:19], s[0:1], 0
    s_load_dwordx8 s[20:27], s[0:1], 64
    s_load_dwordx4 s[28:31], s[0:1], 96''')
    if cfg.dbg:
        e(f'v_mov_b32 v{VTS}, 0'); ts(0)
    e(f'''v_lshrrev_b32 v10, 6, v0
    v_and_b32 v{vLANE}, 63, v0
    v_readfirstlane_b32 s{sWAVE}, v10
    v_bfe_u32 v{vLG}, v0, 4, 2
    v_and_b32 v{vN}, 15, v0
    s_mov_b32 s{sCNT}, 400000
    s_and_b32 s33, s2, 7
    s_lshr_b32 s34, s2, 3
    s_cmp_lt_u32 s33, 4''')
    L.append('s_cbranch_scc0 L_late')
    e(f'''s_mul_i32 s35, s33, {nxe}
    s_add_u32 s{sR0}, s35, s34
    s_cmp_lt_u32 s34, {nxe}''')
    L.append('s_cbranch_scc1 L_X')
    e(f'''s_sub_u32 s34, s34, {nxe}
    s_lshl_b32 s35, s33, 3
    s_add_u32 s35, s35, s34
    s_cmp_lt_u32 s34, 8
    s_cselect_b32 s0, s35, -1
    s_mul_i32 s35, s33, 6
    s_add_u32 s35, s35, s34
    s_sub_u32 s35, s35, 8
    s_sub_u32 s36, s34, 8
    s_cmp_lt_u32 s36, 6
    s_cselect_b32 s1, s35, -1
    s_mul_i32 s35, s33, 14
    s_add_u32 s{sR0}, s35, s34
    s_cmp_lt_u32 s34, 14''')
    L.append('s_cbranch_scc1 L_A')
    L.append('s_endpgm' if not cfg.dbg else 's_branch L_exit')
    L.append('L_late:')
    e(f'''s_sub_u32 s33, s33, 4
    s_mul_i32 s35, s33, {nxl}
    s_add_u32 s35, s35, s34
    s_add_u32 s{sR0}, s35, {4*nxe}
    s_cmp_lt_u32 s34, {nxl}''')
    L.append('s_cbranch_scc1 L_X')
    e(f'''s_sub_u32 s34, s34, {nxl}
    s_mul_i32 s35, s33, 6
    s_add_u32 s35, s35, s34
    s_add_u32 s35, s35, 32
    s_cmp_lt_u32 s34, 6
    s_cselect_b32 s0, s35, -1
    s_add_u32 s35, s33, 24
    s_cmp_eq_u32 s34, 6
    s_cselect_b32 s1, s35, -1
    s_lshl_b32 s35, s33, 4
    s_add_u32 s{sR0}, s35, s34
    s_cmp_lt_u32 s34, 16''')
    L.append('s_cbranch_scc1 L_B')
    L.append('L_exit:')
    L.append('s_endpgm')
    global ts_pend
    return list(ts_pend)

def role_A(pend):
    global ts_pend
    L.append('L_A:'); ts_pend = list(pend)
    e(f'''s_mul_i32 s34, s{sR0}, 4682
    s_lshr_b32 s34, s34, 16
    s_mul_i32 s35, s34, 14
    s_sub_u32 s35, s{sR0}, s35
    s_cmp_eq_u32 s{sWAVE}, 1''')
    br('s_cbranch_scc1', 'L_clear')
    e(f's_cmp_ge_u32 s{sWAVE}, 4')
    br('s_cbranch_scc1', 'L_Aidle')
    e(f'''s_sub_u32 s36, s{sWAVE}, 1
    s_max_i32 s36, s36, 0
    s_mul_i32 s36, s36, 14
    s_add_u32 s35, s35, s36
    s_mul_i32 s37, s34, 112''')
    e(f'''v_lshl_add_u32 v10, v{vN}, 2, v{vLG}
    v_add_u32 v10, s37, v10
    v_lshlrev_b32 v11, 1, v10
    v_add_u32 v12, 128, v11
    v_min_u32 v12, 894, v12
    v_lshrrev_b32 v13, 3, v{vN}
    v_lshl_add_u32 v13, v13, 2, v{vLG}
    v_mul_u32_u24 v13, 5376, v13
    v_and_b32 v14, 7, v{vN}
    v_lshl_add_u32 v13, v14, 4, v13
    s_mul_i32 s38, s37, 5376
    s_lshl_b32 s39, s35, 7
    s_add_u32 s38, s38, s39
    s_waitcnt lgkmcnt(0)''')
    ts(1)
    load_epoch()
    e(f'''global_load_ushort v16, v11, s[{sC}:{sC+1}]
    global_load_ushort v17, v12, s[{sC}:{sC+1}]
    s_add_u32 s40, s{sWM}, s38
    s_addc_u32 s41, s{sWM+1}, 0
    s_cmp_eq_u32 s{sWAVE}, 0''')
    br('s_cbranch_scc1', 'L_Ago')
    e('s_barrier')
    label('L_Ago')
    for t in range(14):
        e(f'global_load_dwordx4 v[{64+4*t}:{67+4*t}], v13, s[40:41] {cfg.nt}')
        if t < 13: sadd64(40, 40, 8 * 5376)
    gemv_consts()
    e(f'''v_lshlrev_b32 v18, 5, v{vN}
    v_lshl_add_u32 v18, v{vLG}, 4, v18
    s_mul_i32 s42, s34, 3584
    s_lshl_b32 s43, s35, 8
    s_add_u32 s42, s42, s43
    s_mul_i32 s44, s34, 7168
    s_add_u32 s44, s44, s43
    s_add_u32 s44, s44, {M6 - 3584}
    s_cmp_eq_u32 s{sWAVE}, 0
    s_cselect_b32 s42, s42, s44
    v_add_u32 v18, s42, v18
    v_mov_b32 v19, 0xffffff00
    s_waitcnt vmcnt(14) lgkmcnt(0)''')
    make_tag(); tag_bytes(46)
    ts(2)
    for r in (16, 17): e(f'v_lshlrev_b32 v{r}, 16, v{r}')
    for r in (16, 17): e(f'v_mul_f32 v{r+6}, {fl(-LOG2E)}, v{r}')
    for r in (16, 17): e(f'v_exp_f32 v{r+6}, v{r+6}')
    for r in (16, 17): e(f'v_add_f32 v{r+6}, 1.0, v{r+6}')
    for r in (16, 17): e(f'v_rcp_f32 v{r+6}, v{r+6}')
    for r in (16, 17): e(f'v_mul_f32 v{r}, v{r}, v{r+6}')
    for r in (16, 17): e(f'v_cvt_pk_bf16_f32 v{r}, v{r}, v{r}')
    gemv([(16 + t // 8, (2 * t) % 16, 64 + 4 * t, f's_waitcnt vmcnt({13-t})') for t in range(14)], acc=24, val=22, A=28)
    fold(24, 32)
    e(f's_cmp_lg_u32 s{sWAVE}, 0')
    br('s_cbranch_scc1', 'L_Anb')
    for r in range(4): e(f'v_and_or_b32 v{24+r}, v{24+r}, v19, s{46+r}')
    e('s_barrier')
    label('L_Anb')
    exec_set(0x00FF00FF)
    e(f'global_store_dwordx4 v18, v[24:27], s[{sWS}:{sWS+1}] sc1')
    exec_set((1 << 64) - 1)
    ts(3)
    br('s_branch', 'L_second_A')
    label('L_clear')
    e(f'''v_mov_b32 v12, -1
    v_mov_b32 v13, -1
    v_mov_b32 v14, -1
    v_mov_b32 v15, -1
    s_mul_i32 s36, s{sR0}, 7168
    s_add_u32 s36, s36, {FLAT + 4096}
    v_lshlrev_b32 v10, 4, v{vLANE}
    v_add_u32 v11, s36, v10
    s_mul_i32 s42, s34, 7168
    s_lshl_b32 s43, s35, 8
    s_add_u32 s42, s42, s43
    s_add_u32 s42, s42, {M6}
    v_mul_u32_u24 v16, 3584, v{vLG}
    v_lshl_add_u32 v16, v{vN}, 4, v16
    v_add_u32 v16, s42, v16
    s_lshl_b32 s36, s{sR0}, 10
    s_add_u32 s36, s36, {M2}
    v_add_u32 v17, s36, v10
    v_add_u32 v18, {56*1024}, v17
    v_add_u32 v19, {112*1024}, v17
    v_lshrrev_b32 v20, 2, v{vLANE}
    v_mul_u32_u24 v20, {56*512}, v20
    v_and_b32 v21, 3, v{vLANE}
    v_lshl_add_u32 v20, v21, 7, v20
    s_lshl_b32 s36, s{sR0}, 9
    s_add_u32 s36, s36, {HD}
    v_add_u32 v20, s36, v20
    s_waitcnt lgkmcnt(0)''')
    load_epoch()
    e(f'global_store_dwordx4 v17, v[12:15], s[{sWS}:{sWS+1}] sc1')
    e(f'global_store_dwordx4 v18, v[12:15], s[{sWS}:{sWS+1}] sc1')
    for k in range(7): e(f'global_store_dwordx4 v11, v[12:15], s[{sWS}:{sWS+1}] offset:{k*1024-4096} sc1')
    exec_set(0xFFFFFFFF)
    e(f'global_store_dwordx4 v16, v[12:15], s[{sWS}:{sWS+1}] sc1')
    exec_set((1 << 64) - 1)
    e(f's_mov_b64 s[40:41], 0xff\ns_cmp_ge_u32 s{sR0}, 16')
    br('s_cbranch_scc1', 'L_c2')
    e(f'global_store_dwordx4 v19, v[12:15], s[{sWS}:{sWS+1}] sc1\ns_mov_b64 s[40:41], 0xfff')
    label('L_c2')
    e('s_waitcnt lgkmcnt(0)')
    make_tag()
    e(f'v_mov_b32 v21, s{sTAG}\ns_waitcnt vmcnt(0)\ns_barrier\ns_mov_b64 exec, s[40:41]')
    e(f'global_store_dword v20, v21, s[{sWS}:{sWS+1}] sc1')
    exec_set((1 << 64) - 1)
    ts(2)
    br('s_branch', 'L_second_A')
    label('L_Aidle')
    e('s_waitcnt lgkmcnt(0)')
    load_epoch()
    e('s_barrier\ns_waitcnt lgkmcnt(0)')
    make_tag()
    label('L_second_A')
    e('s_cmp_lg_u32 s0, -1')
    br('s_cbranch_scc1', 'L_A2')
    e(f's_cmp_lg_u32 s{sWAVE}, 0')
    br('s_cbranch_scc1', 'L_fin')
    e('s_cmp_eq_u32 s1, -1')
    br('s_cbranch_scc1', 'L_fin')
    label('L_A2')
    e(f's_lshl_b32 s36, s{sR0}, 7\ns_add_u32 s36, s36, {BD}\nv_mov_b32 v10, s36')
    vpoll_word(10, 'tag')
    br('s_branch', 'L_second')

RED = 0; STT = 5120
VALID = 0xFF00FF0000FF00FF
def red_write(acc, vaddr):
    exec_set(VALID)
    e(f'ds_write_b128 v{vaddr}, v[{acc}:{acc+3}]')
    exec_set((1 << 64) - 1)
def red_waddr(dst, tmp, pstr, base):
    e(f'''v_lshrrev_b32 v{tmp}, 1, v{vLG}
    s_lshl_b32 s32, s{sWAVE}, 1
    v_add_u32 v{tmp}, s32, v{tmp}
    v_mul_u32_u24 v{dst}, {pstr}, v{tmp}
    v_and_b32 v{tmp}, 7, v{vN}
    v_lshl_add_u32 v{dst}, v{tmp}, 5, v{dst}
    v_and_b32 v{tmp}, 1, v{vLG}
    v_lshl_add_u32 v{dst}, v{tmp}, 4, v{dst}''')
    if base: e(f'v_add_u32 v{dst}, {base}, v{dst}')
def quad_raddr(dst, tmp, base):
    e(f'''v_and_b32 v{tmp}, 3, v{vLANE}
    v_mul_u32_u24 v{dst}, 320, v{tmp}
    v_lshrrev_b32 v{tmp}, 2, v{vLANE}
    v_lshl_add_u32 v{dst}, v{tmp}, 4, v{dst}''')
    if base: e(f'v_add_u32 v{dst}, {base}, v{dst}')
def quad_reduce(raddr, d, nread):
    for i in range(nread): e(f'ds_read_b128 v[{d+4*i}:{d+4*i+3}], v{raddr} offset:{i*1280}')
    e('s_waitcnt lgkmcnt(0)')
    pk_tree(d, nread)
    for p in ('quad_perm:[1,0,3,2]', 'quad_perm:[2,3,0,1]'):
        for r in range(4): dpp_add(d + r, d + r, p)
def pk_tree(d, n):
    s = 1
    while s < n:
        for i in range(0, n - s, 2 * s):
            for h in (0, 2):
                a = d + 4 * i + h; b = d + 4 * (i + s) + h
                e(f'v_pk_add_f32 v[{a}:{a+1}], v[{a}:{a+1}], v[{b}:{b+1}]')
        s *= 2

def role_B(pend):
    global ts_pend
    L.append('L_B:'); ts_pend = list(pend)
    e(f'''v_lshlrev_b32 v10, 4, v{vLANE}
    v_min_u32 v10, 880, v10
    v_min_u32 v11, 13, v{vN}
    s_mul_i32 s34, s{sWAVE}, 56
    v_lshl_add_u32 v11, v11, 2, s34
    v_add_lshl_u32 v12, v11, v{vLG}, 1
    v_lshrrev_b32 v13, 3, v{vN}
    v_lshl_add_u32 v13, v13, 2, v{vLG}
    v_lshlrev_b32 v13, 13, v13
    v_and_b32 v14, 7, v{vN}
    v_lshl_add_u32 v13, v14, 4, v13
    s_lshl_b32 s35, s34, 13
    s_lshl_b32 s36, s{sR0}, 7
    s_add_u32 s35, s35, s36
    s_waitcnt lgkmcnt(0)''')
    ts(1)
    load_epoch()
    e(f'''global_load_dwordx4 v[16:19], v10, s[{sX}:{sX+1}]
    global_load_ushort v20, v12, s[{sX}:{sX+1}]
    s_add_u32 s40, s{sWQ}, s35
    s_addc_u32 s41, s{sWQ+1}, 0''')
    for t in range(7):
        e(f'global_load_dwordx4 v[{64+4*t}:{67+4*t}], v13, s[40:41] {cfg.nt}')
        if t < 6: sadd64(40, 40, 65536)
    gemv_consts()
    e(f'''v_mul_u32_u24 v15, 3584, v{vLG}
    v_lshl_add_u32 v15, v11, 2, v15''')
    red_waddr(21, 22, 320, RED)
    quad_raddr(23, 22, RED)
    e(f'''v_cmp_gt_u32 vcc, 56, v{vLANE}
    v_cndmask_b32 v31, 0, 1.0, vcc
    s_waitcnt vmcnt(7)''')
    for i in range(4):
        e(f'v_lshlrev_b32 v{32+2*i}, 16, v{16+i}\nv_and_b32 v{33+2*i}, 0xffff0000, v{16+i}')
    e('''v_pk_add_f32 v[40:41], v[32:33], v[34:35]
    v_pk_add_f32 v[42:43], v[36:37], v[38:39]
    v_pk_add_f32 v[40:41], v[40:41], v[42:43]
    v_add_f32 v40, v40, v41
    v_mul_f32 v40, v40, v31''')
    wavesum(40, 41)
    e(f'v_mul_f32 v40, {fl(1/448)}, v40')
    for i in range(8): e(f'v_sub_f32 v{32+i}, v{32+i}, v40')
    e('v_mul_f32 v42, v32, v32')
    for i in range(1, 8): e(f'v_fmac_f32 v42, v{32+i}, v{32+i}')
    e('v_mul_f32 v42, v42, v31')
    wavesum(42, 41)
    e(f'v_mul_f32 v42, {fl(1/448)}, v42')
    rnd(40, 40); rnd(42, 42)
    e(f'v_add_f32 v42, {fl(1e-5)}, v42'); rnd(42, 42)
    e('v_sqrt_f32 v42, v42'); rnd(42, 42)
    e('v_rcp_f32 v42, v42\nv_lshlrev_b32 v20, 16, v20\nv_sub_f32 v20, v20, v40'); rnd(20, 20)
    e('v_mul_f32 v20, v20, v42'); rnd(20, 20)
    ts(2)
    e('s_waitcnt lgkmcnt(0)')
    make_tag(); tag_bytes(46)
    e(f'''s_lshr_b32 s36, s{sR0}, 3
    s_lshl_b32 s36, s36, 14
    s_and_b32 s37, s{sR0}, 7
    s_lshl_b32 s37, s37, 7
    s_add_u32 s36, s36, s37
    s_add_u32 s36, s36, {M2}
    v_and_b32 v50, 7, v{vLANE}
    v_lshlrev_b32 v50, 10, v50
    v_lshrrev_b32 v51, 3, v{vLANE}
    v_lshl_add_u32 v50, v51, 4, v50
    v_add_u32 v50, s36, v50
    v_add_u32 v51, 8192, v50
    s_lshl_b32 s36, s{sR0}, 7
    s_add_u32 s36, s36, {BD}
    v_mov_b32 v52, s36
    v_mov_b32 v53, s{sTAG}''')
    top = lab('bg'); out = lab('bgo')
    label(top)
    e(f'''global_load_dwordx4 v[32:35], v15, s[{sWS}:{sWS+1}] sc1
    global_load_dwordx4 v[36:39], v15, s[{sWS}:{sWS+1}] offset:1792 sc1
    s_waitcnt vmcnt(0)''')
    for i in range(8): e(f'v_xor_b32 v{32+i}, s{46+i%4}, v{32+i}')
    e('''v_or3_b32 v40, v32, v33, v34
    v_or3_b32 v41, v35, v36, v37
    v_or3_b32 v40, v40, v38, v39
    v_or_b32 v40, v40, v41
    v_and_b32 v40, 0xff, v40
    v_cmp_ne_u32 vcc, 0, v40''')
    br('s_cbranch_vccz', out)
    retry(top)
    label(out)
    red4rows_multi([32, 36])
    ts(4)
    rnd(36, 36); rnd(32, 32)
    e('v_add_f32 v36, 1.0, v36'); rnd(36, 36)
    e('v_mul_f32 v36, v20, v36'); rnd(36, 36)
    e('v_add_f32 v36, v36, v32\nv_cvt_pk_bf16_f32 v36, v36, v36')
    gemv([(36, 2 * t, 64 + 4 * t, None) for t in range(7)], acc=24, val=44, A=28)
    red_write(24, 21)
    e('s_waitcnt lgkmcnt(0)\ns_barrier')
    e(f's_cmp_lg_u32 s{sWAVE}, 0')
    br('s_cbranch_scc1', 'L_Bdone')
    quad_reduce(23, 32, 4)
    e('''v_cvt_pk_bf16_f32 v32, v32, v33
    v_cvt_pk_bf16_f32 v33, v34, v35
    v_mov_b32 v34, v32
    v_mov_b32 v35, v33
    v_mov_b32_dpp v34, v32 row_shl:4 row_mask:0xf bank_mask:0x5
    v_mov_b32_dpp v35, v33 row_shl:4 row_mask:0xf bank_mask:0x5
    v_mov_b32_dpp v32, v32 row_shr:4 row_mask:0xf bank_mask:0xa
    v_mov_b32_dpp v33, v33 row_shr:4 row_mask:0xf bank_mask:0xa''')
    e(f'global_store_dwordx4 v50, v[32:35], s[{sWS}:{sWS+1}] sc1')
    e(f'global_store_dwordx4 v51, v[32:35], s[{sWS}:{sWS+1}] sc1')
    exec_set(1)
    e(f'global_store_dword v52, v53, s[{sWS}:{sWS+1}] sc1')
    exec_set((1 << 64) - 1)
    ts(5)
    label('L_Bdone')
    e('s_cmp_lg_u32 s0, -1')
    br('s_cbranch_scc1', 'L_second')
    e(f's_cmp_lg_u32 s{sWAVE}, 0')
    br('s_cbranch_scc1', 'L_fin')
    e('s_cmp_eq_u32 s1, -1')
    br('s_cbranch_scc1', 'L_fin')
    label('L_second')
    e('s_cmp_eq_u32 s0, -1')
    br('s_cbranch_scc1', 'L_G')

def role_EF():
    gemv_consts()
    e(f'''v_min_u32 v11, 13, v{vN}
    s_mul_i32 s34, s{sWAVE}, 56
    v_lshl_add_u32 v11, v11, 2, s34
    v_add_lshl_u32 v12, v11, v{vLG}, 1
    global_load_ushort v20, v12, s[{sX}:{sX+1}]
    v_mul_u32_u24 v15, 7168, v{vLG}
    v_lshl_add_u32 v15, v11, 2, v15
    v_add_u32 v15, {M6}, v15
    v_mul_u32_u24 v14, 1792, v{vLG}
    v_lshl_add_u32 v14, v11, 2, v14
    v_cmp_gt_u32 vcc, 14, v{vN}
    v_cndmask_b32 v31, 0, 1.0, vcc''')
    for t in range(4): sadd64(44 + 2 * t, sWS, M4 + t * 7168)
    e(f'''v_lshrrev_b32 v13, 3, v{vN}
    v_lshl_add_u32 v13, v13, 2, v{vLG}
    v_add_u32 v18, s34, v13
    v_mul_u32_u24 v18, 3584, v18
    v_and_b32 v19, 3, v{vN}
    v_lshl_add_u32 v18, v19, 4, v18
    s_lshl_b32 s35, s0, 6
    v_add_u32 v18, s35, v18
    v_and_b32 v19, 4, v{vN}
    v_cmp_eq_u32 vcc, 0, v19
    v_mov_b32 v16, s{sUP}
    v_mov_b32 v17, s{sGT}
    v_cndmask_b32 v16, v16, v17, vcc
    v_mov_b32 v17, s{sUP+1}
    v_mov_b32 v19, s{sGT+1}
    v_cndmask_b32 v17, v17, v19, vcc
    v_add_co_u32 v16, vcc, v16, v18
    v_addc_co_u32 v17, vcc, 0, v17, vcc
    s_mov_b32 s52, 28672
    s_mov_b32 s53, 0''')
    e(f'''v_mul_u32_u24 v13, 896, v13
    v_and_b32 v19, 7, v{vN}
    v_lshl_add_u32 v13, v19, 4, v13
    s_mul_i32 s35, s0, {32*896}
    s_lshl_b32 s36, s{sWAVE}, 7
    s_add_u32 s35, s35, s36
    s_add_u32 s54, s{sDN}, s35
    s_addc_u32 s55, s{sDN+1}, 0''')
    red_waddr(21, 22, 256, RED)
    e(f'''v_lshlrev_b32 v23, 4, v{vLANE}
    v_lshrrev_b32 v22, 5, v{vLANE}
    v_lshlrev_b32 v22, 2, v22
    s_lshl_b32 s36, s{sWAVE}, 4
    s_add_u32 s36, s36, {STT}
    v_add_u32 v22, s36, v22
    v_and_b32 v19, 7, v{vLANE}
    v_lshlrev_b32 v19, 4, v19
    v_add_u32 v19, {STT}, v19
    v_lshrrev_b32 v10, 1, v{vN}
    s_lshl_b32 s36, s{sWAVE}, 2
    v_add_u32 v10, s36, v10
    v_mul_u32_u24 v10, 3584, v10
    v_and_b32 v18, 1, v{vN}
    v_lshl_add_u32 v10, v18, 5, v10
    v_lshl_add_u32 v10, v{vLG}, 4, v10
    s_lshl_b32 s36, s0, 6
    s_add_u32 s36, s36, {M5}
    v_add_u32 v10, s36, v10''')
    ts(6)
    top = lab('m6'); out = lab('m6o')
    label(top)
    e(f'''global_load_dwordx4 v[32:35], v15, s[{sWS}:{sWS+1}] sc1
    global_load_dwordx4 v[36:39], v15, s[{sWS}:{sWS+1}] offset:1792 sc1
    global_load_dwordx4 v[40:43], v15, s[{sWS}:{sWS+1}] offset:3584 sc1
    s_waitcnt vmcnt(0)''')
    red4rows_multi([32, 36, 40])
    e('v_add_f32 v33, v32, v36\nv_cmp_u_f32 vcc, v33, v40')
    br('s_cbranch_vccz', out)
    e('s_sleep 4')
    retry(top)
    label(out)
    rnd(56, 32); rnd(57, 36); rnd(58, 40)
    e('v_add_f32 v58, 1.0, v58'); rnd(58, 58)
    e('v_lshlrev_b32 v20, 16, v20')
    ts(7)
    def gu(t):
        e(f'global_load_dwordx4 v[{64+4*t}:{67+4*t}], v[16:17], off {cfg.ntgu}')
        if t < 6: e('v_lshl_add_u64 v[16:17], v[16:17], 0, s[52:53]')
    ne = 7 if cfg.ef_trig == 'q' else cfg.ef_early
    for t in range(ne): gu(t)
    if cfg.ef_trig == 'st':
        e(f's_lshl_b32 s36, s0, 5\ns_add_u32 s36, s36, {ST}\nv_mov_b32 v33, s36')
        vpoll_word(33, 'ne_m1')
    ts(8)
    for t in range(ne, 7): gu(t)
    e(f's_cmp_eq_u32 s{sWAVE}, 7')
    br('s_cbranch_scc1', 'L_nodn')
    for t in range(4):
        e(f'global_load_dwordx4 v[{96+4*t}:{99+4*t}], v13, s[54:55] {cfg.nt}')
        if t < 3: sadd64(54, 54, 7168)
    label('L_nodn')
    if cfg.e_hint == 'm4':
        e(f's_and_b32 s36, s0, 15\ns_mul_i32 s36, s36, 1792\ns_lshl_b32 s37, s34, 2\ns_add_u32 s36, s36, s37\ns_add_u32 s36, s36, {M4}')
        poll_word(sWS, off_s=36)
    elif cfg.e_hint == 'm3':
        e(f's_lshl_b32 s36, s0, 12\ns_add_u32 s36, s36, {M3}')
        poll_word(sWS, off_s=36)
    ts(9)
    top = lab('m4'); out = lab('m4o')
    label(top)
    for t in range(4): e(f'global_load_dwordx4 v[{32+4*t}:{35+4*t}], v14, s[{44+2*t}:{45+2*t}] sc1')
    e('s_waitcnt vmcnt(0)')
    pk_tree(32, 4)
    red4rows(32)
    e('v_cmp_u_f32 vcc, v32, v32')
    br('s_cbranch_vccz', out)
    retry(top)
    label(out)
    ts(10)
    rnd(32, 32)
    e('v_mul_f32 v32, v56, v32'); rnd(32, 32)
    e('v_add_f32 v32, v20, v32'); rnd(32, 32)
    e('''v_readfirstlane_b32 s36, v32
    v_subrev_f32 v33, s36, v32
    v_mul_f32 v33, v33, v31
    v_mul_f32 v34, v33, v33
    v_mov_b32 v36, s36
    v_permlane32_swap_b32 v33, v34
    v_add_f32 v33, v33, v34
    v_mov_b32 v34, v33
    v_permlane16_swap_b32 v33, v34
    v_add_f32 v33, v33, v34''')
    rowsum(33)
    exec_set(0x0000000100000001)
    e('ds_write_b32 v22, v33\nds_write_b32 v22, v36 offset:8')
    exec_set((1 << 64) - 1)
    e('s_waitcnt lgkmcnt(0)\ns_barrier\nds_read_b96 v[36:38], v19\ns_waitcnt lgkmcnt(0)')
    e(f'''v_mul_f32 v39, {fl(1/56)}, v36
    v_add_f32 v38, v38, v39
    v_fma_f32 v37, -v36, v39, v37
    v_mov_b32 v40, v38''')
    for p in ('quad_perm:[1,0,3,2]', 'quad_perm:[2,3,0,1]', 'row_half_mirror'): dpp_add(40, 40, p)
    e(f'''v_mul_f32 v40, 0.125, v40
    v_sub_f32 v38, v38, v40
    v_mul_f32 v39, {fl(56.0)}, v38
    v_fmac_f32 v37, v39, v38''')
    for p in ('quad_perm:[1,0,3,2]', 'quad_perm:[2,3,0,1]', 'row_half_mirror'): dpp_add(37, 37, p)
    rnd(40, 40)
    e(f'v_mul_f32 v37, {fl(1/448)}, v37\nv_max_f32 v37, 0, v37'); rnd(37, 37)
    e(f'v_add_f32 v37, {fl(1e-5)}, v37'); rnd(37, 37)
    e('v_sqrt_f32 v37, v37\nv_sub_f32 v32, v32, v40'); rnd(37, 37); rnd(32, 32)
    e('v_rcp_f32 v37, v37\nv_mul_f32 v32, v32, v37'); rnd(32, 32)
    e('v_mul_f32 v32, v32, v58'); rnd(32, 32)
    e('v_add_f32 v32, v32, v57\nv_cvt_pk_bf16_f32 v32, v32, v32')
    gemv([(32, 2 * t, 64 + 4 * t, None) for t in range(7)], acc=24, val=44, A=28)
    red_write(24, 21)
    e('s_waitcnt lgkmcnt(0)\ns_barrier')
    ts(11)
    e(f's_cmp_eq_u32 s{sWAVE}, 7')
    br('s_cbranch_scc1', 'L_fin')
    for i in range(4): e(f'ds_read_b128 v[{32+4*i}:{35+4*i}], v23 offset:{RED+i*1024}')
    e('s_waitcnt lgkmcnt(0)')
    pk_tree(32, 4)
    red4rows(32)
    rnd(32, 32)
    kk = -2 * math.sqrt(2 / math.pi) * LOG2E
    e(f'''v_mul_f32 v33, v32, v32
    v_mov_b32_dpp v35, v32 row_ror:8 row_mask:0xf bank_mask:0xf
    v_mul_f32 v33, {fl(0.044715*kk)}, v33
    v_add_f32 v33, {fl(kk)}, v33
    v_mul_f32 v33, v33, v32
    v_exp_f32 v33, v33
    v_add_f32 v33, 1.0, v33
    v_rcp_f32 v33, v33
    v_mul_f32 v32, v32, v33''')
    rnd(32, 32)
    e('v_mul_f32 v32, v32, v35\nv_cvt_pk_bf16_f32 v32, v32, v32')
    gemv([(32, 2 * t, 96 + 4 * t, None) for t in range(4)], acc=24, val=44, A=28)
    fold(24, 36)
    exec_set(0x00FF00FF)
    e(f'global_store_dwordx4 v10, v[24:27], s[{sWS}:{sWS+1}] sc1')
    exec_set((1 << 64) - 1)
    label('L_fin')
    wave_end()

def red16(c):
    red4rows(c)
    dpp_add(c, c, 'row_ror:8'); dpp_add(c, c, 'row_ror:4')
def role_G():
    label('L_G')
    e(f'''v_and_b32 v10, 3, v{vLANE}
    v_lshrrev_b32 v11, 2, v{vLANE}
    s_lshl_b32 s34, s1, 4
    v_lshl_add_u32 v12, v10, 2, s34
    v_add_lshl_u32 v13, v12, v{vLG}, 1
    global_load_ushort v20, v13, s[{sX}:{sX+1}]
    v_and_b32 v14, 3, v11
    v_mul_u32_u24 v14, 7168, v14
    v_lshl_add_u32 v14, v12, 2, v14
    v_add_u32 v14, {M6}, v14
    v_add_u32 v15, 5376, v14
    v_mul_u32_u24 v16, 1792, v11
    v_lshl_add_u32 v16, v12, 2, v16
    v_add_u32 v16, {M4}, v16
    s_mul_i32 s35, s1, 3584
    s_add_u32 s35, s35, {M5}
    v_lshlrev_b32 v17, 4, v{vLANE}
    v_add_u32 v17, s35, v17''')
    top = lab('g6'); out = lab('g6o')
    label(top)
    e(f'''global_load_dwordx4 v[32:35], v14, s[{sWS}:{sWS+1}] sc1
    global_load_dwordx4 v[36:39], v15, s[{sWS}:{sWS+1}] sc1
    s_waitcnt vmcnt(0)''')
    for c in (32, 36):
        for r in range(4): dpp_add(c + r, c + r, 'row_ror:8')
        for r in range(4): dpp_add(c + r, c + r, 'row_ror:4')
    e(f'v_cmp_eq_u32 vcc, 1, v{vLG}\nv_cndmask_b32 v32, v32, v33, vcc\nv_cndmask_b32 v36, v36, v37, vcc')
    e(f'v_cmp_eq_u32 vcc, 2, v{vLG}\nv_cndmask_b32 v32, v32, v34, vcc\nv_cndmask_b32 v36, v36, v38, vcc')
    e(f'v_cmp_eq_u32 vcc, 3, v{vLG}\nv_cndmask_b32 v32, v32, v35, vcc\nv_cndmask_b32 v36, v36, v39, vcc')
    e('v_cmp_u_f32 vcc, v32, v36')
    br('s_cbranch_vccz', out)
    e('s_sleep 4')
    retry(top)
    label(out)
    rnd(56, 32); rnd(57, 36)
    e('v_lshlrev_b32 v20, 16, v20')
    ts(7)
    top = lab('g4'); out = lab('g4o')
    label(top)
    e(f'global_load_dwordx4 v[32:35], v16, s[{sWS}:{sWS+1}] sc1\ns_waitcnt vmcnt(0)')
    red16(32)
    e('v_cmp_u_f32 vcc, v32, v32')
    br('s_cbranch_vccz', out)
    retry(top)
    label(out)
    rnd(32, 32)
    e('v_mul_f32 v32, v56, v32'); rnd(32, 32)
    e('v_add_f32 v20, v20, v32'); rnd(20, 20)
    for r in range(4): e(f'v_mov_b32 v{44+r}, 0')
    e(f'v_mov_b32 v58, {EPO}\nv_mov_b32 v59, s{sTAG}')
    ts(10)
    top = lab('g5'); out = lab('g5o')
    label(top)
    for t in range(3): e(f'global_load_dwordx4 v[{32+4*t}:{35+4*t}], v17, s[{sWS}:{sWS+1}] offset:{t*1024} sc1')
    exec_set(0xFFFFFFFF)
    e(f'global_load_dwordx4 v[44:47], v17, s[{sWS}:{sWS+1}] offset:3072 sc1')
    exec_set((1 << 64) - 1)
    e('s_waitcnt vmcnt(0)')
    pk_tree(32, 4)
    red16(32)
    e('v_cmp_u_f32 vcc, v32, v32')
    br('s_cbranch_vccz', out)
    retry(top)
    label(out)
    rnd(32, 32)
    e('v_mul_f32 v32, v57, v32'); rnd(32, 32)
    e('v_add_f32 v32, v20, v32\nv_cvt_pk_bf16_f32 v32, v32, v32')
    exec_set(0x000F000F000F000F)
    e(f'global_store_short v13, v32, s[{sOUT}:{sOUT+1}] {cfg.outpol}')
    e('s_cmp_lg_u32 s1, 0')
    br('s_cbranch_scc1', 'L_Gne')
    exec_set(1)
    e(f'global_store_dword v58, v59, s[{sWS}:{sWS+1}] sc1')
    label('L_Gne')
    exec_set((1 << 64) - 1)
    wave_end()

QT = 0; ZR = 1280; MX = 1792; PT = 2048; PS = 144; XRED = 4608
def role_X(pend):
    global ts_pend
    L.append('L_X:'); ts_pend = list(pend)
    e(f'''s_lshr_b32 s34, s{sR0}, 4
    s_and_b32 s35, s{sR0}, 15
    s_lshl_b32 s36, s34, 22
    s_lshl_b32 s37, s35, 16
    s_add_u32 s36, s36, s37
    s_add_u32 s36, s36, {6144*512}
    s_cmp_ge_u32 s{sWAVE}, 4''')
    br('s_cbranch_scc1', 'L_XV')
    e(f'''v_and_b32 v10, 7, v{vN}
    v_lshlrev_b32 v10, 9, v10
    v_lshrrev_b32 v11, 3, v{vN}
    v_lshl_add_u32 v10, v11, 6, v10
    v_lshl_add_u32 v10, v{vLG}, 4, v10
    s_lshl_b32 s37, s{sWAVE}, 14
    s_add_u32 s36, s36, s37
    s_add_u32 s36, s36, 4096
    s_waitcnt lgkmcnt(0)''')
    ts(1)
    load_epoch()
    e(f's_add_u32 s40, s{sK}, s36\ns_addc_u32 s41, s{sK+1}, 0')
    for T in range(4):
        if T == 2: sadd64(40, 40, 8192)
        for sg in range(4):
            r = 64 + 16 * T + 4 * sg
            e(f'global_load_dwordx4 v[{r}:{r+3}], v10, s[40:41] offset:{(T%2)*4096 - 4096 + sg*128} {cfg.nt}')
    ts(2)
    e(f'''s_mov_b32 s4, s34
    s_mov_b32 s5, s35
    s_mul_i32 s8, s{sR0}, 9363
    s_lshr_b32 s8, s8, 16
    s_mul_i32 s9, s8, 7
    s_sub_u32 s9, s{sR0}, s9''')
    gemv_consts()
    e(f's_cmp_lg_u32 s{sWAVE}, 0')
    br('s_cbranch_scc1', 'L_Xni')
    e(f'''v_mov_b32 v12, 0
    v_mov_b32 v13, 0
    v_lshlrev_b32 v11, 3, v{vLANE}
    ds_write_b64 v11, v[12:13] offset:{ZR}
    v_mov_b32 v12, 0xff800000
    v_mov_b32 v13, 0xff800000
    v_mov_b32 v11, 0
    ds_write_b64 v11, v[12:13] offset:{MX}''')
    label('L_Xni')
    e(f'''v_lshrrev_b32 v11, 3, v{vN}
    v_mul_u32_u24 v17, 640, v11
    v_lshlrev_b32 v18, 2, v11
    v_add_u32 v18, {MX}, v18
    v_and_b32 v19, 1, v{vN}
    v_lshl_add_u32 v17, v19, 6, v17
    v_lshl_add_u32 v17, v{vLG}, 4, v17
    v_bfe_u32 v20, v{vN}, 1, 2
    v_mov_b32 v21, {ZR}''')
    for T in range(4): e(f'v_cmp_eq_u32 vcc, {T}, v20\nv_cndmask_b32 v{12+T}, v21, v17, vcc')
    e(f'''s_lshr_b32 s36, s{sWAVE}, 1
    s_mul_i32 s36, s36, 640
    s_and_b32 s37, s{sWAVE}, 1
    s_lshl_b32 s37, s37, 8
    s_add_u32 s36, s36, s37
    v_lshlrev_b32 v16, 2, v{vLANE}
    v_add_u32 v16, s36, v16''')
    e(f'''v_lshlrev_b32 v17, 3, v11
    v_lshl_add_u32 v17, v19, 1, v17
    v_lshrrev_b32 v21, 1, v{vLG}
    v_add_u32 v17, v17, v21
    v_mul_u32_u24 v17, {PS}, v17
    v_lshl_add_u32 v17, v20, 3, v17
    v_and_b32 v21, 1, v{vLG}
    v_lshl_add_u32 v17, v21, 2, v17
    s_lshl_b32 s36, s{sWAVE}, 5
    s_add_u32 s36, s36, {PT}
    v_add_u32 v17, s36, v17''')
    e(f'''v_lshl_add_u32 v19, v11, 2, v{vLG}
    v_mul_u32_u24 v19, 896, v19
    v_and_b32 v21, 7, v{vN}
    v_lshl_add_u32 v19, v21, 4, v19
    s_lshl_b32 s36, s8, 2
    s_add_u32 s36, s36, s{sWAVE}
    s_mul_i32 s36, s36, {64*896}
    s_lshl_b32 s37, s9, 7
    s_add_u32 s36, s36, s37
    s_add_u32 s10, s{sWO}, s36
    s_addc_u32 s11, s{sWO+1}, 0
    s_lshl_b32 s36, s{sR0}, 2
    s_add_u32 s36, s36, s{sWAVE}
    s_lshl_b32 s37, s36, 7
    s_lshl_b32 s36, s36, 8
    s_add_u32 s36, s36, {M2}
    s_add_u32 s16, s{sWS}, s36
    s_addc_u32 s17, s{sWS+1}, 0
    s_add_u32 s37, s37, {HD}
    s_add_u32 s22, s{sWS}, s37
    s_addc_u32 s23, s{sWS+1}, 0
    s_mov_b32 s18, 0xaaaaaaaa
    s_mov_b32 s19, 0xaaaaaaaa''')
    e('s_waitcnt lgkmcnt(0)')
    make_tag()
    poll_tag(22)
    ts(3)
    top = lab('qg'); rt = lab('qr'); out = lab('qo')
    label(top)
    for i in range(4): e(f's_load_dwordx16 s[{32+16*i}:{47+16*i}], s[16:17], {64*i} glc')
    e('''s_waitcnt lgkmcnt(0)
    s_max_u32 s20, s35, s63
    s_max_u32 s21, s67, s95
    s_max_u32 s20, s20, s21
    s_cmp_eq_u32 s20, -1''')
    br('s_cbranch_scc1', rt)
    for i in range(64): e(f'v_writelane_b32 v22, s{32+i}, {i}')
    e('v_cmp_eq_u32 vcc, -1, v22')
    br('s_cbranch_vccz', out)
    label(rt)
    retry(top)
    label(out)
    ts(4)
    def wo_loads():
        e(f's_cmp_ge_u32 s{sR0}, 112')
        skip = lab('nowo')
        br('s_cbranch_scc1', skip)
        for t in range(8):
            e(f'global_load_dwordx4 v[{192+4*t}:{195+4*t}], v19, s[10:11] {cfg.nt}')
            if t < 7: sadd64(10, 10, 7168)
        label(skip)
    e('ds_write_b32 v16, v22\ns_waitcnt lgkmcnt(0)\ns_barrier')
    for T in range(4):
        for sg in range(4):
            r = 128 + 16 * T + 4 * sg
            e(f'ds_read_b128 v[{r}:{r+3}], v{12+T} offset:{sg*128}')
    e('s_waitcnt vmcnt(0)')
    if cfg.wo_pos == 0: wo_loads()
    for i in range(16):
        e(f's_waitcnt lgkmcnt({min(15-i, 15)})' if i < 15 else 's_waitcnt lgkmcnt(0)')
        e(f'v_mfma_f32_16x16x32_bf16 v[24:27], v[{64+4*i}:{67+4*i}], v[{128+4*i}:{131+4*i}], ' + ('0' if i == 0 else 'v[24:27]'))
    e('''v_permlane32_swap_b32 v24, v25
    v_permlane32_swap_b32 v26, v27
    v_cndmask_b32 v28, v24, v27, s[18:19]
    v_cndmask_b32 v29, v26, v25, s[18:19]
    v_add_f32_dpp v28, v29, v28 quad_perm:[1,0,3,2] row_mask:0xf bank_mask:0xf''')
    rnd(28, 28)
    e('ds_max_f32 v18, v28\ns_waitcnt lgkmcnt(0)\ns_barrier\nds_read_b32 v29, v18\ns_waitcnt lgkmcnt(0)')
    e(f'''v_sub_f32 v28, v28, v29
    v_mul_f32 v28, {fl(0.0625*LOG2E)}, v28
    v_exp_f32 v28, v28
    v_cvt_pk_bf16_f32 v28, v28, v28
    v_and_b32 v29, 0xffff, v28
    v_and_b32 v28, 0xffff0000, v28
    ds_write2_b32 v17, v29, v28 offset0:0 offset1:{PS}
    s_waitcnt lgkmcnt(0)
    s_barrier''')
    ts(5)
    if cfg.wo_pos == 1: wo_loads()
    e(f's_cmp_lg_u32 s{sWAVE}, 0')
    br('s_cbranch_scc1', 'L_Xns')
    e(f'''v_lshrrev_b32 v30, 5, v{vLANE}
    v_lshlrev_b32 v31, 2, v30
    ds_read_b32 v32, v31 offset:{MX}
    v_bfe_u32 v31, v{vLANE}, 3, 2
    v_lshl_add_u32 v31, v30, 3, v31
    v_mul_u32_u24 v31, {PS}, v31
    v_and_b32 v33, 7, v{vLANE}
    v_lshl_add_u32 v31, v33, 4, v31
    ds_read_b128 v[36:39], v31 offset:{PT+4*PS}
    s_lshl_b32 s36, s4, 8
    s_lshl_b32 s37, s5, 3
    s_add_u32 s36, s36, s37
    s_add_u32 s36, s36, {ST}
    v_lshlrev_b32 v30, 7, v30
    v_add_u32 v30, s36, v30
    s_waitcnt lgkmcnt(0)
    v_pk_add_f32 v[36:37], v[36:37], v[38:39]
    v_add_f32 v33, v36, v37''')
    rowsum(33)
    e('v_mov_b32 v34, v33\nv_permlane16_swap_b32 v33, v34\nv_add_f32 v33, v33, v34')
    exec_set(0x0000000100000001)
    e(f'global_store_dwordx2 v30, v[32:33], s[{sWS}:{sWS+1}] sc1')
    exec_set((1 << 64) - 1)
    label('L_Xns')
    e(f's_cmp_ge_u32 s{sR0}, 112')
    br('s_cbranch_scc1', 'L_Xfin')
    e(f'''v_lshl_add_u32 v30, v{vLG}, 2, v{vN}
    v_and_b32 v30, 15, v30
    v_lshlrev_b32 v30, 3, v30
    s_lshl_b32 s36, s8, 7
    s_add_u32 s36, s36, {ST}
    v_add_u32 v30, s36, v30
    v_lshlrev_b32 v31, 12, v{vLG}
    v_lshl_add_u32 v31, v{vN}, 4, v31
    s_lshl_b32 s36, s8, 14
    s_lshl_b32 s37, s{sWAVE}, 8
    s_add_u32 s36, s36, s37
    s_add_u32 s36, s36, {M3}
    v_add_u32 v31, s36, v31''')
    red_waddr(21, 22, 320, XRED)
    quad_raddr(23, 22, XRED)
    e(f'''s_mul_i32 s36, s8, 1792
    s_lshl_b32 s37, s9, 8
    s_add_u32 s36, s36, s37
    s_add_u32 s36, s36, {M4}
    v_lshlrev_b32 v20, 2, v{vLANE}
    v_add_u32 v20, s36, v20''')
    top = lab('sg'); out = lab('sgo')
    label(top)
    e(f'global_load_dwordx2 v[32:33], v30, s[{sWS}:{sWS+1}] sc1\ns_waitcnt vmcnt(0)\nv_cmp_u_f32 vcc, v32, v33')
    br('s_cbranch_vccz', out)
    retry(top)
    label(out)
    e('v_mov_b32 v34, v32')
    rowsum(34, 'max')
    e(f'''v_sub_f32 v32, v32, v34
    v_mul_f32 v32, {fl(0.0625*LOG2E)}, v32
    v_exp_f32 v32, v32
    v_mul_f32 v33, v33, v32''')
    rowsum(33)
    e('v_rcp_f32 v33, v33\nv_mul_f32 v32, v32, v33')
    for t in range(4): e(f'v_mov_b32_dpp v{36+t}, v32 row_newbcast:{t} row_mask:0xf bank_mask:0xf')
    ts(6)
    e('s_barrier')
    ts(7)
    if cfg.o_sleep: e(f's_sleep {cfg.o_sleep}')
    top = lab('og'); out = lab('ogo')
    label(top)
    for t in range(4): e(f'global_load_dwordx4 v[{128+4*t}:{131+4*t}], v31, s[{sWS}:{sWS+1}] offset:{t*1024} sc1')
    e('s_waitcnt vmcnt(0)')
    for t in range(4):
        b = 36 + (t & ~1)
        for h in (0, 2):
            if t == 0:
                e(f'v_pk_mul_f32 v[{40+h}:{41+h}], v[{128+h}:{129+h}], v[{b}:{b+1}] op_sel_hi:[1,0]')
            else:
                sel = 'op_sel_hi:[1,0,1]' if t % 2 == 0 else 'op_sel:[0,1,0] op_sel_hi:[1,1,1]'
                e(f'v_pk_fma_f32 v[{40+h}:{41+h}], v[{128+4*t+h}:{129+4*t+h}], v[{b}:{b+1}], v[{40+h}:{41+h}] {sel}')
    red4rows(40)
    e('v_cmp_u_f32 vcc, v40, v40')
    br('s_cbranch_vccz', out)
    retry(top)
    label(out)
    ts(8)
    e('v_cvt_pk_bf16_f32 v40, v40, v40')
    gemv([(40, 2 * t, 192 + 4 * t, None) for t in range(8)], acc=24, val=44, A=48)
    red_write(24, 21)
    e('s_waitcnt lgkmcnt(0)\ns_barrier')
    e(f's_cmp_lg_u32 s{sWAVE}, 0')
    br('s_cbranch_scc1', 'L_Xfin')
    quad_reduce(23, 32, 2)
    exec_set(0x1111111111111111)
    e(f'global_store_dwordx4 v20, v[32:35], s[{sWS}:{sWS+1}] sc1')
    exec_set((1 << 64) - 1)
    label('L_Xfin')
    wave_end()
    ts_pend = list(pend)
    L.append('L_XV:')
    e(f's_cmp_ge_u32 s{sWAVE}, 6')
    br('s_cbranch_scc1', 'L_exit')
    e(f'''v_lshlrev_b32 v10, 9, v{vLG}
    v_lshl_add_u32 v10, v{vN}, 4, v10
    s_and_b32 s38, s{sWAVE}, 1
    s_lshl_b32 s37, s38, 8
    s_add_u32 s36, s36, s37
    s_add_u32 s36, s36, 4096
    s_waitcnt lgkmcnt(0)''')
    ts(1)
    e(f's_add_u32 s40, s{sV}, s36\ns_addc_u32 s41, s{sV+1}, 0')
    for u in range(32):
        if u and u % 4 == 0: sadd64(40, 40, 8192)
        e(f'global_load_dwordx4 v[{64+4*u}:{67+4*u}], v10, s[40:41] offset:{(u%4)*2048-4096} {cfg.nt}')
    ts(2)
    gemv_consts()
    e(f'''v_lshrrev_b32 v11, 3, v{vN}
    v_and_b32 v12, 1, v{vN}
    v_lshl_add_u32 v11, v11, 1, v12
    v_lshl_add_u32 v11, v11, 2, v{vLG}
    v_mul_u32_u24 v11, {PS}, v11
    v_lshrrev_b32 v12, 1, v{vLG}
    v_lshlrev_b32 v12, 14, v12
    v_lshl_add_u32 v12, v{vN}, 5, v12
    v_and_b32 v13, 1, v{vLG}
    v_lshl_add_u32 v12, v13, 4, v12
    s_lshl_b32 s36, s34, 15
    s_lshl_b32 s37, s35, 10
    s_add_u32 s36, s36, s37
    s_lshl_b32 s37, s38, 9
    s_add_u32 s36, s36, s37
    s_add_u32 s36, s36, {M3}
    v_add_u32 v12, s36, v12''')
    ts_sync()
    e('s_barrier\ns_barrier\ns_barrier')
    ts(5); ts_sync()
    for k in range(8): e(f'ds_read_b128 v[{192+4*k}:{195+4*k}], v11 offset:{PT+16*k}')
    e('s_waitcnt lgkmcnt(7)')
    pkmul(16, 192)
    for u in range(32):
        if u + 1 < 32:
            if (u + 1) % 4 == 0: L.append(f's_waitcnt lgkmcnt({7-(u+1)//4})')
            pkmul(16 + 4 * ((u + 1) % 2), 192 + u + 1)
        e(f's_waitcnt vmcnt({31-u})')
        A = 16 + 4 * (u % 2)
        e(f'v_mfma_f32_16x16x32_bf16 v[24:27], v[{A}:{A+3}], v[{64+4*u}:{67+4*u}], ' + ('0' if u == 0 else 'v[24:27]'))
    e(f'global_store_dwordx4 v12, v[24:27], s[{sWS}:{sWS+1}] sc1')
    ts(7)
    e(f's_cmp_ge_u32 s{sR0}, 112')
    br('s_cbranch_scc1', 'L_Vfin')
    e('s_barrier')
    label('L_Vfin')
    wave_end()

def tsdump():
    L.append('L_tsdump:')
    e(f'''s_lshl_b32 s32, s2, 3
    s_add_u32 s32, s32, s{sWAVE}
    s_lshl_b32 s32, s32, 6
    s_add_u32 s32, s32, {TSB}
    v_lshlrev_b32 v10, 2, v{vLANE}
    v_add_u32 v10, s32, v10
    s_mov_b64 exec, 0xffff
    global_store_dword v10, v{VTS}, s[{sWS}:{sWS+1}]
    s_endpgm''')

pend = prologue()
role_X(pend)
role_A(pend)
role_B(pend)
role_EF()
role_G()
if cfg.dbg: tsdump()
body, nn = fix(L)
for p in taint_check(body): sys.stderr.write(f'TAINT {p}\n')
if taint_check(body): sys.exit(1)
hdr = open('adaLN_cond__sliding_block_cached__geglu_ffn__decode.s.ref').read().split('; Override launch')[0]
out = hdr + '; generated by gen.py (persistent fused kernel, one workgroup per CU)\n'
out += '; @launch grid=(256,1,1) block=(512,1,1) lds=8192\n'
out += f'.amdgcn_target "amdgcn-amd-amdhsa--gfx950"\n.text\n.globl {KN}\n.p2align 8\n.type {KN},@function\n{KN}:\n'
out += '\n'.join(l if l.endswith(':') else '    ' + l for l in body) + '\n'
out += f'''.section .rodata,"a"
.p2align 6
.amdhsa_kernel {KN}
  .amdhsa_next_free_vgpr 224
  .amdhsa_next_free_sgpr 102
  .amdhsa_accum_offset 224
  .amdhsa_group_segment_fixed_size 0
  .amdhsa_kernarg_size 112
  .amdhsa_user_sgpr_count 2
  .amdhsa_user_sgpr_kernarg_segment_ptr 1
  .amdhsa_system_sgpr_workgroup_id_x 1
  .amdhsa_float_denorm_mode_32 3
.end_amdhsa_kernel
'''
sys.stdout.write(out)
sys.stderr.write(f'instructions {len(body)} nops {nn}\n')
```

```python
import sys, math
from hz import fix, taint_check
KN = 'adaLN_cond__sliding_block_cached__geglu_ffn__decode_kernel'

class Cfg:
    dbg = 0
    nxe = 18
    nt = 'nt'
    ntgu = 'nt'
    wo_pos = 1
    ef_trig = 'st'
    ef_early = 0
    e_hint = 'none'
    o_sleep = 0
    outpol = ''
    pf = 0
    kwin = 0
    kw2 = 0
    vgate = 0
    skip = ''
cfg = Cfg()
for a in sys.argv[1:]:
    k, v = a.split('=')
    setattr(cfg, k, int(v) if v.lstrip('-').isdigit() else v)
if cfg.nt == 'none': cfg.nt = ''
if cfg.ntgu == 'none': cfg.ntgu = ''

M1 = 0x0000; EPO = 0x3C00; BD = 0x4000
M6 = 0x6000; FLAT = 0xD000; ST = 0xD000; M4 = 0xD800; M5 = 0x14800; M3 = 0x2D000
M2 = 0x80000; HD = 0xA0000
TSB = 0x100000
LOG2E = 1.4426950408889634
def f2u(x):
    import struct
    return struct.unpack('<I', struct.pack('<f', x))[0]
def fl(x): return hex(f2u(x))

L = []
def e(s):
    for line in s.split('\n'):
        line = line.strip()
        if line:
            L.append(line)
            if cfg.dbg and line.startswith('s_waitcnt') and 'lgkmcnt(0)' in line: ts_flush()
_lab = [0]
def lab(b):
    _lab[0] += 1
    return f'L_{b}_{_lab[0]}'
def ld(s, tag):
    if tag in cfg.skip:
        import re
        a = int(re.search(r'v\[(\d+):', s).group(1))
        for r in range(4): e(f'v_mov_b32 v{a+r}, 0')
    else: e(s)
def vr(a, n=1): return f'v{a}' if n == 1 else f'v[{a}:{a+n-1}]'
def sr(a, n=1): return f's{a}' if n == 1 else f's[{a}:{a+n-1}]'

ts_pend = []
VTS = 5
def ts(k):
    if not cfg.dbg: return
    if len(ts_pend) == 2: e('s_waitcnt lgkmcnt(0)')
    used = [p for p, _ in ts_pend]
    p = 98 if 98 not in used else 100
    L.append(f's_memrealtime s[{p}:{p+1}]')
    ts_pend.append((p, k))
def ts_flush():
    global ts_pend
    pend, ts_pend = ts_pend, []
    for p, k in pend: L.append(f'v_writelane_b32 v{VTS}, s{p}, {k}')
def ts_sync():
    if cfg.dbg and ts_pend: e('s_waitcnt lgkmcnt(0)')
def wave_end():
    if cfg.dbg:
        ts(15); ts_sync()
        e('s_branch L_tsdump')
    else:
        e('s_endpgm')
def br(op, target):
    ts_sync(); e(f'{op} {target}')
def label(name):
    ts_sync(); e(f'{name}:')

sX, sK, sV, sWQ, sWO, sT0, sGT, sUP, sDN, sC, sWM, sOUT, sDBG, sWS = 4, 6, 8, 10, 12, 14, 16, 18, 20, 22, 24, 26, 28, 30
sWAVE = 3; sCNT = 96; sR0 = 97
sTAG = 14
vLANE, vLG, vN, vHM, vCJ = 1, 2, 3, 4, 6

def exec_set(mask):
    lo = mask & 0xffffffff; hi = mask >> 32
    if mask == (1 << 64) - 1: e('s_mov_b64 exec, -1')
    elif hi == 0 and lo < 0x80000000: e(f's_mov_b64 exec, {hex(lo)}')
    else:
        e(f's_mov_b32 exec_lo, {hex(lo)}'); e(f's_mov_b32 exec_hi, {hex(hi)}')
def rnd(dst, src, tmp=None):
    tmp = dst if tmp is None else tmp
    e(f'v_cvt_pk_bf16_f32 v{tmp}, v{src}, v{src}')
    e(f'v_and_b32 v{dst}, 0xffff0000, v{tmp}')
def red4rows(c):
    e(f'''v_permlane32_swap_b32 v{c}, v{c+2}
    v_permlane32_swap_b32 v{c+1}, v{c+3}
    v_add_f32 v{c}, v{c}, v{c+2}
    v_add_f32 v{c+1}, v{c+1}, v{c+3}
    v_permlane16_swap_b32 v{c}, v{c+1}
    v_add_f32 v{c}, v{c}, v{c+1}''')
def red4rows_multi(cs):
    for c in cs: e(f'v_permlane32_swap_b32 v{c}, v{c+2}\nv_permlane32_swap_b32 v{c+1}, v{c+3}')
    for c in cs: e(f'v_add_f32 v{c}, v{c}, v{c+2}\nv_add_f32 v{c+1}, v{c+1}, v{c+3}')
    for c in cs: e(f'v_permlane16_swap_b32 v{c}, v{c+1}')
    for c in cs: e(f'v_add_f32 v{c}, v{c}, v{c+1}')
def dpp_add(dst, src, pat, op='add'):
    e(f'v_{op}_f32_dpp v{dst}, v{src}, v{src} {pat} row_mask:0xf bank_mask:0xf')
def rowsum(v, op='add'):
    for p in ('quad_perm:[1,0,3,2]', 'quad_perm:[2,3,0,1]', 'row_half_mirror', 'row_mirror'): dpp_add(v, v, p, op)
def wavesum(v, t):
    rowsum(v)
    e(f'v_mov_b32 v{t}, v{v}\nv_permlane16_swap_b32 v{v}, v{t}\nv_add_f32 v{v}, v{v}, v{t}')
    e(f'v_mov_b32 v{t}, v{v}\nv_permlane32_swap_b32 v{v}, v{t}\nv_add_f32 v{v}, v{v}, v{t}')
def gemv_consts():
    e(f'''v_and_b32 v60, 1, v{vLANE}
    v_cmp_eq_u32 vcc, 1, v60
    v_mov_b32 v61, 0xffff
    v_mov_b32 v62, 0xffff0000
    v_cndmask_b32 v{vHM}, v61, v62, vcc
    v_bfe_u32 v60, v{vLANE}, 1, 2''')
    for j in range(4):
        e(f'v_cmp_eq_u32 vcc, {j}, v60\nv_cndmask_b32 v{vCJ+j}, 0, 1.0, vcc')
def pkmul(A, val):
    b = val & ~1
    sel = 'op_sel_hi:[0,1]' if val % 2 == 0 else 'op_sel:[1,0] op_sel_hi:[1,1]'
    e(f'v_pk_mul_f32 v[{A}:{A+1}], v[{b}:{b+1}], v[{vCJ}:{vCJ+1}] {sel}')
    e(f'v_pk_mul_f32 v[{A+2}:{A+3}], v[{b}:{b+1}], v[{vCJ+2}:{vCJ+3}] {sel}')
def gemv(steps, acc, val, A):
    n = len(steps)
    def andA(t): e(f'v_and_b32_dpp v{val+t%2}, v{steps[t][0]}, v{vHM} row_newbcast:{steps[t][1]} row_mask:0xf bank_mask:0x3')
    def andB(t): e(f'v_and_b32_dpp v{val+t%2}, v{steps[t][0]}, v{vHM} row_newbcast:{steps[t][1]+1} row_mask:0xf bank_mask:0xc')
    andA(0)
    if n > 1: andA(1)
    andB(0)
    for t in range(n):
        pkmul(A, val + t % 2)
        if t + 1 < n: andB(t + 1)
        if t + 2 < n: andA(t + 2)
        if steps[t][3]: e(steps[t][3])
        W = steps[t][2]
        e(f'v_mfma_f32_16x16x32_bf16 v[{acc}:{acc+3}], v[{A}:{A+3}], v[{W}:{W+3}], ' + ('0' if t == 0 else f'v[{acc}:{acc+3}]'))
def fold(acc, tmp):
    for r in range(4): e(f'v_permlane32_swap_b32 v{acc+r}, v{tmp+r}')
    for r in range(4): e(f'v_add_f32_dpp v{acc+r}, v{tmp+r}, v{acc+r} row_ror:8 row_mask:0xf bank_mask:0xf')
def sadd64(d, s, imm):
    e(f's_add_u32 s{d}, s{s}, {imm}\ns_addc_u32 s{d+1}, s{s+1}, 0')
def retry(top):
    ts_sync()
    e(f's_sub_i32 s{sCNT}, s{sCNT}, 1\ns_cmp_gt_i32 s{sCNT}, 0\ns_cbranch_scc1 {top}')
def poll_word(basepair, off_s=None, imm=0, want='ne_m1', tmp=32):
    top = lab('pw'); out = lab('pwo')
    label(top)
    e(f's_load_dword s{tmp}, s[{basepair}:{basepair+1}], {imm if off_s is None else "s"+str(off_s)} glc')
    e('s_waitcnt lgkmcnt(0)')
    e(f's_cmp_lg_u32 s{tmp}, {-1 if want == "ne_m1" else 0}')
    br('s_cbranch_scc1', out)
    retry(top)
    label(out)
def load_epoch():
    e(f's_load_dword s{sTAG}, s[{sWS}:{sWS+1}], {EPO}')
def make_tag():
    e(f's_add_u32 s{sTAG}, s{sTAG}, 0x01010101')
def tag_bytes(b):
    for k in range(4): e(f's_bfe_u32 s{b+k}, s{sTAG}, {hex((8 << 16) | (8 * k))}')
def vpoll_word(voff, cond, tmp=32):
    top = lab('vp'); out = lab('vpo')
    label(top)
    e(f'global_load_dword v{tmp}, v{voff}, s[{sWS}:{sWS+1}] sc1\ns_waitcnt vmcnt(0)')
    e(f'v_cmp_eq_u32 vcc, s{sTAG}, v{tmp}' if cond == 'tag' else f'v_cmp_ne_u32 vcc, -1, v{tmp}')
    br('s_cbranch_vccnz', out)
    retry(top)
    label(out)
def poll_tag(basepair, imm=0, tmp=32):
    top = lab('pt'); out = lab('pto')
    label(top)
    e(f's_load_dword s{tmp}, s[{basepair}:{basepair+1}], {imm} glc')
    e('s_waitcnt lgkmcnt(0)')
    e(f's_cmp_eq_u32 s{tmp}, s{sTAG}')
    br('s_cbranch_scc1', out)
    retry(top)
    label(out)
def poll_flags():
    top = lab('pf'); out = lab('pfo')
    label(top)
    e(f'''s_load_dwordx16 s[32:47], s[{sDBG}:{sDBG+1}], 0 glc
    s_load_dwordx16 s[48:63], s[{sDBG}:{sDBG+1}], 64 glc
    s_load_dwordx16 s[64:79], s[{sDBG}:{sDBG+1}], 128 glc
    s_load_dwordx8 s[80:87], s[{sDBG}:{sDBG+1}], 192 glc
    s_waitcnt lgkmcnt(0)''')
    for i in range(34, 88, 2): e(f's_and_b64 s[32:33], s[32:33], s[{i}:{i+1}]')
    e('s_and_b32 s32, s32, s33\ns_cmp_eq_u32 s32, -1')
    br('s_cbranch_scc1', out)
    retry(top)
    label(out)

def prologue():
    nxe = cfg.nxe; nxl = 32 - nxe
    e(f'''s_cmp_ge_u32 s2, 256
    s_cbranch_scc1 L_exit
    s_load_dwordx16 s[4:19], s[0:1], 0
    s_load_dwordx8 s[20:27], s[0:1], 64
    s_load_dwordx4 s[28:31], s[0:1], 96''')
    if cfg.dbg:
        e(f'v_mov_b32 v{VTS}, 0'); ts(0)
    e(f'''v_lshrrev_b32 v10, 6, v0
    v_and_b32 v{vLANE}, 63, v0
    v_readfirstlane_b32 s{sWAVE}, v10
    v_bfe_u32 v{vLG}, v0, 4, 2
    v_and_b32 v{vN}, 15, v0
    s_mov_b32 s{sCNT}, 400000
    s_and_b32 s33, s2, 7
    s_lshr_b32 s34, s2, 3''')
    if cfg.pf:
        e(f'''s_lshl_b32 s35, s34, 3
        s_sub_u32 s35, s{sWAVE}, s35
        s_cmp_ge_i32 s35, {6 - 8*(cfg.pf-1)}
        s_cselect_b32 s35, s{sWAVE}, 0
        s_cmp_ge_u32 s35, 6''')
        L.append('s_cbranch_scc1 L_pf')
    e('s_cmp_lt_u32 s33, 4')
    L.append('s_cbranch_scc0 L_late')
    e(f'''s_mul_i32 s35, s33, {nxe}
    s_add_u32 s{sR0}, s35, s34
    s_cmp_lt_u32 s34, {nxe}''')
    L.append('s_cbranch_scc1 L_X')
    e(f'''s_sub_u32 s34, s34, {nxe}
    s_lshl_b32 s35, s33, 3
    s_add_u32 s35, s35, s34
    s_cmp_lt_u32 s34, 8
    s_cselect_b32 s0, s35, -1
    s_mul_i32 s35, s33, 6
    s_add_u32 s35, s35, s34
    s_sub_u32 s35, s35, 8
    s_sub_u32 s36, s34, 8
    s_cmp_lt_u32 s36, 6
    s_cselect_b32 s1, s35, -1
    s_mul_i32 s35, s33, 14
    s_add_u32 s{sR0}, s35, s34
    s_cmp_lt_u32 s34, 14''')
    L.append('s_cbranch_scc1 L_A')
    L.append('s_endpgm' if not cfg.dbg else 's_branch L_exit')
    L.append('L_late:')
    e(f'''s_sub_u32 s33, s33, 4
    s_mul_i32 s35, s33, {nxl}
    s_add_u32 s35, s35, s34
    s_add_u32 s{sR0}, s35, {4*nxe}
    s_cmp_lt_u32 s34, {nxl}''')
    L.append('s_cbranch_scc1 L_X')
    e(f'''s_sub_u32 s34, s34, {nxl}
    s_mul_i32 s35, s33, 6
    s_add_u32 s35, s35, s34
    s_add_u32 s35, s35, 32
    s_cmp_lt_u32 s34, 6
    s_cselect_b32 s0, s35, -1
    s_add_u32 s35, s33, 24
    s_cmp_eq_u32 s34, 6
    s_cselect_b32 s1, s35, -1
    s_lshl_b32 s35, s33, 4
    s_add_u32 s{sR0}, s35, s34
    s_cmp_lt_u32 s34, 16''')
    L.append('s_cbranch_scc1 L_B')
    L.append('L_exit:')
    L.append('s_endpgm')
    global ts_pend
    pend = list(ts_pend)
    if cfg.pf:
        L.append('L_pf:'); ts_pend = []
        e(f'''s_getpc_b64 s[40:41]
        L_pc:
        s_sub_u32 s40, s40, L_pc-{KN}
        s_subb_u32 s41, s41, 0
        s_and_b32 s35, s{sWAVE}, 1
        s_lshl_b32 s35, s35, 13
        v_lshlrev_b32 v10, 6, v{vLANE}
        v_add_u32 v10, s35, v10
        v_add_u32 v11, 4096, v10
        v_min_u32 v10, L_end-{KN}-4, v10
        v_min_u32 v11, L_end-{KN}-4, v11
        global_load_dword v12, v10, s[40:41]
        global_load_dword v13, v11, s[40:41]
        s_waitcnt vmcnt(0)
        s_endpgm''')
    return pend

def role_A(pend):
    global ts_pend
    L.append('L_A:'); ts_pend = list(pend)
    e(f'''s_mul_i32 s34, s{sR0}, 4682
    s_lshr_b32 s34, s34, 16
    s_mul_i32 s35, s34, 14
    s_sub_u32 s35, s{sR0}, s35
    s_cmp_eq_u32 s{sWAVE}, 1''')
    br('s_cbranch_scc1', 'L_clear')
    e(f's_cmp_ge_u32 s{sWAVE}, 4')
    br('s_cbranch_scc1', 'L_Aidle')
    e(f'''s_sub_u32 s36, s{sWAVE}, 1
    s_max_i32 s36, s36, 0
    s_mul_i32 s36, s36, 14
    s_add_u32 s35, s35, s36
    s_mul_i32 s37, s34, 112''')
    e(f'''v_lshl_add_u32 v10, v{vN}, 2, v{vLG}
    v_add_u32 v10, s37, v10
    v_lshlrev_b32 v11, 1, v10
    v_add_u32 v12, 128, v11
    v_min_u32 v12, 894, v12
    v_lshrrev_b32 v13, 3, v{vN}
    v_lshl_add_u32 v13, v13, 2, v{vLG}
    v_mul_u32_u24 v13, 5376, v13
    v_and_b32 v14, 7, v{vN}
    v_lshl_add_u32 v13, v14, 4, v13
    s_mul_i32 s38, s37, 5376
    s_lshl_b32 s39, s35, 7
    s_add_u32 s38, s38, s39
    s_waitcnt lgkmcnt(0)''')
    ts(1)
    load_epoch()
    e(f'''global_load_ushort v16, v11, s[{sC}:{sC+1}]
    global_load_ushort v17, v12, s[{sC}:{sC+1}]
    s_add_u32 s40, s{sWM}, s38
    s_addc_u32 s41, s{sWM+1}, 0
    s_cmp_eq_u32 s{sWAVE}, 0''')
    br('s_cbranch_scc1', 'L_Ago')
    e('s_barrier')
    label('L_Ago')
    for t in range(14):
        e(f'global_load_dwordx4 v[{64+4*t}:{67+4*t}], v13, s[40:41] {cfg.nt}')
        if t < 13: sadd64(40, 40, 8 * 5376)
    gemv_consts()
    e(f'''v_lshlrev_b32 v18, 5, v{vN}
    v_lshl_add_u32 v18, v{vLG}, 4, v18
    s_mul_i32 s42, s34, 3584
    s_lshl_b32 s43, s35, 8
    s_add_u32 s42, s42, s43
    s_mul_i32 s44, s34, 7168
    s_add_u32 s44, s44, s43
    s_add_u32 s44, s44, {M6 - 3584}
    s_cmp_eq_u32 s{sWAVE}, 0
    s_cselect_b32 s42, s42, s44
    v_add_u32 v18, s42, v18
    v_mov_b32 v19, 0xffffff00
    s_waitcnt vmcnt(14) lgkmcnt(0)''')
    make_tag(); tag_bytes(46)
    ts(2)
    for r in (16, 17): e(f'v_lshlrev_b32 v{r}, 16, v{r}')
    for r in (16, 17): e(f'v_mul_f32 v{r+6}, {fl(-LOG2E)}, v{r}')
    for r in (16, 17): e(f'v_exp_f32 v{r+6}, v{r+6}')
    for r in (16, 17): e(f'v_add_f32 v{r+6}, 1.0, v{r+6}')
    for r in (16, 17): e(f'v_rcp_f32 v{r+6}, v{r+6}')
    for r in (16, 17): e(f'v_mul_f32 v{r}, v{r}, v{r+6}')
    for r in (16, 17): e(f'v_cvt_pk_bf16_f32 v{r}, v{r}, v{r}')
    gemv([(16 + t // 8, (2 * t) % 16, 64 + 4 * t, f's_waitcnt vmcnt({13-t})') for t in range(14)], acc=24, val=22, A=28)
    fold(24, 32)
    e(f's_cmp_lg_u32 s{sWAVE}, 0')
    br('s_cbranch_scc1', 'L_Anb')
    for r in range(4): e(f'v_and_or_b32 v{24+r}, v{24+r}, v19, s{46+r}')
    e('s_barrier')
    label('L_Anb')
    exec_set(0x00FF00FF)
    e(f'global_store_dwordx4 v18, v[24:27], s[{sWS}:{sWS+1}] sc1')
    exec_set((1 << 64) - 1)
    ts(3)
    br('s_branch', 'L_second_A')
    label('L_clear')
    e(f'''v_mov_b32 v12, -1
    v_mov_b32 v13, -1
    v_mov_b32 v14, -1
    v_mov_b32 v15, -1
    s_mul_i32 s36, s{sR0}, 7168
    s_add_u32 s36, s36, {FLAT + 4096}
    v_lshlrev_b32 v10, 4, v{vLANE}
    v_add_u32 v11, s36, v10
    s_mul_i32 s42, s34, 7168
    s_lshl_b32 s43, s35, 8
    s_add_u32 s42, s42, s43
    s_add_u32 s42, s42, {M6}
    v_mul_u32_u24 v16, 3584, v{vLG}
    v_lshl_add_u32 v16, v{vN}, 4, v16
    v_add_u32 v16, s42, v16
    s_lshl_b32 s36, s{sR0}, 10
    s_add_u32 s36, s36, {M2}
    v_add_u32 v17, s36, v10
    v_add_u32 v18, {56*1024}, v17
    v_add_u32 v19, {112*1024}, v17
    v_lshrrev_b32 v20, 2, v{vLANE}
    v_mul_u32_u24 v20, {56*512}, v20
    v_and_b32 v21, 3, v{vLANE}
    v_lshl_add_u32 v20, v21, 7, v20
    s_lshl_b32 s36, s{sR0}, 9
    s_add_u32 s36, s36, {HD}
    v_add_u32 v20, s36, v20
    s_waitcnt lgkmcnt(0)''')
    load_epoch()
    e(f'global_store_dwordx4 v17, v[12:15], s[{sWS}:{sWS+1}] sc1')
    e(f'global_store_dwordx4 v18, v[12:15], s[{sWS}:{sWS+1}] sc1')
    for k in range(7): e(f'global_store_dwordx4 v11, v[12:15], s[{sWS}:{sWS+1}] offset:{k*1024-4096} sc1')
    exec_set(0xFFFFFFFF)
    e(f'global_store_dwordx4 v16, v[12:15], s[{sWS}:{sWS+1}] sc1')
    exec_set((1 << 64) - 1)
    e(f's_mov_b64 s[40:41], 0xff\ns_cmp_ge_u32 s{sR0}, 16')
    br('s_cbranch_scc1', 'L_c2')
    e(f'global_store_dwordx4 v19, v[12:15], s[{sWS}:{sWS+1}] sc1\ns_mov_b64 s[40:41], 0xfff')
    label('L_c2')
    e('s_waitcnt lgkmcnt(0)')
    make_tag()
    e(f'v_mov_b32 v21, s{sTAG}\ns_waitcnt vmcnt(0)\ns_barrier\ns_mov_b64 exec, s[40:41]')
    e(f'global_store_dword v20, v21, s[{sWS}:{sWS+1}] sc1')
    exec_set((1 << 64) - 1)
    ts(2)
    br('s_branch', 'L_second_A')
    label('L_Aidle')
    e('s_waitcnt lgkmcnt(0)')
    load_epoch()
    e('s_barrier\ns_waitcnt lgkmcnt(0)')
    make_tag()
    label('L_second_A')
    e('s_cmp_lg_u32 s0, -1')
    br('s_cbranch_scc1', 'L_A2')
    e(f's_cmp_lg_u32 s{sWAVE}, 0')
    br('s_cbranch_scc1', 'L_fin')
    e('s_cmp_eq_u32 s1, -1')
    br('s_cbranch_scc1', 'L_fin')
    label('L_A2')
    e(f's_lshl_b32 s36, s{sR0}, 7\ns_add_u32 s36, s36, {BD}\nv_mov_b32 v10, s36')
    vpoll_word(10, 'tag')
    br('s_branch', 'L_second')

RED = 0; STT = 5120
VALID = 0xFF00FF0000FF00FF
def red_write(acc, vaddr):
    exec_set(VALID)
    e(f'ds_write_b128 v{vaddr}, v[{acc}:{acc+3}]')
    exec_set((1 << 64) - 1)
def red_waddr(dst, tmp, pstr, base):
    e(f'''v_lshrrev_b32 v{tmp}, 1, v{vLG}
    s_lshl_b32 s32, s{sWAVE}, 1
    v_add_u32 v{tmp}, s32, v{tmp}
    v_mul_u32_u24 v{dst}, {pstr}, v{tmp}
    v_and_b32 v{tmp}, 7, v{vN}
    v_lshl_add_u32 v{dst}, v{tmp}, 5, v{dst}
    v_and_b32 v{tmp}, 1, v{vLG}
    v_lshl_add_u32 v{dst}, v{tmp}, 4, v{dst}''')
    if base: e(f'v_add_u32 v{dst}, {base}, v{dst}')
def quad_raddr(dst, tmp, base):
    e(f'''v_and_b32 v{tmp}, 3, v{vLANE}
    v_mul_u32_u24 v{dst}, 320, v{tmp}
    v_lshrrev_b32 v{tmp}, 2, v{vLANE}
    v_lshl_add_u32 v{dst}, v{tmp}, 4, v{dst}''')
    if base: e(f'v_add_u32 v{dst}, {base}, v{dst}')
def quad_reduce(raddr, d, nread):
    for i in range(nread): e(f'ds_read_b128 v[{d+4*i}:{d+4*i+3}], v{raddr} offset:{i*1280}')
    e('s_waitcnt lgkmcnt(0)')
    pk_tree(d, nread)
    for p in ('quad_perm:[1,0,3,2]', 'quad_perm:[2,3,0,1]'):
        for r in range(4): dpp_add(d + r, d + r, p)
def pk_tree(d, n):
    s = 1
    while s < n:
        for i in range(0, n - s, 2 * s):
            for h in (0, 2):
                a = d + 4 * i + h; b = d + 4 * (i + s) + h
                e(f'v_pk_add_f32 v[{a}:{a+1}], v[{a}:{a+1}], v[{b}:{b+1}]')
        s *= 2

def role_B(pend):
    global ts_pend
    L.append('L_B:'); ts_pend = list(pend)
    e(f'''v_lshlrev_b32 v10, 4, v{vLANE}
    v_min_u32 v10, 880, v10
    v_min_u32 v11, 13, v{vN}
    s_mul_i32 s34, s{sWAVE}, 56
    v_lshl_add_u32 v11, v11, 2, s34
    v_add_lshl_u32 v12, v11, v{vLG}, 1
    v_lshrrev_b32 v13, 3, v{vN}
    v_lshl_add_u32 v13, v13, 2, v{vLG}
    v_lshlrev_b32 v13, 13, v13
    v_and_b32 v14, 7, v{vN}
    v_lshl_add_u32 v13, v14, 4, v13
    s_lshl_b32 s35, s34, 13
    s_lshl_b32 s36, s{sR0}, 7
    s_add_u32 s35, s35, s36
    s_waitcnt lgkmcnt(0)''')
    ts(1)
    load_epoch()
    e(f'''global_load_dwordx4 v[16:19], v10, s[{sX}:{sX+1}]
    global_load_ushort v20, v12, s[{sX}:{sX+1}]
    s_add_u32 s40, s{sWQ}, s35
    s_addc_u32 s41, s{sWQ+1}, 0''')
    for t in range(7):
        e(f'global_load_dwordx4 v[{64+4*t}:{67+4*t}], v13, s[40:41] {cfg.nt}')
        if t < 6: sadd64(40, 40, 65536)
    gemv_consts()
    e(f'''v_mul_u32_u24 v15, 3584, v{vLG}
    v_lshl_add_u32 v15, v11, 2, v15''')
    red_waddr(21, 22, 320, RED)
    quad_raddr(23, 22, RED)
    e(f'''v_cmp_gt_u32 vcc, 56, v{vLANE}
    v_cndmask_b32 v31, 0, 1.0, vcc
    s_waitcnt vmcnt(7)''')
    for i in range(4):
        e(f'v_lshlrev_b32 v{32+2*i}, 16, v{16+i}\nv_and_b32 v{33+2*i}, 0xffff0000, v{16+i}')
    e('''v_pk_add_f32 v[40:41], v[32:33], v[34:35]
    v_pk_add_f32 v[42:43], v[36:37], v[38:39]
    v_pk_add_f32 v[40:41], v[40:41], v[42:43]
    v_add_f32 v40, v40, v41
    v_mul_f32 v40, v40, v31''')
    wavesum(40, 41)
    e(f'v_mul_f32 v40, {fl(1/448)}, v40')
    for i in range(8): e(f'v_sub_f32 v{32+i}, v{32+i}, v40')
    e('v_mul_f32 v42, v32, v32')
    for i in range(1, 8): e(f'v_fmac_f32 v42, v{32+i}, v{32+i}')
    e('v_mul_f32 v42, v42, v31')
    wavesum(42, 41)
    e(f'v_mul_f32 v42, {fl(1/448)}, v42')
    rnd(40, 40); rnd(42, 42)
    e(f'v_add_f32 v42, {fl(1e-5)}, v42'); rnd(42, 42)
    e('v_sqrt_f32 v42, v42'); rnd(42, 42)
    e('v_rcp_f32 v42, v42\nv_lshlrev_b32 v20, 16, v20\nv_sub_f32 v20, v20, v40'); rnd(20, 20)
    e('v_mul_f32 v20, v20, v42'); rnd(20, 20)
    ts(2)
    e('s_waitcnt lgkmcnt(0)')
    make_tag(); tag_bytes(46)
    e(f'''s_lshr_b32 s36, s{sR0}, 3
    s_lshl_b32 s36, s36, 14
    s_and_b32 s37, s{sR0}, 7
    s_lshl_b32 s37, s37, 7
    s_add_u32 s36, s36, s37
    s_add_u32 s36, s36, {M2}
    v_and_b32 v50, 7, v{vLANE}
    v_lshlrev_b32 v50, 10, v50
    v_lshrrev_b32 v51, 3, v{vLANE}
    v_lshl_add_u32 v50, v51, 4, v50
    v_add_u32 v50, s36, v50
    v_add_u32 v51, 8192, v50
    s_lshl_b32 s36, s{sR0}, 7
    s_add_u32 s36, s36, {BD}
    v_mov_b32 v52, s36
    v_mov_b32 v53, s{sTAG}''')
    top = lab('bg'); out = lab('bgo')
    label(top)
    e(f'''global_load_dwordx4 v[32:35], v15, s[{sWS}:{sWS+1}] sc1
    global_load_dwordx4 v[36:39], v15, s[{sWS}:{sWS+1}] offset:1792 sc1
    s_waitcnt vmcnt(0)''')
    for i in range(8): e(f'v_xor_b32 v{32+i}, s{46+i%4}, v{32+i}')
    e('''v_or3_b32 v40, v32, v33, v34
    v_or3_b32 v41, v35, v36, v37
    v_or3_b32 v40, v40, v38, v39
    v_or_b32 v40, v40, v41
    v_and_b32 v40, 0xff, v40
    v_cmp_ne_u32 vcc, 0, v40''')
    br('s_cbranch_vccz', out)
    retry(top)
    label(out)
    red4rows_multi([32, 36])
    ts(4)
    rnd(36, 36); rnd(32, 32)
    e('v_add_f32 v36, 1.0, v36'); rnd(36, 36)
    e('v_mul_f32 v36, v20, v36'); rnd(36, 36)
    e('v_add_f32 v36, v36, v32\nv_cvt_pk_bf16_f32 v36, v36, v36')
    gemv([(36, 2 * t, 64 + 4 * t, None) for t in range(7)], acc=24, val=44, A=28)
    red_write(24, 21)
    e('s_waitcnt lgkmcnt(0)\ns_barrier')
    e(f's_cmp_lg_u32 s{sWAVE}, 0')
    br('s_cbranch_scc1', 'L_Bdone')
    quad_reduce(23, 32, 4)
    e('''v_cvt_pk_bf16_f32 v32, v32, v33
    v_cvt_pk_bf16_f32 v33, v34, v35
    v_mov_b32 v34, v32
    v_mov_b32 v35, v33
    v_mov_b32_dpp v34, v32 row_shl:4 row_mask:0xf bank_mask:0x5
    v_mov_b32_dpp v35, v33 row_shl:4 row_mask:0xf bank_mask:0x5
    v_mov_b32_dpp v32, v32 row_shr:4 row_mask:0xf bank_mask:0xa
    v_mov_b32_dpp v33, v33 row_shr:4 row_mask:0xf bank_mask:0xa''')
    e(f'global_store_dwordx4 v50, v[32:35], s[{sWS}:{sWS+1}] sc1')
    e(f'global_store_dwordx4 v51, v[32:35], s[{sWS}:{sWS+1}] sc1')
    exec_set(1)
    e(f'global_store_dword v52, v53, s[{sWS}:{sWS+1}] sc1')
    exec_set((1 << 64) - 1)
    ts(5)
    label('L_Bdone')
    e('s_cmp_lg_u32 s0, -1')
    br('s_cbranch_scc1', 'L_second')
    e(f's_cmp_lg_u32 s{sWAVE}, 0')
    br('s_cbranch_scc1', 'L_fin')
    e('s_cmp_eq_u32 s1, -1')
    br('s_cbranch_scc1', 'L_fin')
    label('L_second')
    e('s_cmp_eq_u32 s0, -1')
    br('s_cbranch_scc1', 'L_G')

def role_EF():
    gemv_consts()
    e(f'''v_min_u32 v11, 13, v{vN}
    s_mul_i32 s34, s{sWAVE}, 56
    v_lshl_add_u32 v11, v11, 2, s34
    v_add_lshl_u32 v12, v11, v{vLG}, 1
    global_load_ushort v20, v12, s[{sX}:{sX+1}]
    v_mul_u32_u24 v15, 7168, v{vLG}
    v_lshl_add_u32 v15, v11, 2, v15
    v_add_u32 v15, {M6}, v15
    v_mul_u32_u24 v14, 1792, v{vLG}
    v_lshl_add_u32 v14, v11, 2, v14
    v_cmp_gt_u32 vcc, 14, v{vN}
    v_cndmask_b32 v31, 0, 1.0, vcc''')
    for t in range(4): sadd64(44 + 2 * t, sWS, M4 + t * 7168)
    e(f'''v_lshrrev_b32 v13, 3, v{vN}
    v_lshl_add_u32 v13, v13, 2, v{vLG}
    v_add_u32 v18, s34, v13
    v_mul_u32_u24 v18, 3584, v18
    v_and_b32 v19, 3, v{vN}
    v_lshl_add_u32 v18, v19, 4, v18
    s_lshl_b32 s35, s0, 6
    v_add_u32 v18, s35, v18
    v_and_b32 v19, 4, v{vN}
    v_cmp_eq_u32 vcc, 0, v19
    v_mov_b32 v16, s{sUP}
    v_mov_b32 v17, s{sGT}
    v_cndmask_b32 v16, v16, v17, vcc
    v_mov_b32 v17, s{sUP+1}
    v_mov_b32 v19, s{sGT+1}
    v_cndmask_b32 v17, v17, v19, vcc
    v_add_co_u32 v16, vcc, v16, v18
    v_addc_co_u32 v17, vcc, 0, v17, vcc
    s_mov_b32 s52, 28672
    s_mov_b32 s53, 0''')
    e(f'''v_mul_u32_u24 v13, 896, v13
    v_and_b32 v19, 7, v{vN}
    v_lshl_add_u32 v13, v19, 4, v13
    s_mul_i32 s35, s0, {32*896}
    s_lshl_b32 s36, s{sWAVE}, 7
    s_add_u32 s35, s35, s36
    s_add_u32 s54, s{sDN}, s35
    s_addc_u32 s55, s{sDN+1}, 0''')
    red_waddr(21, 22, 256, RED)
    e(f'''v_lshlrev_b32 v23, 4, v{vLANE}
    v_lshrrev_b32 v22, 5, v{vLANE}
    v_lshlrev_b32 v22, 2, v22
    s_lshl_b32 s36, s{sWAVE}, 4
    s_add_u32 s36, s36, {STT}
    v_add_u32 v22, s36, v22
    v_and_b32 v19, 7, v{vLANE}
    v_lshlrev_b32 v19, 4, v19
    v_add_u32 v19, {STT}, v19
    v_lshrrev_b32 v10, 1, v{vN}
    s_lshl_b32 s36, s{sWAVE}, 2
    v_add_u32 v10, s36, v10
    v_mul_u32_u24 v10, 3584, v10
    v_and_b32 v18, 1, v{vN}
    v_lshl_add_u32 v10, v18, 5, v10
    v_lshl_add_u32 v10, v{vLG}, 4, v10
    s_lshl_b32 s36, s0, 6
    s_add_u32 s36, s36, {M5}
    v_add_u32 v10, s36, v10''')
    ts(6)
    top = lab('m6'); out = lab('m6o')
    label(top)
    e(f'''global_load_dwordx4 v[32:35], v15, s[{sWS}:{sWS+1}] sc1
    global_load_dwordx4 v[36:39], v15, s[{sWS}:{sWS+1}] offset:1792 sc1
    global_load_dwordx4 v[40:43], v15, s[{sWS}:{sWS+1}] offset:3584 sc1
    s_waitcnt vmcnt(0)''')
    red4rows_multi([32, 36, 40])
    e('v_add_f32 v33, v32, v36\nv_cmp_u_f32 vcc, v33, v40')
    br('s_cbranch_vccz', out)
    e('s_sleep 4')
    retry(top)
    label(out)
    rnd(56, 32); rnd(57, 36); rnd(58, 40)
    e('v_add_f32 v58, 1.0, v58'); rnd(58, 58)
    e('v_lshlrev_b32 v20, 16, v20')
    ts(7)
    def gu(t):
        ld(f'global_load_dwordx4 v[{64+4*t}:{67+4*t}], v[16:17], off {cfg.ntgu}', 'e')
        if t < 6: e('v_lshl_add_u64 v[16:17], v[16:17], 0, s[52:53]')
    ne = 7 if cfg.ef_trig == 'q' else cfg.ef_early
    for t in range(ne): gu(t)
    if cfg.ef_trig == 'st':
        e(f's_lshl_b32 s36, s0, 5\ns_add_u32 s36, s36, {ST}\nv_mov_b32 v33, s36')
        vpoll_word(33, 'ne_m1')
    ts(8)
    for t in range(ne, 7): gu(t)
    e(f's_cmp_eq_u32 s{sWAVE}, 7')
    br('s_cbranch_scc1', 'L_nodn')
    for t in range(4):
        ld(f'global_load_dwordx4 v[{96+4*t}:{99+4*t}], v13, s[54:55] {cfg.nt}', 'e')
        if t < 3: sadd64(54, 54, 7168)
    label('L_nodn')
    if cfg.e_hint == 'm4':
        e(f's_and_b32 s36, s0, 15\ns_mul_i32 s36, s36, 1792\ns_lshl_b32 s37, s34, 2\ns_add_u32 s36, s36, s37\ns_add_u32 s36, s36, {M4}')
        poll_word(sWS, off_s=36)
    elif cfg.e_hint == 'm3':
        e(f's_lshl_b32 s36, s0, 12\ns_add_u32 s36, s36, {M3}')
        poll_word(sWS, off_s=36)
    ts(9)
    top = lab('m4'); out = lab('m4o')
    label(top)
    for t in range(4): e(f'global_load_dwordx4 v[{32+4*t}:{35+4*t}], v14, s[{44+2*t}:{45+2*t}] sc1')
    e('s_waitcnt vmcnt(0)')
    pk_tree(32, 4)
    red4rows(32)
    e('v_cmp_u_f32 vcc, v32, v32')
    br('s_cbranch_vccz', out)
    retry(top)
    label(out)
    ts(10)
    rnd(32, 32)
    e('v_mul_f32 v32, v56, v32'); rnd(32, 32)
    e('v_add_f32 v32, v20, v32'); rnd(32, 32)
    e('''v_readfirstlane_b32 s36, v32
    v_subrev_f32 v33, s36, v32
    v_mul_f32 v33, v33, v31
    v_mul_f32 v34, v33, v33
    v_mov_b32 v36, s36
    v_permlane32_swap_b32 v33, v34
    v_add_f32 v33, v33, v34
    v_mov_b32 v34, v33
    v_permlane16_swap_b32 v33, v34
    v_add_f32 v33, v33, v34''')
    rowsum(33)
    exec_set(0x0000000100000001)
    e('ds_write_b32 v22, v33\nds_write_b32 v22, v36 offset:8')
    exec_set((1 << 64) - 1)
    e('s_waitcnt lgkmcnt(0)\ns_barrier\nds_read_b96 v[36:38], v19\ns_waitcnt lgkmcnt(0)')
    e(f'''v_mul_f32 v39, {fl(1/56)}, v36
    v_add_f32 v38, v38, v39
    v_fma_f32 v37, -v36, v39, v37
    v_mov_b32 v40, v38''')
    for p in ('quad_perm:[1,0,3,2]', 'quad_perm:[2,3,0,1]', 'row_half_mirror'): dpp_add(40, 40, p)
    e(f'''v_mul_f32 v40, 0.125, v40
    v_sub_f32 v38, v38, v40
    v_mul_f32 v39, {fl(56.0)}, v38
    v_fmac_f32 v37, v39, v38''')
    for p in ('quad_perm:[1,0,3,2]', 'quad_perm:[2,3,0,1]', 'row_half_mirror'): dpp_add(37, 37, p)
    rnd(40, 40)
    e(f'v_mul_f32 v37, {fl(1/448)}, v37\nv_max_f32 v37, 0, v37'); rnd(37, 37)
    e(f'v_add_f32 v37, {fl(1e-5)}, v37'); rnd(37, 37)
    e('v_sqrt_f32 v37, v37\nv_sub_f32 v32, v32, v40'); rnd(37, 37); rnd(32, 32)
    e('v_rcp_f32 v37, v37\nv_mul_f32 v32, v32, v37'); rnd(32, 32)
    e('v_mul_f32 v32, v32, v58'); rnd(32, 32)
    e('v_add_f32 v32, v32, v57\nv_cvt_pk_bf16_f32 v32, v32, v32')
    gemv([(32, 2 * t, 64 + 4 * t, None) for t in range(7)], acc=24, val=44, A=28)
    red_write(24, 21)
    e('s_waitcnt lgkmcnt(0)\ns_barrier')
    ts(11)
    e(f's_cmp_eq_u32 s{sWAVE}, 7')
    br('s_cbranch_scc1', 'L_fin')
    for i in range(4): e(f'ds_read_b128 v[{32+4*i}:{35+4*i}], v23 offset:{RED+i*1024}')
    e('s_waitcnt lgkmcnt(0)')
    pk_tree(32, 4)
    red4rows(32)
    rnd(32, 32)
    kk = -2 * math.sqrt(2 / math.pi) * LOG2E
    e(f'''v_mul_f32 v33, v32, v32
    v_mov_b32_dpp v35, v32 row_ror:8 row_mask:0xf bank_mask:0xf
    v_mul_f32 v33, {fl(0.044715*kk)}, v33
    v_add_f32 v33, {fl(kk)}, v33
    v_mul_f32 v33, v33, v32
    v_exp_f32 v33, v33
    v_add_f32 v33, 1.0, v33
    v_rcp_f32 v33, v33
    v_mul_f32 v32, v32, v33''')
    rnd(32, 32)
    e('v_mul_f32 v32, v32, v35\nv_cvt_pk_bf16_f32 v32, v32, v32')
    gemv([(32, 2 * t, 96 + 4 * t, None) for t in range(4)], acc=24, val=44, A=28)
    fold(24, 36)
    exec_set(0x00FF00FF)
    e(f'global_store_dwordx4 v10, v[24:27], s[{sWS}:{sWS+1}] sc1')
    exec_set((1 << 64) - 1)
    label('L_fin')
    wave_end()

def red16(c):
    red4rows(c)
    dpp_add(c, c, 'row_ror:8'); dpp_add(c, c, 'row_ror:4')
def role_G():
    label('L_G')
    e(f'''v_and_b32 v10, 3, v{vLANE}
    v_lshrrev_b32 v11, 2, v{vLANE}
    s_lshl_b32 s34, s1, 4
    v_lshl_add_u32 v12, v10, 2, s34
    v_add_lshl_u32 v13, v12, v{vLG}, 1
    global_load_ushort v20, v13, s[{sX}:{sX+1}]
    v_and_b32 v14, 3, v11
    v_mul_u32_u24 v14, 7168, v14
    v_lshl_add_u32 v14, v12, 2, v14
    v_add_u32 v14, {M6}, v14
    v_add_u32 v15, 5376, v14
    v_mul_u32_u24 v16, 1792, v11
    v_lshl_add_u32 v16, v12, 2, v16
    v_add_u32 v16, {M4}, v16
    s_mul_i32 s35, s1, 3584
    s_add_u32 s35, s35, {M5}
    v_lshlrev_b32 v17, 4, v{vLANE}
    v_add_u32 v17, s35, v17''')
    top = lab('g6'); out = lab('g6o')
    label(top)
    e(f'''global_load_dwordx4 v[32:35], v14, s[{sWS}:{sWS+1}] sc1
    global_load_dwordx4 v[36:39], v15, s[{sWS}:{sWS+1}] sc1
    s_waitcnt vmcnt(0)''')
    for c in (32, 36):
        for r in range(4): dpp_add(c + r, c + r, 'row_ror:8')
        for r in range(4): dpp_add(c + r, c + r, 'row_ror:4')
    e(f'v_cmp_eq_u32 vcc, 1, v{vLG}\nv_cndmask_b32 v32, v32, v33, vcc\nv_cndmask_b32 v36, v36, v37, vcc')
    e(f'v_cmp_eq_u32 vcc, 2, v{vLG}\nv_cndmask_b32 v32, v32, v34, vcc\nv_cndmask_b32 v36, v36, v38, vcc')
    e(f'v_cmp_eq_u32 vcc, 3, v{vLG}\nv_cndmask_b32 v32, v32, v35, vcc\nv_cndmask_b32 v36, v36, v39, vcc')
    e('v_cmp_u_f32 vcc, v32, v36')
    br('s_cbranch_vccz', out)
    e('s_sleep 4')
    retry(top)
    label(out)
    rnd(56, 32); rnd(57, 36)
    e('v_lshlrev_b32 v20, 16, v20')
    ts(7)
    top = lab('g4'); out = lab('g4o')
    label(top)
    e(f'global_load_dwordx4 v[32:35], v16, s[{sWS}:{sWS+1}] sc1\ns_waitcnt vmcnt(0)')
    red16(32)
    e('v_cmp_u_f32 vcc, v32, v32')
    br('s_cbranch_vccz', out)
    retry(top)
    label(out)
    rnd(32, 32)
    e('v_mul_f32 v32, v56, v32'); rnd(32, 32)
    e('v_add_f32 v20, v20, v32'); rnd(20, 20)
    for r in range(4): e(f'v_mov_b32 v{44+r}, 0')
    e(f'v_mov_b32 v58, {EPO}\nv_mov_b32 v59, s{sTAG}')
    ts(10)
    top = lab('g5'); out = lab('g5o')
    label(top)
    for t in range(3): e(f'global_load_dwordx4 v[{32+4*t}:{35+4*t}], v17, s[{sWS}:{sWS+1}] offset:{t*1024} sc1')
    exec_set(0xFFFFFFFF)
    e(f'global_load_dwordx4 v[44:47], v17, s[{sWS}:{sWS+1}] offset:3072 sc1')
    exec_set((1 << 64) - 1)
    e('s_waitcnt vmcnt(0)')
    pk_tree(32, 4)
    red16(32)
    e('v_cmp_u_f32 vcc, v32, v32')
    br('s_cbranch_vccz', out)
    retry(top)
    label(out)
    rnd(32, 32)
    e('v_mul_f32 v32, v57, v32'); rnd(32, 32)
    e('v_add_f32 v32, v20, v32\nv_cvt_pk_bf16_f32 v32, v32, v32')
    exec_set(0x000F000F000F000F)
    e(f'global_store_short v13, v32, s[{sOUT}:{sOUT+1}] {cfg.outpol}')
    e('s_cmp_lg_u32 s1, 0')
    br('s_cbranch_scc1', 'L_Gne')
    exec_set(1)
    e(f'global_store_dword v58, v59, s[{sWS}:{sWS+1}] sc1')
    label('L_Gne')
    exec_set((1 << 64) - 1)
    wave_end()

QT = 0; ZR = 1280; MX = 1792; PT = 2048; PS = 144; XRED = 4608
def role_X(pend):
    global ts_pend
    L.append('L_X:'); ts_pend = list(pend)
    e(f'''s_lshr_b32 s34, s{sR0}, 4
    s_and_b32 s35, s{sR0}, 15
    s_lshl_b32 s36, s34, 22
    s_lshl_b32 s37, s35, 16
    s_add_u32 s36, s36, s37
    s_add_u32 s36, s36, {6144*512}
    s_cmp_ge_u32 s{sWAVE}, 4''')
    br('s_cbranch_scc1', 'L_XV')
    e(f'''v_and_b32 v10, 7, v{vN}
    v_lshlrev_b32 v10, 9, v10
    v_lshrrev_b32 v11, 3, v{vN}
    v_lshl_add_u32 v10, v11, 6, v10
    v_lshl_add_u32 v10, v{vLG}, 4, v10
    s_lshl_b32 s37, s{sWAVE}, 14
    s_add_u32 s36, s36, s37
    s_add_u32 s36, s36, 4096
    s_waitcnt lgkmcnt(0)''')
    ts(1)
    load_epoch()
    e(f's_add_u32 s40, s{sK}, s36\ns_addc_u32 s41, s{sK+1}, 0')
    for T in range(4):
        if T == 2: sadd64(40, 40, 8192)
        for sg in range(4):
            r = 64 + 16 * T + 4 * sg
            if cfg.kwin and 4 * T + sg == cfg.kwin: e(f's_waitcnt vmcnt({cfg.kw2})')
            ld(f'global_load_dwordx4 v[{r}:{r+3}], v10, s[40:41] offset:{(T%2)*4096 - 4096 + sg*128} {cfg.nt}', 'k')
    if cfg.vgate: e('s_barrier')
    ts(2)
    e(f'''s_mov_b32 s4, s34
    s_mov_b32 s5, s35
    s_mul_i32 s8, s{sR0}, 9363
    s_lshr_b32 s8, s8, 16
    s_mul_i32 s9, s8, 7
    s_sub_u32 s9, s{sR0}, s9''')
    gemv_consts()
    e(f's_cmp_lg_u32 s{sWAVE}, 0')
    br('s_cbranch_scc1', 'L_Xni')
    e(f'''v_mov_b32 v12, 0
    v_mov_b32 v13, 0
    v_lshlrev_b32 v11, 3, v{vLANE}
    ds_write_b64 v11, v[12:13] offset:{ZR}
    v_mov_b32 v12, 0xff800000
    v_mov_b32 v13, 0xff800000
    v_mov_b32 v11, 0
    ds_write_b64 v11, v[12:13] offset:{MX}''')
    label('L_Xni')
    e(f'''v_lshrrev_b32 v11, 3, v{vN}
    v_mul_u32_u24 v17, 640, v11
    v_lshlrev_b32 v18, 2, v11
    v_add_u32 v18, {MX}, v18
    v_and_b32 v19, 1, v{vN}
    v_lshl_add_u32 v17, v19, 6, v17
    v_lshl_add_u32 v17, v{vLG}, 4, v17
    v_bfe_u32 v20, v{vN}, 1, 2
    v_mov_b32 v21, {ZR}''')
    for T in range(4): e(f'v_cmp_eq_u32 vcc, {T}, v20\nv_cndmask_b32 v{12+T}, v21, v17, vcc')
    e(f'''s_lshr_b32 s36, s{sWAVE}, 1
    s_mul_i32 s36, s36, 640
    s_and_b32 s37, s{sWAVE}, 1
    s_lshl_b32 s37, s37, 8
    s_add_u32 s36, s36, s37
    v_lshlrev_b32 v16, 2, v{vLANE}
    v_add_u32 v16, s36, v16''')
    e(f'''v_lshlrev_b32 v17, 3, v11
    v_lshl_add_u32 v17, v19, 1, v17
    v_lshrrev_b32 v21, 1, v{vLG}
    v_add_u32 v17, v17, v21
    v_mul_u32_u24 v17, {PS}, v17
    v_lshl_add_u32 v17, v20, 3, v17
    v_and_b32 v21, 1, v{vLG}
    v_lshl_add_u32 v17, v21, 2, v17
    s_lshl_b32 s36, s{sWAVE}, 5
    s_add_u32 s36, s36, {PT}
    v_add_u32 v17, s36, v17''')
    e(f'''v_lshl_add_u32 v19, v11, 2, v{vLG}
    v_mul_u32_u24 v19, 896, v19
    v_and_b32 v21, 7, v{vN}
    v_lshl_add_u32 v19, v21, 4, v19
    s_lshl_b32 s36, s8, 2
    s_add_u32 s36, s36, s{sWAVE}
    s_mul_i32 s36, s36, {64*896}
    s_lshl_b32 s37, s9, 7
    s_add_u32 s36, s36, s37
    s_add_u32 s10, s{sWO}, s36
    s_addc_u32 s11, s{sWO+1}, 0
    s_lshl_b32 s36, s{sR0}, 2
    s_add_u32 s36, s36, s{sWAVE}
    s_lshl_b32 s37, s36, 7
    s_lshl_b32 s36, s36, 8
    s_add_u32 s36, s36, {M2}
    s_add_u32 s16, s{sWS}, s36
    s_addc_u32 s17, s{sWS+1}, 0
    s_add_u32 s37, s37, {HD}
    s_add_u32 s22, s{sWS}, s37
    s_addc_u32 s23, s{sWS+1}, 0
    s_mov_b32 s18, 0xaaaaaaaa
    s_mov_b32 s19, 0xaaaaaaaa''')
    e('s_waitcnt lgkmcnt(0)')
    make_tag()
    poll_tag(22)
    ts(3)
    top = lab('qg'); rt = lab('qr'); out = lab('qo')
    label(top)
    for i in range(4): e(f's_load_dwordx16 s[{32+16*i}:{47+16*i}], s[16:17], {64*i} glc')
    e('''s_waitcnt lgkmcnt(0)
    s_max_u32 s20, s35, s63
    s_max_u32 s21, s67, s95
    s_max_u32 s20, s20, s21
    s_cmp_eq_u32 s20, -1''')
    br('s_cbranch_scc1', rt)
    for i in range(64): e(f'v_writelane_b32 v22, s{32+i}, {i}')
    e('v_cmp_eq_u32 vcc, -1, v22')
    br('s_cbranch_vccz', out)
    label(rt)
    retry(top)
    label(out)
    ts(4)
    def wo_loads():
        e(f's_cmp_ge_u32 s{sR0}, 112')
        skip = lab('nowo')
        br('s_cbranch_scc1', skip)
        for t in range(8):
            ld(f'global_load_dwordx4 v[{192+4*t}:{195+4*t}], v19, s[10:11] {cfg.nt}', 'o')
            if t < 7: sadd64(10, 10, 7168)
        label(skip)
    e('ds_write_b32 v16, v22\ns_waitcnt lgkmcnt(0)\ns_barrier')
    for T in range(4):
        for sg in range(4):
            r = 128 + 16 * T + 4 * sg
            e(f'ds_read_b128 v[{r}:{r+3}], v{12+T} offset:{sg*128}')
    e('s_waitcnt vmcnt(0)')
    if cfg.wo_pos == 0: wo_loads()
    for i in range(16):
        e(f's_waitcnt lgkmcnt({min(15-i, 15)})' if i < 15 else 's_waitcnt lgkmcnt(0)')
        e(f'v_mfma_f32_16x16x32_bf16 v[24:27], v[{64+4*i}:{67+4*i}], v[{128+4*i}:{131+4*i}], ' + ('0' if i == 0 else 'v[24:27]'))
    e('''v_permlane32_swap_b32 v24, v25
    v_permlane32_swap_b32 v26, v27
    v_cndmask_b32 v28, v24, v27, s[18:19]
    v_cndmask_b32 v29, v26, v25, s[18:19]
    v_add_f32_dpp v28, v29, v28 quad_perm:[1,0,3,2] row_mask:0xf bank_mask:0xf''')
    rnd(28, 28)
    e('ds_max_f32 v18, v28\ns_waitcnt lgkmcnt(0)\ns_barrier\nds_read_b32 v29, v18\ns_waitcnt lgkmcnt(0)')
    e(f'''v_sub_f32 v28, v28, v29
    v_mul_f32 v28, {fl(0.0625*LOG2E)}, v28
    v_exp_f32 v28, v28
    v_cvt_pk_bf16_f32 v28, v28, v28
    v_and_b32 v29, 0xffff, v28
    v_and_b32 v28, 0xffff0000, v28
    ds_write2_b32 v17, v29, v28 offset0:0 offset1:{PS}
    s_waitcnt lgkmcnt(0)
    s_barrier''')
    ts(5)
    if cfg.wo_pos == 1: wo_loads()
    e(f's_cmp_lg_u32 s{sWAVE}, 0')
    br('s_cbranch_scc1', 'L_Xns')
    e(f'''v_lshrrev_b32 v30, 5, v{vLANE}
    v_lshlrev_b32 v31, 2, v30
    ds_read_b32 v32, v31 offset:{MX}
    v_bfe_u32 v31, v{vLANE}, 3, 2
    v_lshl_add_u32 v31, v30, 3, v31
    v_mul_u32_u24 v31, {PS}, v31
    v_and_b32 v33, 7, v{vLANE}
    v_lshl_add_u32 v31, v33, 4, v31
    ds_read_b128 v[36:39], v31 offset:{PT+4*PS}
    s_lshl_b32 s36, s4, 8
    s_lshl_b32 s37, s5, 3
    s_add_u32 s36, s36, s37
    s_add_u32 s36, s36, {ST}
    v_lshlrev_b32 v30, 7, v30
    v_add_u32 v30, s36, v30
    s_waitcnt lgkmcnt(0)
    v_pk_add_f32 v[36:37], v[36:37], v[38:39]
    v_add_f32 v33, v36, v37''')
    rowsum(33)
    e('v_mov_b32 v34, v33\nv_permlane16_swap_b32 v33, v34\nv_add_f32 v33, v33, v34')
    exec_set(0x0000000100000001)
    e(f'global_store_dwordx2 v30, v[32:33], s[{sWS}:{sWS+1}] sc1')
    exec_set((1 << 64) - 1)
    label('L_Xns')
    e(f's_cmp_ge_u32 s{sR0}, 112')
    br('s_cbranch_scc1', 'L_Xfin')
    e(f'''v_lshl_add_u32 v30, v{vLG}, 2, v{vN}
    v_and_b32 v30, 15, v30
    v_lshlrev_b32 v30, 3, v30
    s_lshl_b32 s36, s8, 7
    s_add_u32 s36, s36, {ST}
    v_add_u32 v30, s36, v30
    v_lshlrev_b32 v31, 12, v{vLG}
    v_lshl_add_u32 v31, v{vN}, 4, v31
    s_lshl_b32 s36, s8, 14
    s_lshl_b32 s37, s{sWAVE}, 8
    s_add_u32 s36, s36, s37
    s_add_u32 s36, s36, {M3}
    v_add_u32 v31, s36, v31''')
    red_waddr(21, 22, 320, XRED)
    quad_raddr(23, 22, XRED)
    e(f'''s_mul_i32 s36, s8, 1792
    s_lshl_b32 s37, s9, 8
    s_add_u32 s36, s36, s37
    s_add_u32 s36, s36, {M4}
    v_lshlrev_b32 v20, 2, v{vLANE}
    v_add_u32 v20, s36, v20''')
    top = lab('sg'); out = lab('sgo')
    label(top)
    e(f'global_load_dwordx2 v[32:33], v30, s[{sWS}:{sWS+1}] sc1\ns_waitcnt vmcnt(0)\nv_cmp_u_f32 vcc, v32, v33')
    br('s_cbranch_vccz', out)
    retry(top)
    label(out)
    e('v_mov_b32 v34, v32')
    rowsum(34, 'max')
    e(f'''v_sub_f32 v32, v32, v34
    v_mul_f32 v32, {fl(0.0625*LOG2E)}, v32
    v_exp_f32 v32, v32
    v_mul_f32 v33, v33, v32''')
    rowsum(33)
    e('v_rcp_f32 v33, v33\nv_mul_f32 v32, v32, v33')
    for t in range(4): e(f'v_mov_b32_dpp v{36+t}, v32 row_newbcast:{t} row_mask:0xf bank_mask:0xf')
    ts(6)
    e('s_barrier')
    ts(7)
    if cfg.o_sleep: e(f's_sleep {cfg.o_sleep}')
    top = lab('og'); out = lab('ogo')
    label(top)
    for t in range(4): e(f'global_load_dwordx4 v[{128+4*t}:{131+4*t}], v31, s[{sWS}:{sWS+1}] offset:{t*1024} sc1')
    e('s_waitcnt vmcnt(0)')
    for t in range(4):
        b = 36 + (t & ~1)
        for h in (0, 2):
            if t == 0:
                e(f'v_pk_mul_f32 v[{40+h}:{41+h}], v[{128+h}:{129+h}], v[{b}:{b+1}] op_sel_hi:[1,0]')
            else:
                sel = 'op_sel_hi:[1,0,1]' if t % 2 == 0 else 'op_sel:[0,1,0] op_sel_hi:[1,1,1]'
                e(f'v_pk_fma_f32 v[{40+h}:{41+h}], v[{128+4*t+h}:{129+4*t+h}], v[{b}:{b+1}], v[{40+h}:{41+h}] {sel}')
    red4rows(40)
    e('v_cmp_u_f32 vcc, v40, v40')
    br('s_cbranch_vccz', out)
    retry(top)
    label(out)
    ts(8)
    e('v_cvt_pk_bf16_f32 v40, v40, v40')
    gemv([(40, 2 * t, 192 + 4 * t, None) for t in range(8)], acc=24, val=44, A=48)
    red_write(24, 21)
    e('s_waitcnt lgkmcnt(0)\ns_barrier')
    e(f's_cmp_lg_u32 s{sWAVE}, 0')
    br('s_cbranch_scc1', 'L_Xfin')
    quad_reduce(23, 32, 2)
    exec_set(0x1111111111111111)
    e(f'global_store_dwordx4 v20, v[32:35], s[{sWS}:{sWS+1}] sc1')
    exec_set((1 << 64) - 1)
    label('L_Xfin')
    wave_end()
    ts_pend = list(pend)
    L.append('L_XV:')
    e(f's_cmp_ge_u32 s{sWAVE}, 6')
    L.append('s_cbranch_scc1 L_exit')
    e(f'''v_lshlrev_b32 v10, 9, v{vLG}
    v_lshl_add_u32 v10, v{vN}, 4, v10
    s_and_b32 s38, s{sWAVE}, 1
    s_lshl_b32 s37, s38, 8
    s_add_u32 s36, s36, s37
    s_add_u32 s36, s36, 4096
    s_waitcnt lgkmcnt(0)''')
    ts(1)
    e(f's_add_u32 s40, s{sV}, s36\ns_addc_u32 s41, s{sV+1}, 0')
    if cfg.vgate: e('s_barrier')
    for u in range(32):
        if u and u % 4 == 0: sadd64(40, 40, 8192)
        ld(f'global_load_dwordx4 v[{64+4*u}:{67+4*u}], v10, s[40:41] offset:{(u%4)*2048-4096} {cfg.nt}', 'v')
    ts(2)
    gemv_consts()
    e(f'''v_lshrrev_b32 v11, 3, v{vN}
    v_and_b32 v12, 1, v{vN}
    v_lshl_add_u32 v11, v11, 1, v12
    v_lshl_add_u32 v11, v11, 2, v{vLG}
    v_mul_u32_u24 v11, {PS}, v11
    v_lshrrev_b32 v12, 1, v{vLG}
    v_lshlrev_b32 v12, 14, v12
    v_lshl_add_u32 v12, v{vN}, 5, v12
    v_and_b32 v13, 1, v{vLG}
    v_lshl_add_u32 v12, v13, 4, v12
    s_lshl_b32 s36, s34, 15
    s_lshl_b32 s37, s35, 10
    s_add_u32 s36, s36, s37
    s_lshl_b32 s37, s38, 9
    s_add_u32 s36, s36, s37
    s_add_u32 s36, s36, {M3}
    v_add_u32 v12, s36, v12''')
    ts_sync()
    e('s_barrier\ns_barrier\ns_barrier')
    ts(5); ts_sync()
    for k in range(8): e(f'ds_read_b128 v[{192+4*k}:{195+4*k}], v11 offset:{PT+16*k}')
    e('s_waitcnt lgkmcnt(7)')
    pkmul(16, 192)
    for u in range(32):
        if u + 1 < 32:
            if (u + 1) % 4 == 0: L.append(f's_waitcnt lgkmcnt({7-(u+1)//4})')
            pkmul(16 + 4 * ((u + 1) % 2), 192 + u + 1)
        e(f's_waitcnt vmcnt({31-u})')
        A = 16 + 4 * (u % 2)
        e(f'v_mfma_f32_16x16x32_bf16 v[24:27], v[{A}:{A+3}], v[{64+4*u}:{67+4*u}], ' + ('0' if u == 0 else 'v[24:27]'))
    e(f'global_store_dwordx4 v12, v[24:27], s[{sWS}:{sWS+1}] sc1')
    ts(7)
    e(f's_cmp_ge_u32 s{sR0}, 112')
    br('s_cbranch_scc1', 'L_Vfin')
    e('s_barrier')
    label('L_Vfin')
    wave_end()

def tsdump():
    L.append('L_tsdump:')
    e(f'''s_lshl_b32 s32, s2, 3
    s_add_u32 s32, s32, s{sWAVE}
    s_lshl_b32 s32, s32, 6
    s_add_u32 s32, s32, {TSB}
    v_lshlrev_b32 v10, 2, v{vLANE}
    v_add_u32 v10, s32, v10
    s_mov_b64 exec, 0xffff
    global_store_dword v10, v{VTS}, s[{sWS}:{sWS+1}]
    s_endpgm''')

pend = prologue()
role_X(pend)
role_A(pend)
role_B(pend)
role_EF()
role_G()
if cfg.dbg: tsdump()
L.append('L_end:')
L.append('s_endpgm')
body, nn = fix(L)
for p in taint_check(body): sys.stderr.write(f'TAINT {p}\n')
if taint_check(body): sys.exit(1)
hdr = open('adaLN_cond__sliding_block_cached__geglu_ffn__decode.s.ref').read().split('; Override launch')[0]
out = hdr + '; generated by gen.py (persistent fused kernel, one workgroup per CU)\n'
out += '; @launch grid=(256,1,1) block=(512,1,1) lds=8192\n'
out += f'.amdgcn_target "amdgcn-amd-amdhsa--gfx950"\n.text\n.globl {KN}\n.p2align 8\n.type {KN},@function\n{KN}:\n'
out += '\n'.join(l if l.endswith(':') else '    ' + l for l in body) + '\n'
out += f'''.section .rodata,"a"
.p2align 6
.amdhsa_kernel {KN}
  .amdhsa_next_free_vgpr 224
  .amdhsa_next_free_sgpr 102
  .amdhsa_accum_offset 224
  .amdhsa_group_segment_fixed_size 0
  .amdhsa_kernarg_size 112
  .amdhsa_user_sgpr_count 2
  .amdhsa_user_sgpr_kernarg_segment_ptr 1
  .amdhsa_system_sgpr_workgroup_id_x 1
  .amdhsa_float_denorm_mode_32 3
.end_amdhsa_kernel
'''
sys.stdout.write(out)
sys.stderr.write(f'instructions {len(body)} nops {nn}\n')
```

```python
import sys, math
from hz import fix, taint_check
KN = 'adaLN_cond__sliding_block_cached__geglu_ffn__decode_kernel'

class Cfg:
    dbg = 0
    nxe = 18
    nt = 'nt'
    ntgu = 'nt'
    wo_pos = 1
    ef_gate = 'a'
    ef_trig = 'st'
    ef_early = 0
    e_hint = 'none'
    o_sleep = 0
    outpol = ''
    warm = 1
    efrev = 1
    pf = 0
    kwin = 0
    kw2 = 0
    vgate = 0
    skip = ''
cfg = Cfg()
for a in sys.argv[1:]:
    k, v = a.split('=')
    setattr(cfg, k, int(v) if v.lstrip('-').isdigit() else v)
if cfg.nt == 'none': cfg.nt = ''
if cfg.ntgu == 'none': cfg.ntgu = ''

M1 = 0x0000; EPO = 0x3C00; TG = 0x70000
M6 = 0x6000; ST = 0x78000; M4 = 0xE000; M5 = 0x15000; M3 = 0x30000
M2 = 0x80000
TSB = 0x100000
LOG2E = 1.4426950408889634
def f2u(x):
    import struct
    return struct.unpack('<I', struct.pack('<f', x))[0]
def fl(x): return hex(f2u(x))

L = []
def e(s):
    for line in s.split('\n'):
        line = line.strip()
        if line:
            L.append(line)
            if cfg.dbg and line.startswith('s_waitcnt') and 'lgkmcnt(0)' in line: ts_flush()
_lab = [0]
def lab(b):
    _lab[0] += 1
    return f'L_{b}_{_lab[0]}'
def ld(s, tag):
    if tag in cfg.skip:
        import re
        a = int(re.search(r'v\[(\d+):', s).group(1))
        for r in range(4): e(f'v_mov_b32 v{a+r}, 0')
    else: e(s)
def vr(a, n=1): return f'v{a}' if n == 1 else f'v[{a}:{a+n-1}]'
def sr(a, n=1): return f's{a}' if n == 1 else f's[{a}:{a+n-1}]'

ts_pend = []
VTS = 5
def ts(k):
    if not cfg.dbg: return
    if len(ts_pend) == 2: e('s_waitcnt lgkmcnt(0)')
    used = [p for p, _ in ts_pend]
    p = 98 if 98 not in used else 100
    L.append(f's_memrealtime s[{p}:{p+1}]')
    ts_pend.append((p, k))
def ts_flush():
    global ts_pend
    pend, ts_pend = ts_pend, []
    for p, k in pend: L.append(f'v_writelane_b32 v{VTS}, s{p}, {k}')
def ts_sync():
    if cfg.dbg and ts_pend: e('s_waitcnt lgkmcnt(0)')
def wave_end():
    if cfg.dbg:
        ts(15); ts_sync()
        e('s_branch L_tsdump')
    else:
        e('s_endpgm')
def br(op, target):
    ts_sync(); e(f'{op} {target}')
def label(name):
    ts_sync(); e(f'{name}:')

sX, sK, sV, sWQ, sWO, sT0, sGT, sUP, sDN, sC, sWM, sOUT, sDBG, sWS = 4, 6, 8, 10, 12, 14, 16, 18, 20, 22, 24, 26, 28, 30
sWAVE = 3; sCNT = 96; sR0 = 97
sTAG = 14
vLANE, vLG, vN, vHM, vCJ = 1, 2, 3, 4, 6

def exec_set(mask):
    lo = mask & 0xffffffff; hi = mask >> 32
    if mask == (1 << 64) - 1: e('s_mov_b64 exec, -1')
    elif hi == 0 and lo < 0x80000000: e(f's_mov_b64 exec, {hex(lo)}')
    else:
        e(f's_mov_b32 exec_lo, {hex(lo)}'); e(f's_mov_b32 exec_hi, {hex(hi)}')
def rnd(dst, src, tmp=None):
    tmp = dst if tmp is None else tmp
    e(f'v_cvt_pk_bf16_f32 v{tmp}, v{src}, v{src}')
    e(f'v_and_b32 v{dst}, 0xffff0000, v{tmp}')
def red4rows(c):
    e(f'''v_permlane32_swap_b32 v{c}, v{c+2}
    v_permlane32_swap_b32 v{c+1}, v{c+3}
    v_add_f32 v{c}, v{c}, v{c+2}
    v_add_f32 v{c+1}, v{c+1}, v{c+3}
    v_permlane16_swap_b32 v{c}, v{c+1}
    v_add_f32 v{c}, v{c}, v{c+1}''')
def red4rows_multi(cs):
    for c in cs: e(f'v_permlane32_swap_b32 v{c}, v{c+2}\nv_permlane32_swap_b32 v{c+1}, v{c+3}')
    for c in cs: e(f'v_add_f32 v{c}, v{c}, v{c+2}\nv_add_f32 v{c+1}, v{c+1}, v{c+3}')
    for c in cs: e(f'v_permlane16_swap_b32 v{c}, v{c+1}')
    for c in cs: e(f'v_add_f32 v{c}, v{c}, v{c+1}')
def dpp_add(dst, src, pat, op='add'):
    e(f'v_{op}_f32_dpp v{dst}, v{src}, v{src} {pat} row_mask:0xf bank_mask:0xf')
def rowsum(v, op='add'):
    for p in ('quad_perm:[1,0,3,2]', 'quad_perm:[2,3,0,1]', 'row_half_mirror', 'row_mirror'): dpp_add(v, v, p, op)
def wavesum(v, t):
    rowsum(v)
    e(f'v_mov_b32 v{t}, v{v}\nv_permlane16_swap_b32 v{v}, v{t}\nv_add_f32 v{v}, v{v}, v{t}')
    e(f'v_mov_b32 v{t}, v{v}\nv_permlane32_swap_b32 v{v}, v{t}\nv_add_f32 v{v}, v{v}, v{t}')
def gemv_consts():
    e(f'''v_and_b32 v60, 1, v{vLANE}
    v_cmp_eq_u32 vcc, 1, v60
    v_mov_b32 v61, 0xffff
    v_mov_b32 v62, 0xffff0000
    v_cndmask_b32 v{vHM}, v61, v62, vcc
    v_bfe_u32 v60, v{vLANE}, 1, 2''')
    for j in range(4):
        e(f'v_cmp_eq_u32 vcc, {j}, v60\nv_cndmask_b32 v{vCJ+j}, 0, 1.0, vcc')
def pkmul(A, val):
    b = val & ~1
    sel = 'op_sel_hi:[0,1]' if val % 2 == 0 else 'op_sel:[1,0] op_sel_hi:[1,1]'
    e(f'v_pk_mul_f32 v[{A}:{A+1}], v[{b}:{b+1}], v[{vCJ}:{vCJ+1}] {sel}')
    e(f'v_pk_mul_f32 v[{A+2}:{A+3}], v[{b}:{b+1}], v[{vCJ+2}:{vCJ+3}] {sel}')
def gemv(steps, acc, val, A):
    n = len(steps)
    def andA(t): e(f'v_and_b32_dpp v{val+t%2}, v{steps[t][0]}, v{vHM} row_newbcast:{steps[t][1]} row_mask:0xf bank_mask:0x3')
    def andB(t): e(f'v_and_b32_dpp v{val+t%2}, v{steps[t][0]}, v{vHM} row_newbcast:{steps[t][1]+1} row_mask:0xf bank_mask:0xc')
    andA(0)
    if n > 1: andA(1)
    andB(0)
    for t in range(n):
        pkmul(A, val + t % 2)
        if t + 1 < n: andB(t + 1)
        if t + 2 < n: andA(t + 2)
        if steps[t][3]: e(steps[t][3])
        W = steps[t][2]
        e(f'v_mfma_f32_16x16x32_bf16 v[{acc}:{acc+3}], v[{A}:{A+3}], v[{W}:{W+3}], ' + ('0' if t == 0 else f'v[{acc}:{acc+3}]'))
def fold(acc, tmp):
    for r in range(4): e(f'v_permlane32_swap_b32 v{acc+r}, v{tmp+r}')
    for r in range(4): e(f'v_add_f32_dpp v{acc+r}, v{tmp+r}, v{acc+r} row_ror:8 row_mask:0xf bank_mask:0xf')
def sadd64(d, s, imm):
    e(f's_add_u32 s{d}, s{s}, {imm}\ns_addc_u32 s{d+1}, s{s+1}, 0')
def retry(top):
    ts_sync()
    e(f's_sub_i32 s{sCNT}, s{sCNT}, 1\ns_cmp_gt_i32 s{sCNT}, 0\ns_cbranch_scc1 {top}')
def poll_word(basepair, off_s=None, imm=0, want='ne_m1', tmp=32):
    top = lab('pw'); out = lab('pwo')
    label(top)
    e(f's_load_dword s{tmp}, s[{basepair}:{basepair+1}], {imm if off_s is None else "s"+str(off_s)} glc')
    e('s_waitcnt lgkmcnt(0)')
    e(f's_cmp_lg_u32 s{tmp}, {-1 if want == "ne_m1" else 0}')
    br('s_cbranch_scc1', out)
    retry(top)
    label(out)
def load_epoch():
    e(f's_load_dword s{sTAG}, s[{sWS}:{sWS+1}], {EPO}')
def make_tag():
    e(f's_add_u32 s{sTAG}, s{sTAG}, 0x01010101')
def tag_bytes(b):
    for k in range(4): e(f's_bfe_u32 s{b+k}, s{sTAG}, {hex((8 << 16) | (8 * k))}')
def vpoll_word(voff, cond, tmp=32):
    top = lab('vp'); out = lab('vpo')
    label(top)
    e(f'global_load_dword v{tmp}, v{voff}, s[{sWS}:{sWS+1}] sc1\ns_waitcnt vmcnt(0)')
    e(f'v_cmp_eq_u32 vcc, s{sTAG}, v{tmp}' if cond == 'tag' else f'v_cmp_ne_u32 vcc, -1, v{tmp}')
    br('s_cbranch_vccnz', out)
    retry(top)
    label(out)
def poll_tag(basepair, imm=0, tmp=32):
    top = lab('pt'); out = lab('pto')
    label(top)
    e(f's_load_dword s{tmp}, s[{basepair}:{basepair+1}], {imm} glc')
    e('s_waitcnt lgkmcnt(0)')
    e(f's_cmp_eq_u32 s{tmp}, s{sTAG}')
    br('s_cbranch_scc1', out)
    retry(top)
    label(out)
def poll_flags():
    top = lab('pf'); out = lab('pfo')
    label(top)
    e(f'''s_load_dwordx16 s[32:47], s[{sDBG}:{sDBG+1}], 0 glc
    s_load_dwordx16 s[48:63], s[{sDBG}:{sDBG+1}], 64 glc
    s_load_dwordx16 s[64:79], s[{sDBG}:{sDBG+1}], 128 glc
    s_load_dwordx8 s[80:87], s[{sDBG}:{sDBG+1}], 192 glc
    s_waitcnt lgkmcnt(0)''')
    for i in range(34, 88, 2): e(f's_and_b64 s[32:33], s[32:33], s[{i}:{i+1}]')
    e('s_and_b32 s32, s32, s33\ns_cmp_eq_u32 s32, -1')
    br('s_cbranch_scc1', out)
    retry(top)
    label(out)

def prologue():
    e(f'''s_cmp_ge_u32 s2, 256
    s_cbranch_scc1 L_exit
    s_load_dwordx16 s[4:19], s[0:1], 0
    s_load_dwordx8 s[20:27], s[0:1], 64
    s_load_dwordx4 s[28:31], s[0:1], 96''')
    if cfg.dbg:
        e(f'v_mov_b32 v{VTS}, 0'); ts(0)
    e(f'''v_lshrrev_b32 v10, 6, v0
    v_and_b32 v{vLANE}, 63, v0
    v_readfirstlane_b32 s{sWAVE}, v10
    v_bfe_u32 v{vLG}, v0, 4, 2
    v_and_b32 v{vN}, 15, v0
    s_mov_b32 s{sCNT}, 400000
    s_and_b32 s33, s2, 7
    s_lshr_b32 s34, s2, 3
    s_lshl_b32 s1, s33, 5
    s_add_u32 s1, s1, s34
    s_lshl_b32 s35, s33, 4
    s_add_u32 s{sR0}, s35, s34
    s_cmp_lt_u32 s34, 16''')
    L.append('s_cbranch_scc1 L_X')
    e(f'''s_lshl_b32 s35, s33, 3
    s_add_u32 s35, s35, s34
    s_sub_u32 s{sR0}, s35, 16
    s_cmp_lt_u32 s34, 24''')
    L.append('s_cbranch_scc1 L_B')
    e(f'''s_sub_u32 s34, s34, 24
    s_sub_u32 s{sR0}, s35, 24
    s_cmp_lt_u32 s33, 4''')
    L.append('s_cbranch_scc1 L_A')
    e(f'''s_mul_i32 s35, s33, 6
    s_add_u32 s35, s35, s34
    s_add_u32 s{sR0}, s35, 8
    s_cmp_lt_u32 s34, 6''')
    L.append('s_cbranch_scc1 L_A')
    e(f's_cmp_eq_u32 s{sWAVE}, 0')
    L.append('s_cbranch_scc1 L_spare')
    L.append('L_exit:')
    L.append('s_endpgm')
    global ts_pend
    pend = list(ts_pend)
    if cfg.pf:
        L.append('L_pf:'); ts_pend = []
        e(f'''s_cmp_ge_u32 s35, {cfg.pf}
        s_cbranch_scc1 L_exit
        s_getpc_b64 s[40:41]
        L_pc:
        s_sub_u32 s40, s40, L_pc-{KN}
        s_subb_u32 s41, s41, 0
        v_lshlrev_b32 v10, 6, v{vLANE}''')
        for k in range(4):
            e(f'''v_add_u32 v11, {4096*k}, v10
            v_min_u32 v11, L_end-{KN}-4, v11
            global_load_dword v{12+k}, v11, s[40:41]''')
        e('s_waitcnt vmcnt(0)\ns_endpgm')
    return pend

def tg_addr(v):
    e(f's_lshl_b32 s32, s1, 7\ns_add_u32 s32, s32, {TG}\nv_mov_b32 v{v}, s32')
def tg_store(va, vt):
    e(f'v_mov_b32 v{vt}, s{sTAG}')
    exec_set(1)
    e(f'global_store_dword v{va}, v{vt}, s[{sWS}:{sWS+1}] sc1')
    exec_set((1 << 64) - 1)
def tg_wait_all(va, d, split):
    if split:
        e(f's_lshl_b32 s32, s{sWAVE}, 12\ns_add_u32 s32, s32, {TG}\nv_and_b32 v{va}, 31, v{vLANE}\nv_lshl_add_u32 v{va}, v{va}, 7, s32')
    else:
        e(f'v_lshlrev_b32 v{va}, 7, v{vLANE}\nv_add_u32 v{va}, {TG}, v{va}')
        for k in range(1, 4): e(f'v_add_u32 v{va+k}, {8192*k}, v{va}')
    n = 1 if split else 4
    top = lab('tg'); out = lab('tgo')
    label(top)
    for k in range(n): e(f'global_load_dword v{d+k}, v{va+k}, s[{sWS}:{sWS+1}] sc1')
    e('s_waitcnt vmcnt(0)')
    for k in range(n): e(f'v_xor_b32 v{d+k}, s{sTAG}, v{d+k}')
    if not split: e(f'v_or3_b32 v{d}, v{d}, v{d+1}, v{d+2}\nv_or_b32 v{d}, v{d}, v{d+3}')
    e(f'v_cmp_ne_u32 vcc, 0, v{d}')
    br('s_cbranch_vccz', out)
    e('s_sleep 4')
    retry(top)
    label(out)
    if split: e('s_barrier')
def warm_addr():
    e(f'''v_lshrrev_b32 v40, 3, v{vLANE}
    v_lshlrev_b32 v40, 13, v40
    v_and_b32 v41, 7, v{vLANE}
    v_lshl_add_u32 v40, v41, 7, v40
    s_mul_i32 s44, s34, {24*8192}
    s_add_u32 s44, s44, {256*8192}
    v_add_u32 v40, s44, v40
    s_lshr_b32 s44, s{sWQ}, 7
    s_sub_u32 s44, 3, s44
    s_and_b32 s44, s44, 7
    s_lshl_b32 s44, s44, 7
    s_lshl_b32 s45, s34, 17
    s_add_u32 s44, s44, s45
    s_add_u32 s44, s44, {128*8192}
    v_lshlrev_b32 v41, 13, v{vN}
    v_add_u32 v41, s44, v41
    s_lshl_b32 s44, s33, 10
    s_add_u32 s42, s{sWQ}, s44
    s_addc_u32 s43, s{sWQ+1}, 0''')
def warm_loads():
    exec_set(0xFFFF)
    e(f'global_load_dword v45, v41, s[42:43] {cfg.nt}')
    exec_set((1 << 64) - 1)
    for i in range(3):
        e(f'global_load_dword v{42+i}, v40, s[42:43] {cfg.nt}')
        if i < 2: sadd64(42, 42, 65536)
def silu2(a, b):
    for r in (a, b): e(f'v_lshlrev_b32 v{r}, 16, v{r}')
    for r in (a, b): e(f'v_mul_f32 v{r+6}, {fl(-LOG2E)}, v{r}')
    for r in (a, b): e(f'v_exp_f32 v{r+6}, v{r+6}')
    for r in (a, b): e(f'v_add_f32 v{r+6}, 1.0, v{r+6}')
    for r in (a, b): e(f'v_rcp_f32 v{r+6}, v{r+6}')
    for r in (a, b): e(f'v_mul_f32 v{r}, v{r}, v{r+6}')
    for r in (a, b): e(f'v_cvt_pk_bf16_f32 v{r}, v{r}, v{r}')
def mod_task(idx):
    e(f'''s_mul_i32 s36, s{idx}, 4682
    s_lshr_b32 s36, s36, 16
    s_mul_i32 s35, s36, 14
    s_sub_u32 s35, s{idx}, s35''')
def c_addr(a, b):
    e(f'''s_mul_i32 s37, s36, 112
    v_lshl_add_u32 v{a}, v{vN}, 2, v{vLG}
    v_add_lshl_u32 v{a}, s37, v{a}, 1
    v_add_u32 v{b}, 128, v{a}
    v_min_u32 v{b}, 894, v{b}''')
def wm_addr(v, t):
    e(f'''v_lshrrev_b32 v{v}, 3, v{vN}
    v_lshl_add_u32 v{v}, v{v}, 2, v{vLG}
    v_mul_u32_u24 v{v}, 5376, v{v}
    v_and_b32 v{t}, 7, v{vN}
    v_lshl_add_u32 v{v}, v{t}, 4, v{v}''')

def role_A(pend):
    global ts_pend
    L.append('L_spare:'); ts_pend = []
    L.append('s_waitcnt lgkmcnt(0)')
    load_epoch()
    if cfg.warm:
        warm_addr(); warm_loads()
    tg_addr(10)
    L.append('s_waitcnt lgkmcnt(0)')
    make_tag(); tg_store(10, 11)
    e('s_waitcnt vmcnt(0)\ns_endpgm')
    L.append('L_A:'); ts_pend = list(pend)
    e(f's_mov_b32 s0, s{sR0}\ns_cmp_eq_u32 s{sWAVE}, 1')
    br('s_cbranch_scc1', 'L_clear')
    e(f's_cmp_lg_u32 s{sWAVE}, 0')
    br('s_cbranch_scc1', 'L_Aidle')
    mod_task(sR0); c_addr(11, 12); wm_addr(13, 14)
    e('''s_mul_i32 s38, s37, 5376
    s_lshl_b32 s39, s35, 7
    s_add_u32 s38, s38, s39
    s_waitcnt lgkmcnt(0)''')
    ts(1)
    e(f'''global_load_ushort v16, v11, s[{sC}:{sC+1}]
    global_load_ushort v17, v12, s[{sC}:{sC+1}]
    s_add_u32 s40, s{sWM}, s38
    s_addc_u32 s41, s{sWM+1}, 0''')
    load_epoch()
    for t in range(14):
        e(f'global_load_dwordx4 v[{64+4*t}:{67+4*t}], v13, s[40:41] {cfg.nt}')
        if t < 13: sadd64(40, 40, 8 * 5376)
    nw = 0
    if cfg.warm:
        warm_addr(); warm_loads(); nw = 4
    gemv_consts()
    e(f'''v_lshlrev_b32 v18, 5, v{vN}
    v_lshl_add_u32 v18, v{vLG}, 4, v18
    s_mul_i32 s42, s36, 3584
    s_lshl_b32 s43, s35, 8
    s_add_u32 s42, s42, s43
    v_add_u32 v18, s42, v18
    v_mov_b32 v19, 0xffffff00
    s_waitcnt vmcnt({14+nw}) lgkmcnt(0)''')
    make_tag(); tag_bytes(46)
    ts(2)
    silu2(16, 17)
    gemv([(16 + t // 8, (2 * t) % 16, 64 + 4 * t, f's_waitcnt vmcnt({13-t+nw})') for t in range(14)], acc=24, val=22, A=28)
    fold(24, 32)
    for r in range(4): e(f'v_add_u32 v{24+r}, 0x80, v{24+r}')
    for r in range(4): e(f'v_and_or_b32 v{24+r}, v{24+r}, v19, s{46+r}')
    exec_set(0x00FF00FF)
    e(f'global_store_dwordx4 v18, v[24:27], s[{sWS}:{sWS+1}] sc1')
    exec_set((1 << 64) - 1)
    ts(3)
    e('s_barrier')
    ef_setup()
    br('s_branch', 'L_EF')
    label('L_clear')
    e(f'''v_mov_b32 v12, -1
    v_mov_b32 v13, -1
    v_mov_b32 v14, -1
    v_mov_b32 v15, -1
    v_lshrrev_b32 v10, 2, v{vLANE}
    v_mul_u32_u24 v10, 3584, v10
    v_and_b32 v11, 3, v{vLANE}
    v_lshl_add_u32 v10, v11, 4, v10
    s_lshl_b32 s36, s{sR0}, 6
    s_add_u32 s36, s36, {M5}
    v_add_u32 v10, s36, v10
    v_add_u32 v11, {16*3584}, v10
    s_waitcnt lgkmcnt(0)''')
    load_epoch()
    e(f'global_store_dwordx4 v10, v[12:15], s[{sWS}:{sWS+1}] sc1')
    exec_set((1 << 48) - 1)
    e(f'global_store_dwordx4 v11, v[12:15], s[{sWS}:{sWS+1}] sc1')
    exec_set((1 << 64) - 1)
    tg_addr(10)
    e('s_waitcnt vmcnt(0) lgkmcnt(0)')
    make_tag(); tg_store(10, 11)
    ts(2)
    br('s_branch', 'L_Aid2')
    label('L_Aidle')
    e('s_waitcnt lgkmcnt(0)')
    load_epoch()
    e('s_waitcnt lgkmcnt(0)')
    make_tag()
    label('L_Aid2')
    gemv_consts()
    ef_setup()
    e('s_barrier')
    label('L_EF')
    role_EF()

RED = 0; STT = 5120
VALID = 0xFF00FF0000FF00FF
def red_write(acc, vaddr):
    exec_set(VALID)
    e(f'ds_write_b128 v{vaddr}, v[{acc}:{acc+3}]')
    exec_set((1 << 64) - 1)
def red_waddr(dst, tmp, pstr, base):
    e(f'''v_lshrrev_b32 v{tmp}, 1, v{vLG}
    s_lshl_b32 s32, s{sWAVE}, 1
    v_add_u32 v{tmp}, s32, v{tmp}
    v_mul_u32_u24 v{dst}, {pstr}, v{tmp}
    v_and_b32 v{tmp}, 7, v{vN}
    v_lshl_add_u32 v{dst}, v{tmp}, 5, v{dst}
    v_and_b32 v{tmp}, 1, v{vLG}
    v_lshl_add_u32 v{dst}, v{tmp}, 4, v{dst}''')
    if base: e(f'v_add_u32 v{dst}, {base}, v{dst}')
def quad_raddr(dst, tmp, base):
    e(f'''v_and_b32 v{tmp}, 3, v{vLANE}
    v_mul_u32_u24 v{dst}, 320, v{tmp}
    v_lshrrev_b32 v{tmp}, 2, v{vLANE}
    v_lshl_add_u32 v{dst}, v{tmp}, 4, v{dst}''')
    if base: e(f'v_add_u32 v{dst}, {base}, v{dst}')
def quad_reduce(raddr, d, nread):
    for i in range(nread): e(f'ds_read_b128 v[{d+4*i}:{d+4*i+3}], v{raddr} offset:{i*1280}')
    e('s_waitcnt lgkmcnt(0)')
    pk_tree(d, nread)
    for p in ('quad_perm:[1,0,3,2]', 'quad_perm:[2,3,0,1]'):
        for r in range(4): dpp_add(d + r, d + r, p)
def pk_tree(d, n):
    s = 1
    while s < n:
        for i in range(0, n - s, 2 * s):
            for h in (0, 2):
                a = d + 4 * i + h; b = d + 4 * (i + s) + h
                e(f'v_pk_add_f32 v[{a}:{a+1}], v[{a}:{a+1}], v[{b}:{b+1}]')
        s *= 2

def role_B(pend):
    global ts_pend
    L.append('L_B:'); ts_pend = list(pend)
    e(f'''v_lshlrev_b32 v10, 4, v{vLANE}
    v_min_u32 v10, 880, v10
    v_min_u32 v11, 13, v{vN}
    s_mul_i32 s34, s{sWAVE}, 56
    v_lshl_add_u32 v11, v11, 2, s34
    v_add_lshl_u32 v12, v11, v{vLG}, 1
    v_lshrrev_b32 v13, 3, v{vN}
    v_lshl_add_u32 v13, v13, 2, v{vLG}
    v_lshlrev_b32 v13, 13, v13
    v_and_b32 v14, 7, v{vN}
    v_lshl_add_u32 v13, v14, 4, v13
    s_lshl_b32 s35, s34, 13
    s_lshl_b32 s36, s{sR0}, 7
    s_add_u32 s35, s35, s36
    s_waitcnt lgkmcnt(0)''')
    ts(1)
    load_epoch()
    e(f'''global_load_dwordx4 v[16:19], v10, s[{sX}:{sX+1}]
    global_load_ushort v20, v12, s[{sX}:{sX+1}]
    s_add_u32 s40, s{sWQ}, s35
    s_addc_u32 s41, s{sWQ+1}, 0''')
    for t in range(7):
        e(f'global_load_dwordx4 v[{64+4*t}:{67+4*t}], v13, s[40:41] {cfg.nt}')
        if t < 6: sadd64(40, 40, 65536)
    e(f'''s_sub_u32 s35, s{sWAVE}, 1
    s_cmp_lt_u32 s35, 2
    s_cselect_b32 s0, 1, 0
    s_cmp_lt_u32 s{sR0}, 56
    s_cselect_b32 s0, s0, 0
    s_cmp_eq_u32 s0, 0''')
    br('s_cbranch_scc1', 'L_Bnr')
    def r_addr():
        mod_task(sR0)
        e(f'''s_mul_i32 s38, s{sWAVE}, 14
        s_add_u32 s35, s35, s38
        v_lshlrev_b32 v58, 5, v{vN}
        v_lshl_add_u32 v58, v{vLG}, 4, v58
        s_mul_i32 s38, s36, 7168
        s_lshl_b32 s39, s35, 8
        s_add_u32 s38, s38, s39
        s_add_u32 s38, s38, {M6 - 3584}
        v_add_u32 v58, s38, v58''')
    r_addr(); c_addr(54, 55)
    e(f'''global_load_ushort v56, v54, s[{sC}:{sC+1}]
    global_load_ushort v57, v55, s[{sC}:{sC+1}]
    v_mov_b32 v32, -1
    v_mov_b32 v33, -1
    v_mov_b32 v34, -1
    v_mov_b32 v35, -1''')
    exec_set(0x00FF00FF)
    e(f'global_store_dwordx4 v58, v[32:35], s[{sWS}:{sWS+1}] sc1')
    exec_set((1 << 64) - 1)
    e('s_waitcnt vmcnt(10)')
    br('s_branch', 'L_Bnr2')
    label('L_Bnr')
    e('s_waitcnt vmcnt(7)')
    label('L_Bnr2')
    gemv_consts()
    e(f'''v_mul_u32_u24 v15, 3584, v{vLG}
    v_lshl_add_u32 v15, v11, 2, v15''')
    red_waddr(21, 22, 320, RED)
    quad_raddr(23, 22, RED)
    e(f'''v_cmp_gt_u32 vcc, 56, v{vLANE}
    v_cndmask_b32 v31, 0, 1.0, vcc''')
    for i in range(4):
        e(f'v_lshlrev_b32 v{32+2*i}, 16, v{16+i}\nv_and_b32 v{33+2*i}, 0xffff0000, v{16+i}')
    e('''v_pk_add_f32 v[40:41], v[32:33], v[34:35]
    v_pk_add_f32 v[42:43], v[36:37], v[38:39]
    v_pk_add_f32 v[40:41], v[40:41], v[42:43]
    v_add_f32 v40, v40, v41
    v_mul_f32 v40, v40, v31''')
    wavesum(40, 41)
    e(f'v_mul_f32 v40, {fl(1/448)}, v40')
    for i in range(8): e(f'v_sub_f32 v{32+i}, v{32+i}, v40')
    e('v_mul_f32 v42, v32, v32')
    for i in range(1, 8): e(f'v_fmac_f32 v42, v{32+i}, v{32+i}')
    e('v_mul_f32 v42, v42, v31')
    wavesum(42, 41)
    e(f'v_mul_f32 v42, {fl(1/448)}, v42')
    rnd(40, 40); rnd(42, 42)
    e(f'v_add_f32 v42, {fl(1e-5)}, v42'); rnd(42, 42)
    e('v_sqrt_f32 v42, v42'); rnd(42, 42)
    e('v_rcp_f32 v42, v42\nv_lshlrev_b32 v20, 16, v20\nv_sub_f32 v20, v20, v40'); rnd(20, 20)
    e('v_mul_f32 v20, v20, v42'); rnd(20, 20)
    ts(2)
    e('s_waitcnt lgkmcnt(0)')
    make_tag(); tag_bytes(46)
    e(f'''s_lshr_b32 s36, s{sR0}, 3
    s_lshl_b32 s36, s36, 14
    s_and_b32 s37, s{sR0}, 7
    s_lshl_b32 s37, s37, 7
    s_add_u32 s36, s36, s37
    s_add_u32 s36, s36, {M2}
    v_and_b32 v50, 7, v{vLANE}
    v_lshlrev_b32 v50, 10, v50
    v_lshrrev_b32 v51, 3, v{vLANE}
    v_lshl_add_u32 v50, v51, 4, v50
    v_add_u32 v50, s36, v50
    v_add_u32 v51, 8192, v50
    s_lshr_b32 s36, s{sR0}, 3
    s_lshl_b32 s36, s36, 12
    s_lshl_b32 s37, s{sWAVE}, 8
    s_add_u32 s36, s36, s37
    s_add_u32 s36, s36, {TG}
    v_and_b32 v53, 1, v{vLANE}
    v_lshl_add_u32 v53, v53, 7, s36''')
    tg_addr(52)
    e('v_mov_b32 v43, 0xff')
    top = lab('bg'); out = lab('bgo')
    label(top)
    e(f'''global_load_dwordx4 v[32:35], v15, s[{sWS}:{sWS+1}] sc1
    global_load_dwordx4 v[36:39], v15, s[{sWS}:{sWS+1}] offset:1792 sc1
    global_load_dword v42, v53, s[{sWS}:{sWS+1}] sc1
    s_waitcnt vmcnt(1)''')
    for i in range(8): e(f'v_xor_b32 v{32+i}, s{46+i%4}, v{32+i}')
    e(f'''v_or3_b32 v40, v32, v33, v34
    v_or3_b32 v41, v35, v36, v37
    v_or3_b32 v40, v40, v38, v39
    v_or_b32 v40, v40, v41
    s_waitcnt vmcnt(0)
    v_xor_b32 v42, s{sTAG}, v42
    v_and_or_b32 v40, v40, v43, v42
    v_cmp_ne_u32 vcc, 0, v40''')
    br('s_cbranch_vccz', out)
    retry(top)
    label(out)
    red4rows_multi([32, 36])
    ts(4)
    rnd(36, 36); rnd(32, 32)
    e('v_add_f32 v36, 1.0, v36'); rnd(36, 36)
    e('v_mul_f32 v36, v20, v36'); rnd(36, 36)
    e('v_add_f32 v36, v36, v32\nv_cvt_pk_bf16_f32 v36, v36, v36')
    gemv([(36, 2 * t, 64 + 4 * t, None) for t in range(7)], acc=24, val=44, A=28)
    red_write(24, 21)
    e('s_waitcnt lgkmcnt(0)\ns_barrier')
    e(f's_cmp_lg_u32 s{sWAVE}, 0')
    br('s_cbranch_scc1', 'L_Bdone')
    quad_reduce(23, 32, 4)
    e('''v_cvt_pk_bf16_f32 v32, v32, v33
    v_cvt_pk_bf16_f32 v33, v34, v35
    v_mov_b32 v34, v32
    v_mov_b32 v35, v33
    v_mov_b32_dpp v34, v32 row_shl:4 row_mask:0xf bank_mask:0x5
    v_mov_b32_dpp v35, v33 row_shl:4 row_mask:0xf bank_mask:0x5
    v_mov_b32_dpp v32, v32 row_shr:4 row_mask:0xf bank_mask:0xa
    v_mov_b32_dpp v33, v33 row_shr:4 row_mask:0xf bank_mask:0xa''')
    e(f'global_store_dwordx4 v50, v[32:35], s[{sWS}:{sWS+1}] sc1')
    e(f'global_store_dwordx4 v51, v[32:35], s[{sWS}:{sWS+1}] sc1')
    tg_store(52, 53)
    ts(5)
    e('s_barrier')
    br('s_branch', 'L_fin')
    label('L_Bdone')
    e(f's_cmp_ge_u32 s{sWAVE}, 4')
    br('s_cbranch_scc1', 'L_fin')
    e(f's_cmp_eq_u32 s{sWAVE}, 3')
    br('s_cbranch_scc1', 'L_G')
    e('s_cmp_eq_u32 s0, 0')
    br('s_cbranch_scc1', 'L_fin')
    wm_addr(13, 14); r_addr()
    e(f'''s_mul_i32 s38, s36, {112*5376}
    s_lshl_b32 s39, s35, 7
    s_add_u32 s38, s38, s39
    s_add_u32 s50, s{sWM}, s38
    s_addc_u32 s51, s{sWM+1}, 0''')
    e('s_barrier')
    for t in range(14):
        ld(f'global_load_dwordx4 v[{64+4*t}:{67+4*t}], v13, s[50:51] {cfg.nt}', 'r')
        if t < 13: sadd64(50, 50, 8 * 5376)
    e('v_mov_b32 v16, v56\nv_mov_b32 v17, v57')
    ts(6)
    silu2(16, 17)
    gemv([(16 + t // 8, (2 * t) % 16, 64 + 4 * t, f's_waitcnt vmcnt({13-t})') for t in range(14)], acc=24, val=22, A=28)
    fold(24, 32)
    exec_set(0x00FF00FF)
    e(f'global_store_dwordx4 v58, v[24:27], s[{sWS}:{sWS+1}] sc1')
    exec_set((1 << 64) - 1)
    br('s_branch', 'L_fin')

def ef_setup():
    if cfg.efrev:
        e(f's_and_b32 s34, s0, 1\ns_mul_i32 s34, s34, 7\ns_xor_b32 s34, s34, s{sWAVE}\ns_mul_i32 s34, s34, 56')
    else:
        e(f's_mul_i32 s34, s{sWAVE}, 56')
    e(f'''v_min_u32 v11, 13, v{vN}
    v_lshl_add_u32 v11, v11, 2, s34
    v_add_lshl_u32 v12, v11, v{vLG}, 1
    global_load_ushort v20, v12, s[{sX}:{sX+1}]
    v_mul_u32_u24 v15, 7168, v{vLG}
    v_lshl_add_u32 v15, v11, 2, v15
    v_add_u32 v15, {M6}, v15
    v_mul_u32_u24 v14, 1792, v{vLG}
    v_lshl_add_u32 v14, v11, 2, v14
    v_cmp_gt_u32 vcc, 14, v{vN}
    v_cndmask_b32 v31, 0, 1.0, vcc''')
    for t in range(4): sadd64(44 + 2 * t, sWS, M4 + t * 7168)
    e(f'''v_lshrrev_b32 v13, 3, v{vN}
    v_lshl_add_u32 v13, v13, 2, v{vLG}
    v_add_u32 v18, s34, v13
    v_mul_u32_u24 v18, 3584, v18
    v_and_b32 v19, 3, v{vN}
    v_lshl_add_u32 v18, v19, 4, v18
    s_lshl_b32 s35, s0, 6
    v_add_u32 v18, s35, v18
    v_and_b32 v19, 4, v{vN}
    v_cmp_eq_u32 vcc, 0, v19
    v_mov_b32 v16, s{sUP}
    v_mov_b32 v17, s{sGT}
    v_cndmask_b32 v16, v16, v17, vcc
    v_mov_b32 v17, s{sUP+1}
    v_mov_b32 v19, s{sGT+1}
    v_cndmask_b32 v17, v17, v19, vcc
    v_add_co_u32 v16, vcc, v16, v18
    v_addc_co_u32 v17, vcc, 0, v17, vcc
    s_mov_b32 s52, 28672
    s_mov_b32 s53, 0''')
    e(f'''v_mul_u32_u24 v13, 896, v13
    v_and_b32 v19, 7, v{vN}
    v_lshl_add_u32 v13, v19, 4, v13
    s_mul_i32 s35, s0, {32*896}
    s_lshl_b32 s36, s{sWAVE}, 7
    s_add_u32 s35, s35, s36
    s_add_u32 s54, s{sDN}, s35
    s_addc_u32 s55, s{sDN+1}, 0''')
    red_waddr(21, 22, 256, RED)
    e(f'''v_lshlrev_b32 v23, 4, v{vLANE}
    v_lshrrev_b32 v22, 5, v{vLANE}
    v_lshlrev_b32 v22, 2, v22
    s_lshl_b32 s36, s{sWAVE}, 4
    s_add_u32 s36, s36, {STT}
    v_add_u32 v22, s36, v22
    v_and_b32 v19, 7, v{vLANE}
    v_lshlrev_b32 v19, 4, v19
    v_add_u32 v19, {STT}, v19
    v_lshrrev_b32 v10, 1, v{vN}
    s_lshl_b32 s36, s{sWAVE}, 2
    v_add_u32 v10, s36, v10
    v_mul_u32_u24 v10, 3584, v10
    v_and_b32 v18, 1, v{vN}
    v_lshl_add_u32 v10, v18, 5, v10
    v_lshl_add_u32 v10, v{vLG}, 4, v10
    s_lshl_b32 s36, s0, 6
    s_add_u32 s36, s36, {M5}
    v_add_u32 v10, s36, v10''')
def role_EF():
    if cfg.ef_gate == 'q': tg_wait_all(12, 32, True)
    ts(6)
    for t in range(7):
        ld(f'global_load_dwordx4 v[{64+4*t}:{67+4*t}], v[16:17], off {cfg.ntgu}', 'e')
        if t < 6: e('v_lshl_add_u64 v[16:17], v[16:17], 0, s[52:53]')
    e(f's_cmp_eq_u32 s{sWAVE}, 7')
    br('s_cbranch_scc1', 'L_nodn')
    for t in range(4):
        ld(f'global_load_dwordx4 v[{96+4*t}:{99+4*t}], v13, s[54:55] {cfg.nt}', 'e')
        if t < 3: sadd64(54, 54, 7168)
    label('L_nodn')
    ts(7)
    if cfg.ef_gate != 'q': tg_wait_all(12, 32, True)
    ts(8)
    top = lab('m6'); out = lab('m6o')
    label(top)
    e(f'''global_load_dwordx4 v[32:35], v15, s[{sWS}:{sWS+1}] sc1
    global_load_dwordx4 v[36:39], v15, s[{sWS}:{sWS+1}] offset:1792 sc1
    global_load_dwordx4 v[40:43], v15, s[{sWS}:{sWS+1}] offset:3584 sc1
    s_waitcnt vmcnt(0)''')
    red4rows_multi([32, 36, 40])
    e('v_add_f32 v33, v32, v36\nv_cmp_u_f32 vcc, v33, v40')
    br('s_cbranch_vccz', out)
    e('s_sleep 2')
    retry(top)
    label(out)
    rnd(56, 32); rnd(57, 36); rnd(58, 40)
    e('v_add_f32 v58, 1.0, v58'); rnd(58, 58)
    e('v_lshlrev_b32 v20, 16, v20')
    ts(9)
    top = lab('m4'); out = lab('m4o')
    label(top)
    for t in range(4): e(f'global_load_dwordx4 v[{32+4*t}:{35+4*t}], v14, s[{44+2*t}:{45+2*t}] sc1')
    e('s_waitcnt vmcnt(0)')
    pk_tree(32, 4)
    red4rows(32)
    e('v_cmp_u_f32 vcc, v32, v32')
    br('s_cbranch_vccz', out)
    retry(top)
    label(out)
    ts(10)
    rnd(32, 32)
    e('v_mul_f32 v32, v56, v32'); rnd(32, 32)
    e('v_add_f32 v32, v20, v32'); rnd(32, 32)
    e('''v_readfirstlane_b32 s36, v32
    v_subrev_f32 v33, s36, v32
    v_mul_f32 v33, v33, v31
    v_mul_f32 v34, v33, v33
    v_mov_b32 v36, s36
    v_permlane32_swap_b32 v33, v34
    v_add_f32 v33, v33, v34
    v_mov_b32 v34, v33
    v_permlane16_swap_b32 v33, v34
    v_add_f32 v33, v33, v34''')
    rowsum(33)
    exec_set(0x0000000100000001)
    e('ds_write_b32 v22, v33\nds_write_b32 v22, v36 offset:8')
    exec_set((1 << 64) - 1)
    e('s_waitcnt lgkmcnt(0)\ns_barrier\nds_read_b96 v[36:38], v19\ns_waitcnt lgkmcnt(0)')
    e(f'''v_mul_f32 v39, {fl(1/56)}, v36
    v_add_f32 v38, v38, v39
    v_fma_f32 v37, -v36, v39, v37
    v_mov_b32 v40, v38''')
    for p in ('quad_perm:[1,0,3,2]', 'quad_perm:[2,3,0,1]', 'row_half_mirror'): dpp_add(40, 40, p)
    e(f'''v_mul_f32 v40, 0.125, v40
    v_sub_f32 v38, v38, v40
    v_mul_f32 v39, {fl(56.0)}, v38
    v_fmac_f32 v37, v39, v38''')
    for p in ('quad_perm:[1,0,3,2]', 'quad_perm:[2,3,0,1]', 'row_half_mirror'): dpp_add(37, 37, p)
    rnd(40, 40)
    e(f'v_mul_f32 v37, {fl(1/448)}, v37\nv_max_f32 v37, 0, v37'); rnd(37, 37)
    e(f'v_add_f32 v37, {fl(1e-5)}, v37'); rnd(37, 37)
    e('v_sqrt_f32 v37, v37\nv_sub_f32 v32, v32, v40'); rnd(37, 37); rnd(32, 32)
    e('v_rcp_f32 v37, v37\nv_mul_f32 v32, v32, v37'); rnd(32, 32)
    e('v_mul_f32 v32, v32, v58'); rnd(32, 32)
    e('v_add_f32 v32, v32, v57\nv_cvt_pk_bf16_f32 v32, v32, v32')
    gemv([(32, 2 * t, 64 + 4 * t, None) for t in range(7)], acc=24, val=44, A=28)
    red_write(24, 21)
    e('s_waitcnt lgkmcnt(0)\ns_barrier')
    ts(11)
    e(f's_cmp_eq_u32 s{sWAVE}, 7')
    br('s_cbranch_scc1', 'L_fin')
    for i in range(4): e(f'ds_read_b128 v[{32+4*i}:{35+4*i}], v23 offset:{RED+i*1024}')
    e('s_waitcnt lgkmcnt(0)')
    pk_tree(32, 4)
    red4rows(32)
    rnd(32, 32)
    kk = -2 * math.sqrt(2 / math.pi) * LOG2E
    e(f'''v_mul_f32 v33, v32, v32
    v_mov_b32_dpp v35, v32 row_ror:8 row_mask:0xf bank_mask:0xf
    v_mul_f32 v33, {fl(0.044715*kk)}, v33
    v_add_f32 v33, {fl(kk)}, v33
    v_mul_f32 v33, v33, v32
    v_exp_f32 v33, v33
    v_add_f32 v33, 1.0, v33
    v_rcp_f32 v33, v33
    v_mul_f32 v32, v32, v33''')
    rnd(32, 32)
    e('v_mul_f32 v32, v32, v35\nv_cvt_pk_bf16_f32 v32, v32, v32')
    gemv([(32, 2 * t, 96 + 4 * t, None) for t in range(4)], acc=24, val=44, A=28)
    fold(24, 36)
    exec_set(0x00FF00FF)
    e(f'global_store_dwordx4 v10, v[24:27], s[{sWS}:{sWS+1}] sc1')
    exec_set((1 << 64) - 1)
    label('L_fin')
    wave_end()

def red16(c):
    red4rows(c)
    dpp_add(c, c, 'row_ror:8'); dpp_add(c, c, 'row_ror:4')
def role_G():
    label('L_G')
    e(f's_cmp_lt_u32 s{sR0}, 36')
    br('s_cbranch_scc1', 'L_fin')
    e(f'''s_sub_u32 s1, s{sR0}, 36
    s_barrier
    v_and_b32 v10, 3, v{vLANE}
    v_lshrrev_b32 v11, 2, v{vLANE}
    s_lshl_b32 s34, s1, 4
    v_lshl_add_u32 v12, v10, 2, s34
    v_add_lshl_u32 v13, v12, v{vLG}, 1
    global_load_ushort v20, v13, s[{sX}:{sX+1}]
    v_and_b32 v14, 3, v11
    v_mul_u32_u24 v14, 7168, v14
    v_lshl_add_u32 v14, v12, 2, v14
    v_add_u32 v14, {M6}, v14
    v_add_u32 v15, 5376, v14
    v_mul_u32_u24 v16, 1792, v11
    v_lshl_add_u32 v16, v12, 2, v16
    v_add_u32 v16, {M4}, v16
    s_mul_i32 s35, s1, 3584
    s_add_u32 s35, s35, {M5}
    v_lshlrev_b32 v17, 4, v{vLANE}
    v_add_u32 v17, s35, v17''')
    tg_wait_all(40, 32, False)
    top = lab('g6'); out = lab('g6o')
    label(top)
    e(f'''global_load_dwordx4 v[32:35], v14, s[{sWS}:{sWS+1}] sc1
    global_load_dwordx4 v[36:39], v15, s[{sWS}:{sWS+1}] sc1
    s_waitcnt vmcnt(0)''')
    for c in (32, 36):
        for r in range(4): dpp_add(c + r, c + r, 'row_ror:8')
        for r in range(4): dpp_add(c + r, c + r, 'row_ror:4')
    e(f'v_cmp_eq_u32 vcc, 1, v{vLG}\nv_cndmask_b32 v32, v32, v33, vcc\nv_cndmask_b32 v36, v36, v37, vcc')
    e(f'v_cmp_eq_u32 vcc, 2, v{vLG}\nv_cndmask_b32 v32, v32, v34, vcc\nv_cndmask_b32 v36, v36, v38, vcc')
    e(f'v_cmp_eq_u32 vcc, 3, v{vLG}\nv_cndmask_b32 v32, v32, v35, vcc\nv_cndmask_b32 v36, v36, v39, vcc')
    e('v_cmp_u_f32 vcc, v32, v36')
    br('s_cbranch_vccz', out)
    e('s_sleep 4')
    retry(top)
    label(out)
    rnd(56, 32); rnd(57, 36)
    e('v_lshlrev_b32 v20, 16, v20')
    ts(7)
    top = lab('g4'); out = lab('g4o')
    label(top)
    e(f'global_load_dwordx4 v[32:35], v16, s[{sWS}:{sWS+1}] sc1\ns_waitcnt vmcnt(0)')
    red16(32)
    e('v_cmp_u_f32 vcc, v32, v32')
    br('s_cbranch_vccz', out)
    retry(top)
    label(out)
    rnd(32, 32)
    e('v_mul_f32 v32, v56, v32'); rnd(32, 32)
    e('v_add_f32 v20, v20, v32'); rnd(20, 20)
    for r in range(4): e(f'v_mov_b32 v{44+r}, 0')
    e(f'v_mov_b32 v58, {EPO}\nv_mov_b32 v59, s{sTAG}')
    ts(10)
    top = lab('g5'); out = lab('g5o')
    label(top)
    for t in range(3): e(f'global_load_dwordx4 v[{32+4*t}:{35+4*t}], v17, s[{sWS}:{sWS+1}] offset:{t*1024} sc1')
    exec_set(0xFFFFFFFF)
    e(f'global_load_dwordx4 v[44:47], v17, s[{sWS}:{sWS+1}] offset:3072 sc1')
    exec_set((1 << 64) - 1)
    e('s_waitcnt vmcnt(0)')
    pk_tree(32, 4)
    red16(32)
    e('v_cmp_u_f32 vcc, v32, v32')
    br('s_cbranch_vccz', out)
    retry(top)
    label(out)
    rnd(32, 32)
    e('v_mul_f32 v32, v57, v32'); rnd(32, 32)
    e('v_add_f32 v32, v20, v32\nv_cvt_pk_bf16_f32 v32, v32, v32')
    exec_set(0x000F000F000F000F)
    e(f'global_store_short v13, v32, s[{sOUT}:{sOUT+1}] {cfg.outpol}')
    e('s_cmp_lg_u32 s1, 0')
    br('s_cbranch_scc1', 'L_Gne')
    exec_set(1)
    e(f'global_store_dword v58, v59, s[{sWS}:{sWS+1}] sc1')
    label('L_Gne')
    exec_set((1 << 64) - 1)
    wave_end()

QT = 0; ZR = 1280; MX = 1792; FLG = 1800; PT = 2048; PS = 144; XRED = 4608; KB = 8192; WOB = KB + 65536; LDS_BYTES = WOB + 32768
def role_X(pend):
    global ts_pend
    L.append('L_X:'); ts_pend = list(pend)
    e(f'''s_lshr_b32 s34, s{sR0}, 4
    s_and_b32 s35, s{sR0}, 15
    s_lshl_b32 s36, s34, 22
    s_lshl_b32 s37, s35, 16
    s_add_u32 s36, s36, s37
    s_add_u32 s36, s36, {6144*512}
    s_cmp_ge_u32 s{sWAVE}, 4''')
    br('s_cbranch_scc1', 'L_XV')
    e(f'''v_lshrrev_b32 v14, 5, v{vLANE}
    v_bfe_u32 v15, v{vLANE}, 3, 2
    v_xor_b32 v15, v15, v14
    v_lshlrev_b32 v15, 7, v15
    v_lshl_add_u32 v15, v14, 9, v15
    v_and_b32 v14, 7, v{vLANE}
    v_lshl_add_u32 v10, v14, 4, v15
    v_xor_b32 v11, {4096+16}, v10
    v_xor_b32 v12, {8192+32}, v10
    v_xor_b32 v13, {12288+48}, v10
    s_lshl_b32 s37, s{sWAVE}, 10
    s_add_u32 s36, s36, s37
    s_add_u32 m0, s37, {KB}
    s_waitcnt lgkmcnt(0)''')
    ts(1)
    e(f's_add_u32 s40, s{sK}, s36\ns_addc_u32 s41, s{sK+1}, 0')
    for t in range(16):
        if 'k' not in cfg.skip: e(f'global_load_lds_dwordx4 v{10+t%4}, s[40:41] {cfg.nt}')
        if t < 15: e('s_add_u32 m0, m0, 4096')
        if t % 4 == 3 and t < 15: sadd64(40, 40, 16384)
        elif t < 15: e('s_nop 0')
    e(f'''v_mov_b32 v12, 0
    v_mov_b32 v13, 0
    s_barrier''')
    ts(2)
    e(f'''s_mov_b32 s4, s34
    s_mov_b32 s5, s35
    s_cmp_ge_u32 s35, 7
    s_cselect_b32 s8, 1, 0
    s_cselect_b32 s9, 7, 0
    s_sub_u32 s9, s35, s9
    s_lshl_b32 s36, s34, 1
    s_add_u32 s8, s8, s36''')
    gemv_consts()
    e(f's_cmp_lg_u32 s{sWAVE}, 0')
    br('s_cbranch_scc1', 'L_Xni')
    e(f'''v_lshlrev_b32 v11, 3, v{vLANE}
    ds_write_b64 v11, v[12:13] offset:{ZR}
    v_mov_b32 v12, 0xff800000
    v_mov_b32 v13, 0xff800000
    v_mov_b32 v11, 0
    ds_write_b64 v11, v[12:13] offset:{MX}''')
    label('L_Xni')
    e(f'''v_lshrrev_b32 v11, 3, v{vN}
    v_mul_u32_u24 v17, 640, v11
    v_lshlrev_b32 v18, 2, v11
    v_add_u32 v18, {MX}, v18
    v_and_b32 v19, 1, v{vN}
    v_lshl_add_u32 v17, v19, 6, v17
    v_lshl_add_u32 v17, v{vLG}, 4, v17
    v_bfe_u32 v20, v{vN}, 1, 2
    v_mov_b32 v21, {ZR}''')
    for T in range(4): e(f'v_cmp_eq_u32 vcc, {T}, v20\nv_cndmask_b32 v{12+T}, v21, v17, vcc')
    e(f'''s_lshr_b32 s36, s{sWAVE}, 1
    s_mul_i32 s36, s36, 640
    s_and_b32 s37, s{sWAVE}, 1
    s_lshl_b32 s37, s37, 8
    s_add_u32 s36, s36, s37
    v_lshlrev_b32 v16, 2, v{vLANE}
    v_add_u32 v16, s36, v16''')
    e(f'''v_lshrrev_b32 v21, 1, v{vLG}
    v_lshl_add_u32 v17, v11, 3, v21
    v_mul_u32_u24 v17, {PS}, v17
    v_lshl_add_u32 v17, v20, 5, v17
    v_and_b32 v21, 1, v{vLG}
    v_lshl_add_u32 v17, v21, 4, v17
    v_lshl_add_u32 v17, v19, 3, v17
    s_and_b32 s36, s{sWAVE}, 1
    s_mul_i32 s36, s36, {2*PS}
    s_lshr_b32 s37, s{sWAVE}, 1
    s_lshl_b32 s37, s37, 2
    s_add_u32 s36, s36, s37
    s_add_u32 s36, s36, {PT}
    v_add_u32 v17, s36, v17''')
    e(f'''v_lshl_add_u32 v21, v11, 2, v{vLG}
    v_xor_b32 v21, v21, v20
    v_lshlrev_b32 v21, 4, v21
    v_lshl_add_u32 v21, v20, 12, v21
    v_lshl_add_u32 v21, v19, 9, v21
    s_lshl_b32 s36, s{sWAVE}, 10
    s_add_u32 s36, s36, {KB}
    v_add_u32 v21, s36, v21
    v_lshlrev_b32 v22, 7, v19
    v_add_u32 v30, v21, v22
    v_sub_u32 v31, v21, v22
    s_lshl_b32 s36, s{sR0}, 2
    s_add_u32 s36, s36, s{sWAVE}
    s_lshl_b32 s36, s36, 8
    s_add_u32 s36, s36, {M2}
    s_add_u32 s16, s{sWS}, s36
    s_addc_u32 s17, s{sWS+1}, 0
    s_mov_b32 s18, 0xaaaaaaaa
    s_mov_b32 s19, 0xaaaaaaaa
    s_waitcnt vmcnt(0)''')
    ts(3)
    for T in range(4):
        for sg in range(4):
            r = 64 + 16 * T + 4 * sg
            if 'k' in cfg.skip:
                for q in range(4): e(f'v_mov_b32 v{r+q}, 0')
            else: e(f'ds_read_b128 v[{r}:{r+3}], v{30+sg%2} offset:{T*16384 + sg*128}')
    top = lab('qg'); rt = lab('qr'); out = lab('qo')
    label(top)
    for i in range(4): e(f's_load_dwordx16 s[{32+16*i}:{47+16*i}], s[16:17], {64*i} glc')
    e('''s_waitcnt lgkmcnt(0)
    s_max_u32 s20, s35, s63
    s_max_u32 s21, s67, s95
    s_max_u32 s20, s20, s21
    s_cmp_eq_u32 s20, -1''')
    br('s_cbranch_scc1', rt)
    for i in range(64): e(f'v_writelane_b32 v22, s{32+i}, {i}')
    e('v_cmp_eq_u32 vcc, -1, v22')
    br('s_cbranch_vccz', out)
    label(rt)
    retry(top)
    label(out)
    ts(4)
    e('ds_write_b32 v16, v22\ns_waitcnt lgkmcnt(0)\ns_barrier')
    for T in range(4):
        for sg in range(4):
            r = 128 + 16 * T + 4 * sg
            e(f'ds_read_b128 v[{r}:{r+3}], v{12+T} offset:{sg*128}')
    for i in range(16):
        e(f's_waitcnt lgkmcnt({min(15-i, 15)})' if i < 15 else 's_waitcnt lgkmcnt(0)')
        e(f'v_mfma_f32_16x16x32_bf16 v[24:27], v[{64+4*i}:{67+4*i}], v[{128+4*i}:{131+4*i}], ' + ('0' if i == 0 else 'v[24:27]'))
    e('''v_permlane32_swap_b32 v24, v25
    v_permlane32_swap_b32 v26, v27
    v_cndmask_b32 v28, v24, v27, s[18:19]
    v_cndmask_b32 v29, v26, v25, s[18:19]
    v_add_f32_dpp v28, v29, v28 quad_perm:[1,0,3,2] row_mask:0xf bank_mask:0xf''')
    rnd(28, 28)
    e('ds_max_f32 v18, v28\ns_waitcnt lgkmcnt(0)\ns_barrier\nds_read_b32 v29, v18\ns_waitcnt lgkmcnt(0)')
    e(f'''v_sub_f32 v28, v28, v29
    v_mul_f32 v28, {fl(0.0625*LOG2E)}, v28
    v_exp_f32 v28, v28
    v_cvt_pk_bf16_f32 v28, v28, v28
    v_and_b32 v29, 0xffff, v28
    v_and_b32 v28, 0xffff0000, v28
    ds_write2_b32 v17, v29, v28 offset0:0 offset1:{PS}
    s_waitcnt lgkmcnt(0)
    s_barrier''')
    ts(5)
    e(f's_cmp_lg_u32 s{sWAVE}, 0')
    br('s_cbranch_scc1', 'L_Xns')
    e(f'''v_lshrrev_b32 v30, 5, v{vLANE}
    v_lshlrev_b32 v31, 2, v30
    ds_read_b32 v32, v31 offset:{MX}
    v_bfe_u32 v31, v{vLANE}, 3, 2
    v_lshl_add_u32 v31, v30, 3, v31
    v_mul_u32_u24 v31, {PS}, v31
    v_and_b32 v33, 7, v{vLANE}
    v_lshl_add_u32 v31, v33, 4, v31
    ds_read_b128 v[36:39], v31 offset:{PT+4*PS}
    s_lshl_b32 s36, s{sR0}, 7
    s_add_u32 s36, s36, {ST}
    v_lshlrev_b32 v30, 3, v30
    v_add_u32 v30, s36, v30
    s_waitcnt lgkmcnt(0)
    v_pk_add_f32 v[36:37], v[36:37], v[38:39]
    v_add_f32 v33, v36, v37''')
    rowsum(33)
    e('v_mov_b32 v34, v33\nv_permlane16_swap_b32 v33, v34\nv_add_f32 v33, v33, v34')
    exec_set(0x0000000100000001)
    e(f'global_store_dwordx2 v30, v[32:33], s[{sWS}:{sWS+1}] sc1')
    exec_set((1 << 64) - 1)
    label('L_Xns')
    e('s_cmp_ge_u32 s5, 14')
    br('s_cbranch_scc1', 'L_Xfin')
    e(f'''v_lshl_add_u32 v30, v{vLG}, 2, v{vN}
    v_and_b32 v30, 15, v30
    v_lshlrev_b32 v30, 7, v30
    s_lshl_b32 s36, s4, 11
    s_and_b32 s37, s8, 1
    s_lshl_b32 s37, s37, 3
    s_add_u32 s36, s36, s37
    s_add_u32 s36, s36, {ST}
    v_add_u32 v30, s36, v30
    v_lshlrev_b32 v31, 12, v{vLG}
    v_lshl_add_u32 v31, v{vN}, 4, v31
    s_lshl_b32 s36, s8, 14
    s_lshl_b32 s37, s{sWAVE}, 8
    s_add_u32 s36, s36, s37
    s_add_u32 s36, s36, {M3}
    v_add_u32 v31, s36, v31''')
    red_waddr(21, 22, 320, XRED)
    quad_raddr(23, 22, XRED)
    e(f'''s_mul_i32 s36, s8, 1792
    s_lshl_b32 s37, s9, 8
    s_add_u32 s36, s36, s37
    s_add_u32 s36, s36, {M4}
    v_lshlrev_b32 v20, 2, v{vLANE}
    v_add_u32 v20, s36, v20
    s_lshl_b32 s36, s{sWAVE}, 13
    s_add_u32 s36, s36, {WOB}
    v_lshl_add_u32 v19, v{vLANE}, 4, s36''')
    top = lab('sg'); out = lab('sgo')
    label(top)
    e(f'global_load_dwordx2 v[32:33], v30, s[{sWS}:{sWS+1}] sc1\ns_waitcnt vmcnt(0)\nv_cmp_u_f32 vcc, v32, v33')
    br('s_cbranch_vccz', out)
    retry(top)
    label(out)
    e('v_mov_b32 v34, v32')
    rowsum(34, 'max')
    e(f'''v_sub_f32 v32, v32, v34
    v_mul_f32 v32, {fl(0.0625*LOG2E)}, v32
    v_exp_f32 v32, v32
    v_mul_f32 v33, v33, v32''')
    rowsum(33)
    e('v_rcp_f32 v33, v33\nv_mul_f32 v32, v32, v33')
    for t in range(4): e(f'v_mov_b32_dpp v{36+t}, v32 row_newbcast:{t} row_mask:0xf bank_mask:0xf')
    ts(6)
    e('s_barrier')
    ts(7)
    for t in range(8): e(f'ds_read_b128 v[{192+4*t}:{195+4*t}], v19 offset:{t*1024}')
    top = lab('og'); out = lab('ogo')
    label(top)
    for t in range(4): e(f'global_load_dwordx4 v[{128+4*t}:{131+4*t}], v31, s[{sWS}:{sWS+1}] offset:{t*1024} sc1')
    e('s_waitcnt vmcnt(0)')
    for t in range(4):
        b = 36 + (t & ~1)
        for h in (0, 2):
            if t == 0:
                e(f'v_pk_mul_f32 v[{40+h}:{41+h}], v[{128+h}:{129+h}], v[{b}:{b+1}] op_sel_hi:[1,0]')
            else:
                sel = 'op_sel_hi:[1,0,1]' if t % 2 == 0 else 'op_sel:[0,1,0] op_sel_hi:[1,1,1]'
                e(f'v_pk_fma_f32 v[{40+h}:{41+h}], v[{128+4*t+h}:{129+4*t+h}], v[{b}:{b+1}], v[{40+h}:{41+h}] {sel}')
    red4rows(40)
    e('v_cmp_u_f32 vcc, v40, v40')
    br('s_cbranch_vccz', out)
    retry(top)
    label(out)
    ts(8)
    e('v_cvt_pk_bf16_f32 v40, v40, v40\ns_waitcnt lgkmcnt(0)')
    gemv([(40, 2 * t, 192 + 4 * t, None) for t in range(8)], acc=24, val=44, A=48)
    red_write(24, 21)
    e('s_waitcnt lgkmcnt(0)\ns_barrier')
    e(f's_cmp_lg_u32 s{sWAVE}, 0')
    br('s_cbranch_scc1', 'L_Xfin')
    quad_reduce(23, 32, 2)
    exec_set(0x1111111111111111)
    e(f'global_store_dwordx4 v20, v[32:35], s[{sWS}:{sWS+1}] sc1')
    exec_set((1 << 64) - 1)
    label('L_Xfin')
    wave_end()
    ts_pend = list(pend)
    L.append('L_XV:')
    e(f's_cmp_eq_u32 s{sWAVE}, 7')
    L.append('s_cbranch_scc1 ' + ('L_pf' if cfg.pf else 'L_exit'))
    e(f's_cmp_eq_u32 s{sWAVE}, 6')
    L.append('s_cbranch_scc1 L_Xclr')
    e(f'''v_lshlrev_b32 v10, 9, v{vLG}
    v_lshl_add_u32 v10, v{vN}, 4, v10
    s_and_b32 s38, s{sWAVE}, 1
    s_lshl_b32 s37, s38, 8
    s_add_u32 s36, s36, s37
    s_add_u32 s36, s36, 4096
    v_lshrrev_b32 v11, 3, v{vN}
    v_lshl_add_u32 v11, v11, 2, v{vLG}
    v_mul_u32_u24 v11, 896, v11
    v_and_b32 v12, 7, v{vN}
    v_lshl_add_u32 v11, v12, 4, v11
    s_cmp_ge_u32 s35, 7
    s_cselect_b32 s42, 1, 0
    s_cselect_b32 s43, 7, 0
    s_sub_u32 s43, s35, s43
    s_lshl_b32 s44, s34, 1
    s_add_u32 s42, s42, s44
    s_lshl_b32 s42, s42, 1
    s_add_u32 s42, s42, s38
    s_mul_i32 s42, s42, {128*896}
    s_lshl_b32 s43, s43, 7
    s_add_u32 s42, s42, s43
    s_cmp_lt_u32 s35, 14
    s_cselect_b32 s42, s42, 0
    s_cselect_b32 s44, 7168, 0
    s_cselect_b32 s45, -1, 0
    v_and_b32 v11, s45, v11
    s_lshl_b32 s45, s38, 14
    s_add_u32 m0, s45, {WOB}
    s_waitcnt lgkmcnt(0)''')
    ts(1)
    e(f'''s_add_u32 s40, s{sV}, s36
    s_addc_u32 s41, s{sV+1}, 0
    s_add_u32 s42, s{sWO}, s42
    s_addc_u32 s43, s{sWO+1}, 0''')
    ts_sync()
    e('s_barrier')
    for u in range(32):
        if u and u % 4 == 0: sadd64(40, 40, 8192)
        ld(f'global_load_dwordx4 v[{64+4*u}:{67+4*u}], v10, s[40:41] offset:{(u%4)*2048-4096} {cfg.nt}', 'v')
    nwo = 0 if 'o' in cfg.skip else 16
    for t in range(nwo):
        e(f'global_load_lds_dwordx4 v11, s[42:43] {cfg.nt}')
        if t < 15: e('s_add_u32 m0, m0, 1024\ns_add_u32 s42, s42, s44\ns_addc_u32 s43, s43, 0')
    ts(2)
    gemv_consts()
    e(f'''v_lshrrev_b32 v11, 3, v{vN}
    v_and_b32 v12, 1, v{vN}
    v_lshl_add_u32 v11, v11, 1, v12
    v_lshl_add_u32 v11, v11, 2, v{vLG}
    v_mul_u32_u24 v11, {PS}, v11
    v_lshrrev_b32 v12, 1, v{vLG}
    v_lshlrev_b32 v12, 14, v12
    v_lshl_add_u32 v12, v{vN}, 5, v12
    v_and_b32 v13, 1, v{vLG}
    v_lshl_add_u32 v12, v13, 4, v12
    s_lshl_b32 s36, s34, 15
    s_lshl_b32 s37, s35, 10
    s_add_u32 s36, s36, s37
    s_lshl_b32 s37, s38, 9
    s_add_u32 s36, s36, s37
    s_add_u32 s36, s36, {M3}
    v_add_u32 v12, s36, v12''')
    ts_sync()
    e('s_barrier\ns_barrier\ns_barrier')
    ts(5); ts_sync()
    for k in range(8): e(f'ds_read_b128 v[{192+4*k}:{195+4*k}], v11 offset:{PT+16*k}')
    e('s_waitcnt lgkmcnt(7)')
    pkmul(16, 192)
    for u in range(32):
        if u + 1 < 32:
            if (u + 1) % 4 == 0: L.append(f's_waitcnt lgkmcnt({7-(u+1)//4})')
            pkmul(16 + 4 * ((u + 1) % 2), 192 + u + 1)
        e(f's_waitcnt vmcnt({31-u+nwo})')
        A = 16 + 4 * (u % 2)
        e(f'v_mfma_f32_16x16x32_bf16 v[24:27], v[{A}:{A+3}], v[{64+4*u}:{67+4*u}], ' + ('0' if u == 0 else 'v[24:27]'))
    e(f'global_store_dwordx4 v12, v[24:27], s[{sWS}:{sWS+1}] sc1')
    ts(7)
    e('s_waitcnt vmcnt(1)')
    e('s_cmp_ge_u32 s35, 14')
    br('s_cbranch_scc1', 'L_Vfin')
    e('s_barrier')
    label('L_Vfin')
    wave_end()
    ts_pend = []
    L.append('L_Xclr:')
    e(f'''s_setprio 3
    v_mov_b32 v12, -1
    v_mov_b32 v13, -1
    v_mov_b32 v14, -1
    v_mov_b32 v15, -1
    v_lshlrev_b32 v10, 4, v{vLANE}
    s_lshl_b32 s36, s{sR0}, 10
    s_add_u32 s36, s36, {M2}
    v_add_u32 v16, s36, v10
    s_lshl_b32 s36, s34, 15
    s_lshl_b32 s37, s35, 10
    s_add_u32 s36, s36, s37
    s_add_u32 s36, s36, {M3}
    v_add_u32 v17, s36, v10
    v_add_u32 v18, 16384, v17
    s_mul_i32 s36, s34, 3584
    s_lshl_b32 s37, s35, 8
    s_add_u32 s36, s36, s37
    s_add_u32 s36, s36, {M4}
    v_add_u32 v19, s36, v10
    s_lshl_b32 s36, s{sR0}, 7
    s_add_u32 s36, s36, {ST}
    v_mov_b32 v20, s36
    v_cmp_gt_u32 vcc, 16, v{vLANE}
    v_cndmask_b32 v19, v20, v19, vcc
    s_mov_b32 s36, 0x10000
    s_cmp_lt_u32 s35, 14
    s_cselect_b32 s36, 0x1ffff, s36''')
    tg_addr(10)
    L.append('s_waitcnt lgkmcnt(0)')
    load_epoch()
    for r in (16, 17, 18): e(f'global_store_dwordx4 v{r}, v[12:15], s[{sWS}:{sWS+1}] sc1')
    e(f'''s_mov_b32 exec_lo, s36
    s_mov_b32 exec_hi, 0
    global_store_dwordx4 v19, v[12:15], s[{sWS}:{sWS+1}] sc1
    s_mov_b64 exec, -1''')
    L.append('s_waitcnt vmcnt(0) lgkmcnt(0)')
    make_tag(); tg_store(10, 11)
    if cfg.dbg: ts(2)
    e('s_barrier')
    if cfg.dbg:
        wave_end()
    else: e('s_endpgm')

def tsdump():
    L.append('L_tsdump:')
    e(f'''s_lshl_b32 s32, s2, 3
    s_add_u32 s32, s32, s{sWAVE}
    s_lshl_b32 s32, s32, 6
    s_add_u32 s32, s32, {TSB}
    v_lshlrev_b32 v10, 2, v{vLANE}
    v_add_u32 v10, s32, v10
    s_mov_b64 exec, 0xffff
    global_store_dword v10, v{VTS}, s[{sWS}:{sWS+1}]
    s_endpgm''')

pend = prologue()
role_X(pend)
role_A(pend)
role_B(pend)
role_G()
if cfg.dbg: tsdump()
L.append('L_end:')
L.append('s_endpgm')
body, nn = fix(L)
for p in taint_check(body): sys.stderr.write(f'TAINT {p}\n')
if taint_check(body): sys.exit(1)
hdr = open('adaLN_cond__sliding_block_cached__geglu_ffn__decode.s.ref').read().split('; Override launch')[0]
out = hdr + '; generated by gen.py (persistent fused kernel, one workgroup per CU)\n'
out += f'; @launch grid=(256,1,1) block=(512,1,1) lds={LDS_BYTES}\n'
out += f'.amdgcn_target "amdgcn-amd-amdhsa--gfx950"\n.text\n.globl {KN}\n.p2align 8\n.type {KN},@function\n{KN}:\n'
out += '\n'.join(l if l.endswith(':') else '    ' + l for l in body) + '\n'
out += f'''.section .rodata,"a"
.p2align 6
.amdhsa_kernel {KN}
  .amdhsa_next_free_vgpr 224
  .amdhsa_next_free_sgpr 102
  .amdhsa_accum_offset 224
  .amdhsa_group_segment_fixed_size 0
  .amdhsa_kernarg_size 112
  .amdhsa_user_sgpr_count 2
  .amdhsa_user_sgpr_kernarg_segment_ptr 1
  .amdhsa_system_sgpr_workgroup_id_x 1
  .amdhsa_float_denorm_mode_32 3
.end_amdhsa_kernel
'''
sys.stdout.write(out)
sys.stderr.write(f'instructions {len(body)} nops {nn}\n')
```

```python
import re
TRANS = ('v_exp_f32','v_log_f32','v_rcp_f32','v_rsq_f32','v_sqrt_f32','v_sin_f32','v_cos_f32','v_rcp_iflag_f32')
def regs_of(tok):
    tok = tok.strip()
    neg = tok.lstrip('-')
    m = re.fullmatch(r'abs\((.*)\)', neg)
    if m: neg = m.group(1)
    m = re.fullmatch(r'\|(.*)\|', neg)
    if m: neg = m.group(1)
    m = re.fullmatch(r'([vsa])(\d+)', neg)
    if m: return [(m.group(1), int(m.group(2)))]
    m = re.fullmatch(r'([vsa])\[(\d+):(\d+)\]', neg)
    if m: return [(m.group(1), i) for i in range(int(m.group(2)), int(m.group(3))+1)]
    if neg == 'vcc': return [('s','vcc')]
    if neg in ('vcc_lo','vcc_hi'): return [('s','vcc')]
    if neg == 'exec': return [('s','exec')]
    return []
class I:
    def __init__(self, text):
        self.text = text
        t = text.split(';')[0].strip()
        self.label = t.endswith(':')
        self.op = '' if self.label else t.split()[0]
        rest = '' if self.label else t[len(self.op):].strip()
        parts = [p.strip() for p in rest.split(',')] if rest else []
        ops = []; cur = ''
        for p in parts:
            cur = (cur + ',' + p) if cur else p
            if cur.count('[') == cur.count(']') and cur.count('(') == cur.count(')'):
                ops.append(cur); cur = ''
        self.mods = ''
        if ops:
            last = ops[-1].split(None, 1)
            ops[-1] = last[0]
            if len(last) > 1: self.mods = last[1]
        self.ops = ops
        op = self.op
        self.valu = op.startswith('v_') and not op.startswith('v_mfma')
        self.mfma = op.startswith('v_mfma')
        self.vmem = op.startswith(('global_','buffer_','flat_'))
        self.ds = op.startswith('ds_')
        self.dpp = op.endswith('_dpp') or any(k in self.mods for k in ('quad_perm','row_','wave_'))
        self.perml = op.startswith('v_permlane')
        self.trans = op.replace('_e32','').replace('_e64','') in TRANS
        self.rdlane = op.startswith(('v_readlane','v_readfirstlane'))
        self.wrlane = op.startswith('v_writelane')
        self.branch = op.startswith(('s_branch','s_cbranch'))
        self.wr = []; self.rd = []
        R = [regs_of(o) for o in ops]
        if self.valu or self.mfma:
            nd = 1
            if self.perml: self.wr = R[0]+R[1]; self.rd = R[0]+R[1]
            else:
                if re.match(r'v_(add|sub|subrev|addc|subb|subbrev)_co_', op) or op.startswith(('v_div_scale','v_mad_u64_u32','v_mad_i64_i32')): nd = 2
                for r in R[:nd]: self.wr += r
                for r in R[nd:]: self.rd += r
                if op.startswith(('v_fmac','v_mac','v_pk_fmac','v_dot2c')) or self.dpp or self.wrlane or 'sdwa' in op: self.rd += R[0]
                if op.startswith('v_cndmask') and len(ops) == 3: self.rd += [('s','vcc')]
                if op.startswith('v_cmpx'): self.wr += [('s','exec')]
        elif self.vmem:
            if 'load' in op and 'lds' not in op:
                self.wr = R[0];
                for r in R[1:]: self.rd += r
            else:
                for r in R: self.rd += r
            self.store_wide = ('store' in op) and op.endswith(('x3','x4'))
            self.store_data = (R[1] if op.startswith(('global_','flat_')) else R[0]) if 'store' in op else []
        elif self.ds:
            if op.startswith(('ds_read','ds_bpermute','ds_permute','ds_swizzle')) or '_rtn' in op:
                self.wr = R[0]
                for r in R[1:]: self.rd += r
            else:
                for r in R: self.rd += r
        else:
            if op.startswith(('s_cmp','s_bitcmp','s_waitcnt','s_nop','s_barrier','s_sleep','s_setprio','s_endpgm')) or self.branch:
                for r in R: self.rd += r
            elif R:
                self.wr = R[0]
                for r in R[1:]: self.rd += r
        self.states = 1
        if op == 's_nop': self.states = int(ops[0], 0) + 1

HOR = 20
def need(ins, st):
    n = 0
    def req(key, k):
        nonlocal n
        if key in st: n = max(n, k - st[key])
    vr = [r for r in ins.rd if r[0] in 'va']; sr = [r for r in ins.rd if r[0] == 's']
    vw = [r for r in ins.wr if r[0] in 'va']
    if (ins.valu or ins.vmem or ins.ds or ins.mfma) and not ins.op.startswith('v_dot'):
        for r in vr + vw: req(('dw',r), 3)
    if ins.valu:
        for r in vr:
            if ins.dpp or ins.perml: req(('vw',r), 2)
            if ins.rdlane: req(('vw',r), 1)
            req(('tw',r), 1); req(('ow',r), 1)
            req(('md',r), 8)
        for r in sr:
            req(('sw',r), 4 if (ins.rdlane or ins.wrlane) else 2)
        for r in vw:
            req(('md',r), 8); req(('mc',r), 3); req(('sd',r), 2); req(('ow',r), 1)
        if ins.dpp: req(('sw',('s','exec')), 5)
    if ins.mfma:
        D = regs_of(ins.ops[0]); A = regs_of(ins.ops[1]); B = regs_of(ins.ops[2]); C = regs_of(ins.ops[3])
        for r in A+B+C: req(('vw',r), 2)
        for r in A+B: req(('md',r), 8)
        for r in C:
            if ('md',r) in st and st.get(('mdx',r,C[0],len(C)), 99) != st[('md',r)]: req(('md',r), 6)
        for r in D:
            if r not in C: req(('md',r), 8)
            req(('sd',r), 2)
    if ins.vmem and 'lds' in ins.op: req(('m0',), 1)
    if ins.vmem or ins.ds:
        for r in vr: req(('md',r), 8)
        for r in vw: req(('md',r), 8); req(('sd',r), 1)
        if ins.vmem:
            for r in sr: req(('sw',r), 5)
    return n
def step(ins, st, states):
    ns = {k: v+states for k, v in st.items() if v+states < HOR}
    if ins is None: return ns
    if ins.valu:
        for r in ins.wr:
            if r[0] in 'va':
                ns[('vw',r)] = 0
                if ins.op.startswith('v_dot'): ns[('dw',r)] = 0
                if ins.trans: ns[('tw',r)] = 0
                else: ns.pop(('tw',r), None)
                if ('sdwa' in ins.op and 'dst_sel' in ins.mods and 'dst_sel:DWORD' not in ins.mods) or (ins.op.startswith('v_pk_') is False and 'op_sel' in ins.mods): ns[('ow',r)] = 0
            else: ns[('sw',r)] = 0
    if ins.op.startswith('s_') and ins.ops and ins.ops[0] == 'm0': ns[('m0',)] = 0
    if ins.mfma:
        D = regs_of(ins.ops[0]); C = regs_of(ins.ops[3])
        for r in D:
            ns[('md',r)] = 0; ns[('mdx',r,D[0],len(D))] = 0
        for r in C: ns[('mc',r)] = 0
    if ins.vmem and getattr(ins,'store_wide',False):
        for r in ins.store_data: ns[('sd',r)] = 0
    return ns
def merge(a, b):
    if a is None: return dict(b)
    o = dict(a)
    for k, v in b.items():
        if k[0] == 'mdx':
            continue
        o[k] = min(o.get(k, 99), v)
    for k in list(o):
        if k[0] == 'mdx' and (k not in b or k not in a or a[k] != b[k]): del o[k]
    return o
def fix(lines):
    lines = list(lines)
    total = 0
    while True:
        ins = [I(l) for l in lines]
        at = {}
        changed = True
        for it in range(6):
            st = {}; new = {}
            dead = False
            for x in ins:
                if x.label:
                    nm = x.text.split(';')[0].strip()[:-1]
                    s = None if dead else st
                    if nm in at: s = merge(s, at[nm])
                    st = s or {}; dead = False
                    continue
                k = need(x, st)
                st = step(None, st, k) if k > 0 else st
                st = step(x, st, x.states)
                if x.branch:
                    t = x.ops[0]; new[t] = merge(new.get(t), st)
                    if x.op == 's_branch': dead = True
                if x.op == 's_endpgm': dead = True
            if new == at: break
            at = new
        out = []; st = {}; dead = False; ins_n = 0
        for x in ins:
            if x.label:
                nm = x.text.split(';')[0].strip()[:-1]
                s = None if dead else st
                if nm in at: s = merge(s, at[nm])
                st = s or {}; dead = False
                out.append(x.text); continue
            k = need(x, st)
            if k > 0:
                out.append(f's_nop {k-1}'); st = step(None, st, k); ins_n += 1
            out.append(x.text)
            st = step(x, st, x.states)
            if x.op == 's_branch' or x.op == 's_endpgm': dead = True
        lines = out; total += ins_n
        if ins_n == 0: break
    return lines, total

def taint_check(lines):
    ins = [I(l) for l in lines]
    allr = set([('v',i) for i in range(1,256)] + [('s',i) for i in range(3,104)] + [('s','vcc')])
    at = {}
    probs = set()
    for it in range(40):
        st = set(allr); new = {k: set(v) for k, v in at.items()}; dead = False; probs = set()
        for idx, x in enumerate(ins):
            if x.label:
                nm = x.text.split(';')[0].strip()[:-1]
                if dead: st = set(at.get(nm, set()))
                else: st |= at.get(nm, set())
                dead = False
                continue
            R = [regs_of(o) for o in x.ops]
            addr = []
            if x.vmem:
                if 'lds' in x.op: addr = R[0] + R[1]
                elif 'load' in x.op: addr = R[1] + R[2]
                else: addr = R[0] + R[2]
            elif x.ds:
                addr = R[1] if x.wr else R[0]
            elif x.op.startswith('s_load'):
                addr = R[1] + R[2]
            for r in addr:
                if r in st: probs.add((idx, x.text, r))
            if (x.vmem or x.ds or x.mfma):
                for r in x.wr: st.add(r)
            elif x.op.startswith('s_load'):
                k = x.ops[1] == 's[0:1]'
                for r in x.wr: (st.discard(r) if k else st.add(r))
            elif x.op.startswith('s_memrealtime') or x.op.startswith('s_memtime'):
                for r in x.wr: st.add(r)
            else:
                rd = [r for r in x.rd if r != ('s','exec')]
                t = any(r in st for r in rd)
                if x.op.startswith(('s_addc','s_cselect')) : pass
                for r in x.wr:
                    if r == ('s','exec'): continue
                    (st.add(r) if t else st.discard(r))
            if x.branch:
                tg = x.ops[0]; new[tg] = new.get(tg, set()) | st
                if x.op == 's_branch': dead = True
            if x.op == 's_endpgm': dead = True
        if new == at: break
        at = new
    return sorted(probs)
```

```python
import sys, math, struct, re
from hz import fix, taint_check
KN = 'adaLN_cond__sliding_block_cached__geglu_ffn__decode_kernel'

class Cfg:
    dbg = 0
    nt = 'nt'
    pf = 1
    warm = 1
    kvbar = 1
    efrev = 1
    outpol = ''
    skip = ''
    aearly = 1
    order = 'HBX'
    hd = 0
cfg = Cfg()
for a in sys.argv[1:]:
    k, v = a.split('=')
    assert hasattr(cfg, k), k
    setattr(cfg, k, int(v) if v.lstrip('-').isdigit() else v)
if cfg.nt == 'none': cfg.nt = ''
if cfg.hd: cfg.dbg = 1
ROLE = ['P']
HD = {('P',0):'st', ('B',4):8, ('B',5):9, ('X',4):10, ('X',7):11, ('D',10):12, ('E',7):13, ('E',11):14, ('G',14):15}

M1C = 0xD0000; M1 = 0x0000; EPO = 0x3C00; FL = 0x4000; M6 = 0x6000; M4 = 0xE000; ST = 0x12000; M5 = 0x18000; M3 = 0x50000; M2 = 0x90000
TSB = 0x100000
LOG2E = 1.4426950408889634
def fl(x): return hex(struct.unpack('<I', struct.pack('<f', x))[0])

L = []
def e(s):
    for line in s.split('\n'):
        line = line.strip()
        if line:
            L.append(line)
            if cfg.dbg and line.startswith('s_waitcnt') and 'lgkmcnt(0)' in line: ts_flush()
_lab = [0]
def lab(b):
    _lab[0] += 1
    return f'L_{b}_{_lab[0]}'
def ld(s, tag):
    if tag in cfg.skip:
        a = int(re.search(r'v\[(\d+):', s).group(1))
        for r in range(4): e(f'v_mov_b32 v{a+r}, 0')
    else: e(s)

ts_pend = []
VTS = 5
def ts(k):
    if not cfg.dbg: return
    if cfg.hd:
        k = HD.get((ROLE[0], k))
        if k is None: return
    if len(ts_pend) == (1 if cfg.hd else 2): e('s_waitcnt lgkmcnt(0)')
    used = [p for p, _ in ts_pend]
    p = 98 if 98 not in used else 100
    L.append(f's_memrealtime s[{p}:{p+1}]')
    ts_pend.append((p, k))
def ts_flush():
    global ts_pend
    pend, ts_pend = ts_pend, []
    for p, k in pend:
        if k == 'st':
            L.append(f's_not_b32 s{p}, s{p}'); L.append(f's_and_b32 m0, s2, 7'); L.append('s_nop 0'); L.append(f'v_writelane_b32 v{VTS}, s{p}, m0')
            L.append('s_mov_b64 s[100:101], s[28:29]')
        else: L.append(f'v_writelane_b32 v{VTS}, s{p}, {k}')
def ts_sync():
    if cfg.dbg and ts_pend: e('s_waitcnt lgkmcnt(0)')
def wave_end():
    if cfg.dbg:
        ts(15); ts_sync()
        e('s_branch L_tsdump')
    else:
        e('s_endpgm')
def br(op, target):
    ts_sync(); e(f'{op} {target}')
def label(name):
    ts_sync(); e(f'{name}:')

sX, sK, sV, sWQ, sWO, sGT, sUP, sDN, sC, sWM, sOUT, sDBG, sWS = 4, 6, 8, 10, 12, 16, 18, 20, 22, 24, 26, 28, 30
sWAVE = 3; sCNT = 96; sR0 = 97
sTAG = 14
sT1, sT2, sT3 = 28, 29, 15
sP01, sP23 = 22, 23
vLANE, vLG, vN, vHM, vCJ = 1, 2, 3, 4, 6
WS = f's[{sWS}:{sWS+1}]'
ALL = (1 << 64) - 1

def exec_set(mask):
    lo = mask & 0xffffffff; hi = mask >> 32
    if mask == ALL: e('s_mov_b64 exec, -1')
    elif hi == 0 and lo < 0x80000000: e(f's_mov_b64 exec, {hex(lo)}')
    else:
        e(f's_mov_b32 exec_lo, {hex(lo)}'); e(f's_mov_b32 exec_hi, {hex(hi)}')
def rnd(dst, src, tmp=None):
    tmp = dst if tmp is None else tmp
    e(f'v_cvt_pk_bf16_f32 v{tmp}, v{src}, v{src}')
    e(f'v_and_b32 v{dst}, 0xffff0000, v{tmp}')
def red4rows(c):
    e(f'''v_permlane32_swap_b32 v{c}, v{c+2}
    v_permlane32_swap_b32 v{c+1}, v{c+3}
    v_add_f32 v{c}, v{c}, v{c+2}
    v_add_f32 v{c+1}, v{c+1}, v{c+3}
    v_permlane16_swap_b32 v{c}, v{c+1}
    v_add_f32 v{c}, v{c}, v{c+1}''')
def red4rows_multi(cs):
    for c in cs: e(f'v_permlane32_swap_b32 v{c}, v{c+2}\nv_permlane32_swap_b32 v{c+1}, v{c+3}')
    for c in cs: e(f'v_add_f32 v{c}, v{c}, v{c+2}\nv_add_f32 v{c+1}, v{c+1}, v{c+3}')
    for c in cs: e(f'v_permlane16_swap_b32 v{c}, v{c+1}')
    for c in cs: e(f'v_add_f32 v{c}, v{c}, v{c+1}')
def dpp_op(dst, src, pat, op='add'):
    e(f'v_{op}_f32_dpp v{dst}, v{src}, v{src} {pat} row_mask:0xf bank_mask:0xf')
def rowsum(v, op='add'):
    for p in ('quad_perm:[1,0,3,2]', 'quad_perm:[2,3,0,1]', 'row_half_mirror', 'row_mirror'): dpp_op(v, v, p, op)
def xrows(v, t, op='add'):
    e(f'v_mov_b32 v{t}, v{v}\nv_permlane16_swap_b32 v{v}, v{t}\nv_{op}_f32 v{v}, v{v}, v{t}')
    e(f'v_mov_b32 v{t}, v{v}\nv_permlane32_swap_b32 v{v}, v{t}\nv_{op}_f32 v{v}, v{v}, v{t}')
def wavesum(v, t):
    rowsum(v); xrows(v, t)
def gemv_consts(t=60):
    e(f'''v_and_b32 v{t}, 1, v{vLANE}
    v_cmp_eq_u32 vcc, 1, v{t}
    v_mov_b32 v{t+1}, 0xffff
    v_mov_b32 v{t+2}, 0xffff0000
    v_cndmask_b32 v{vHM}, v{t+1}, v{t+2}, vcc
    v_bfe_u32 v{t}, v{vLANE}, 1, 2''')
    for j in range(4):
        e(f'v_cmp_eq_u32 vcc, {j}, v{t}\nv_cndmask_b32 v{vCJ+j}, 0, 1.0, vcc')
def pkmul(A, val):
    b = val & ~1
    sel = 'op_sel_hi:[0,1]' if val % 2 == 0 else 'op_sel:[1,0] op_sel_hi:[1,1]'
    e(f'v_pk_mul_f32 v[{A}:{A+1}], v[{b}:{b+1}], v[{vCJ}:{vCJ+1}] {sel}')
    e(f'v_pk_mul_f32 v[{A+2}:{A+3}], v[{b}:{b+1}], v[{vCJ+2}:{vCJ+3}] {sel}')
def gemv(steps, acc, val, A):
    n = len(steps)
    def andA(t): e(f'v_and_b32_dpp v{val+t%2}, v{steps[t][0]}, v{vHM} row_newbcast:{steps[t][1]} row_mask:0xf bank_mask:0x3')
    def andB(t): e(f'v_and_b32_dpp v{val+t%2}, v{steps[t][0]}, v{vHM} row_newbcast:{steps[t][1]+1} row_mask:0xf bank_mask:0xc')
    andA(0)
    if n > 1: andA(1)
    andB(0)
    for t in range(n):
        pkmul(A, val + t % 2)
        if t + 1 < n: andB(t + 1)
        if t + 2 < n: andA(t + 2)
        if steps[t][3]: e(steps[t][3])
        Ws = steps[t][2] if isinstance(steps[t][2], list) else [steps[t][2]]
        for q, W in enumerate(Ws):
            a = acc + 4 * q
            e(f'v_mfma_f32_16x16x32_bf16 v[{a}:{a+3}], v[{A}:{A+3}], v[{W}:{W+3}], ' + ('0' if t == 0 else f'v[{a}:{a+3}]'))
def fold(acc, tmp):
    for r in range(4): e(f'v_permlane32_swap_b32 v{acc+r}, v{tmp+r}')
    for r in range(4): e(f'v_add_f32_dpp v{acc+r}, v{tmp+r}, v{acc+r} row_ror:8 row_mask:0xf bank_mask:0xf')
def sadd64(d, s, imm):
    e(f's_add_u32 s{d}, s{s}, {imm}\ns_addc_u32 s{d+1}, s{s+1}, 0')
def retry(top):
    ts_sync()
    e(f's_sub_i32 s{sCNT}, s{sCNT}, 1\ns_cmp_gt_i32 s{sCNT}, 0\ns_cbranch_scc1 {top}')
def load_epoch():
    e(f's_load_dword s{sTAG}, {WS}, {EPO}')
def make_tag():
    e(f's_add_u32 s{sTAG}, s{sTAG}, 0x01010101')
def tag_consts(vff):
    e(f'''s_lshr_b32 s{sT1}, s{sTAG}, 8
    s_lshr_b32 s{sT2}, s{sTAG}, 16
    s_lshr_b32 s{sT3}, s{sTAG}, 24
    s_mov_b32 s{sP01}, 0x0c0c0400
    s_mov_b32 s{sP23}, 0x04000c0c
    v_mov_b32 v{vff}, 0xff''')
def tag4(d, vff):
    for r, s in enumerate((sTAG, sT1, sT2, sT3)): e(f'v_bfi_b32 v{d+r}, v{vff}, s{s}, v{d+r}')
def tag4r(d, vff, st):
    for r, s in enumerate((sTAG, sT1, sT2, sT3)): e(f'v_add_u32 v{d+r}, s{st+r}, v{d+r}')
    tag4(d, vff)
def tag4r_consts(st):
    for r, s in enumerate((sTAG, sT1, sT2, sT3)): e(f's_and_b32 s{st+r}, s{s}, 0xff\ns_sub_u32 s{st+r}, 0x80, s{st+r}')
def chk(gs, t):
    for i, g in enumerate(gs):
        e(f'v_perm_b32 v{t+2*i}, v{g+1}, v{g}, s{sP01}\nv_perm_b32 v{t+2*i+1}, v{g+3}, v{g+2}, s{sP23}')
    for i, g in enumerate(gs):
        e(f'v_bitop3_b32 v{t+2*i}, v{t+2*i}, v{t+2*i+1}, s{sTAG} bitop3:0x56')
    rest = [t + 2 * i for i in range(1, len(gs))]
    while rest:
        if len(rest) >= 2: e(f'v_or3_b32 v{t}, v{t}, v{rest[0]}, v{rest[1]}'); rest = rest[2:]
        else: e(f'v_or_b32 v{t}, v{t}, v{rest[0]}'); rest = []
    e(f'v_cmp_ne_u32 vcc, 0, v{t}')
def silu2(a, b):
    for r in (a, b): e(f'v_lshlrev_b32 v{r}, 16, v{r}')
    for r in (a, b): e(f'v_mul_f32 v{r+6}, {fl(-LOG2E)}, v{r}')
    for r in (a, b): e(f'v_exp_f32 v{r+6}, v{r+6}')
    for r in (a, b): e(f'v_add_f32 v{r+6}, 1.0, v{r+6}')
    for r in (a, b): e(f'v_rcp_f32 v{r+6}, v{r+6}')
    for r in (a, b): e(f'v_mul_f32 v{r}, v{r}, v{r+6}')
    for r in (a, b): e(f'v_cvt_pk_bf16_f32 v{r}, v{r}, v{r}')
def c_addr(a, b, skq, st):
    e(f'''s_mul_i32 s{st}, s{skq}, 112
    v_lshl_add_u32 v{a}, v{vN}, 2, v{vLG}
    v_add_lshl_u32 v{a}, s{st}, v{a}, 1
    v_add_u32 v{b}, 128, v{a}
    v_min_u32 v{b}, 894, v{b}''')
def w_addr(v, t, stride):
    e(f'v_lshrrev_b32 v{v}, 3, v{vN}\nv_lshl_add_u32 v{v}, v{v}, 2, v{vLG}')
    if stride & (stride - 1) == 0: e(f'v_lshlrev_b32 v{v}, {stride.bit_length()-1}, v{v}')
    else: e(f'v_mul_u32_u24 v{v}, {stride}, v{v}')
    e(f'v_and_b32 v{t}, 7, v{vN}\nv_lshl_add_u32 v{v}, v{t}, 4, v{v}')
RED = 0; STT = 5120; STL = 5376
VALID = 0xFF00FF0000FF00FF
def red_write(acc, vaddr):
    exec_set(VALID)
    e(f'ds_write_b128 v{vaddr}, v[{acc}:{acc+3}]')
    exec_set(ALL)
def red_waddr(dst, tmp, pstr):
    e(f'''v_lshrrev_b32 v{tmp}, 1, v{vLG}
    s_lshl_b32 s32, s{sWAVE}, 1
    v_add_u32 v{tmp}, s32, v{tmp}
    v_mul_u32_u24 v{dst}, {pstr}, v{tmp}
    v_and_b32 v{tmp}, 7, v{vN}
    v_lshl_add_u32 v{dst}, v{tmp}, 5, v{dst}
    v_and_b32 v{tmp}, 1, v{vLG}
    v_lshl_add_u32 v{dst}, v{tmp}, 4, v{dst}''')
def quad_raddr(dst, tmp):
    e(f'''v_and_b32 v{tmp}, 3, v{vLANE}
    v_mul_u32_u24 v{dst}, 320, v{tmp}
    v_lshrrev_b32 v{tmp}, 2, v{vLANE}
    v_lshl_add_u32 v{dst}, v{tmp}, 4, v{dst}''')
def pk_tree(d, n):
    s = 1
    while s < n:
        for i in range(0, n - s, 2 * s):
            for h in (0, 2):
                a = d + 4 * i + h; b = d + 4 * (i + s) + h
                e(f'v_pk_add_f32 v[{a}:{a+1}], v[{a}:{a+1}], v[{b}:{b+1}]')
        s *= 2
def quad_reduce(raddr, d):
    for i in range(4): e(f'ds_read_b128 v[{d+4*i}:{d+4*i+3}], v{raddr} offset:{i*1280}')
    e('s_waitcnt lgkmcnt(0)')
    pk_tree(d, 4)
    for p in ('quad_perm:[1,0,3,2]', 'quad_perm:[2,3,0,1]'):
        for r in range(4): dpp_op(d + r, d + r, p)

def prologue():
    e(f"""s_cmp_ge_u32 s2, 256
    s_cbranch_scc1 L_exit
    s_load_dwordx16 s[4:19], s[0:1], 0
    s_load_dwordx8 s[20:27], s[0:1], 64
    s_load_dwordx4 s[28:31], s[0:1], 96""")
    if cfg.dbg:
        e(f'v_mov_b32 v{VTS}, 0'); ts(0)
        if cfg.hd: ts_sync()
    e(f"""v_lshrrev_b32 v10, 6, v0
    v_and_b32 v{vLANE}, 63, v0
    v_readfirstlane_b32 s{sWAVE}, v10
    v_bfe_u32 v{vLG}, v0, 4, 2
    v_and_b32 v{vN}, 15, v0
    s_mov_b32 s{sCNT}, 400000
    s_and_b32 s0, s2, 7
    s_lshr_b32 s34, s2, 3
    s_and_b32 s1, s34, 7""")
    tests = {'X': ('s_cmp_lt_u32 s34, 16', 'L_X'), 'H': ('s_cmp_ge_u32 s34, 24', 'L_H'), 'B': ('s_bitcmp1_b32 0xff0000, s34', 'L_B')}
    for r in cfg.order[:0:-1]:
        e(tests[r][0]); L.append(f's_cbranch_scc1 {tests[r][1]}')
    return list(ts_pend)

SB = 0; HS = 2096; KB = 4608; OB = KB; LDS_BYTES = KB + 65536
def start_X(pend):
    global ts_pend
    ROLE[0] = 'X'
    L.append('L_X:'); ts_pend = list(pend)
    e(f"""s_lshl_b32 s36, s0, 22
    s_lshl_b32 s37, s34, 16
    s_add_u32 s36, s36, s37
    s_lshl_b32 s37, s{sWAVE}, 12
    s_add_u32 m0, s37, {KB}
    s_add_u32 s36, s36, s37
    s_add_u32 s36, s36, {6144*512}
    s_and_b32 s37, s{sWAVE}, 1
    s_lshl_b32 s37, s37, 3
    v_lshrrev_b32 v14, 5, v{vLANE}
    v_and_b32 v15, 31, v{vLANE}
    v_bitop3_b32 v15, v15, v14, s37 bitop3:0x96
    v_lshlrev_b32 v15, 4, v15
    v_lshl_add_u32 v10, v14, 9, v15
    v_xor_b32 v11, 32, v10
    v_xor_b32 v12, 64, v10
    v_xor_b32 v13, 96, v10
    v_lshlrev_b32 v14, 9, v{vLG}
    v_lshl_add_u32 v14, v{vN}, 4, v14
    s_waitcnt lgkmcnt(0)""")
    ts(1)
    e(f"""s_add_u32 s40, s{sK}, s36
    s_addc_u32 s41, s{sK+1}, 0
    s_add_u32 s42, s{sV}, s36
    s_addc_u32 s43, s{sV+1}, 0""")
    for t in range(8):
        if t == 4: e('s_add_u32 m0, m0, 32768'); sadd64(40, 40, 32768)
        if 'k' not in cfg.skip: e(f'global_load_lds_dwordx4 v{10+t%4}, s[40:41] offset:{1024*(t%4)} {cfg.nt}')
    load_epoch()
    if cfg.kvbar: e('s_barrier')
    for i in range(8):
        if i == 4: sadd64(42, 42, 32768)
        ld(f'global_load_dwordx4 v[{64+4*i}:{67+4*i}], v14, s[42:43] offset:{(i&1)*256+((i>>1)&1)*2048} {cfg.nt}', 'v')
    ts(2)
    if cfg.order[-1] != 'X': br('s_branch', 'L_X2')
def role_X():
    ROLE[0] = 'X'
    label('L_X2')
    gemv_consts()
    e(f"""s_lshl_b32 s35, s0, 4
    s_add_u32 s{sR0}, s35, s34
    s_and_b32 s36, s{sWAVE}, 3
    s_lshl_b32 s37, s36, 3
    v_xor_b32 v16, s37, v{vN}
    v_lshlrev_b32 v16, 4, v16
    v_lshl_add_u32 v16, v{vLANE}, 9, v16
    v_add_u32 v16, {KB}, v16""")
    for i in range(1, 8): e(f'v_xor_b32 v{16+i}, {16*i}, v16')
    e(f"""s_lshr_b32 s37, s{sWAVE}, 2
    s_mul_i32 s37, s37, {HS}
    s_lshl_b32 s36, s36, 2
    s_add_u32 s36, s36, s37
    v_lshl_add_u32 v36, v{vLANE}, 4, s36
    v_and_b32 v40, 1, v{vN}
    v_mul_u32_u24 v40, {HS}, v40
    v_lshl_add_u32 v40, v{vLG}, 4, v40
    v_bfe_u32 v41, v{vN}, 1, 1
    v_lshl_add_u32 v40, v41, 6, v40
    v_bfe_u32 v41, v{vN}, 2, 1
    v_mul_u32_u24 v41, 1056, v41
    v_add_u32 v40, v40, v41
    v_lshrrev_b32 v41, 3, v{vN}
    v_add_u32 v41, s{sWAVE}, v41""")
    for r in range(4):
        e(f'v_add_u32 v42, {2*r}, v41\nv_and_b32 v42, 7, v42\nv_lshl_add_u32 v{32+r}, v42, 7, v40')
    e(f"""v_lshrrev_b32 v40, 1, v{vLG}
    v_lshlrev_b32 v37, 10, v40
    v_lshl_add_u32 v37, v{vN}, 5, v37
    v_and_b32 v40, 1, v{vLG}
    v_lshl_add_u32 v37, v40, 4, v37
    s_lshl_b32 s36, s{sWAVE}, 11
    s_add_u32 s36, s36, {OB}
    v_add_u32 v37, s36, v37
    s_lshl_b32 s36, s{sWAVE}, 10
    s_add_u32 s36, s36, {OB}
    v_lshl_add_u32 v38, v{vLANE}, 4, s36
    s_lshl_b32 s36, s0, 15
    s_lshl_b32 s37, s{sWAVE}, 14
    s_add_u32 s36, s36, s37
    s_lshl_b32 s37, s34, 10
    s_add_u32 s36, s36, s37
    s_add_u32 s36, s36, {M3}
    v_lshl_add_u32 v39, v{vLANE}, 4, s36
    s_lshl_b32 s36, s{sR0}, 7
    s_add_u32 s36, s36, {ST}
    v_lshl_add_u32 v15, v{vLANE}, 4, s36
    s_lshl_b32 s36, s{sR0}, 3
    s_add_u32 s36, s36, s{sWAVE}
    s_lshl_b32 s36, s36, 8
    s_add_u32 s36, s36, {M2}
    s_add_u32 s16, s{sWS}, s36
    s_addc_u32 s17, s{sWS+1}, 0
    s_mov_b32 s1, s34
    v_mov_b32 v24, 0
    v_mov_b32 v25, 0
    s_waitcnt lgkmcnt(0)""")
    make_tag(); tag_consts(14)
    e(f's_lshl_b32 s18, s{sTAG}, 4\ns_waitcnt vmcnt(8)\ns_barrier')
    ts(3)
    for h in range(2):
        for i in range(8):
            r = 96 + 32 * h + 4 * i
            e(f'ds_read_b128 v[{r}:{r+3}], v{16+i} offset:{32768*h}')
    top = lab('qg'); out = lab('qo')
    label(top)
    for i in range(4): e(f's_load_dwordx16 s[{32+16*i}:{47+16*i}], s[16:17], {64*i} glc')
    e('s_waitcnt lgkmcnt(0)\ns_add_u32 s20, s34, s38')
    for g in range(2, 16): e(f's_add_u32 s20, s20, s{34+4*g}')
    e('s_cmp_eq_u32 s20, s18')
    br('s_cbranch_scc1', out)
    retry(top)
    label(out)
    ts(4)
    for m in range(32):
        for h in range(2): e(f'v_dot2c_f32_bf16 v{24+h}, s{32+4*(m>>1)+(m&1)}, v{96+32*h+m}')
    e('ds_write_b32 v36, v24\nds_write_b32 v36, v25 offset:1056\ns_waitcnt lgkmcnt(0)\ns_barrier')
    ts(5); ts_sync()
    for r in range(4): e(f'ds_read_b128 v[{40+4*r}:{43+4*r}], v{32+r}')
    for r in range(4):
        L.append(f's_waitcnt lgkmcnt({3-r})')
        e(f'v_pk_add_f32 v[{40+4*r}:{41+4*r}], v[{40+4*r}:{41+4*r}], v[{42+4*r}:{43+4*r}]')
    for r in range(4): e(f'v_add_f32 v{40+4*r}, v{40+4*r}, v{41+4*r}')
    e('v_max3_f32 v56, v40, v44, v48\nv_max_f32 v56, v56, v52')
    for p in (2, 4, 8): dpp_op(56, 56, f'row_ror:{p}', 'max')
    xrows(56, 57, 'max')
    SC = fl(0.0625 * LOG2E)
    e(f"""v_cvt_pk_bf16_f32 v57, v40, v56
    v_lshlrev_b32 v40, 16, v57
    v_and_b32 v56, 0xffff0000, v57
    v_sub_f32 v40, v40, v56
    v_mul_f32 v40, {SC}, v40
    v_exp_f32 v40, v40
    s_cmp_eq_u32 s{sWAVE}, 7""")
    br('s_cbranch_scc1', 'L_Xst')
    e('s_waitcnt vmcnt(0)')
    label('L_Xpv')
    e('v_cvt_pk_bf16_f32 v40, v40, v40')
    gemv([(40, 2 * t, [64 + 8 * t, 68 + 8 * t], None) for t in range(4)], acc=24, val=44, A=48)
    e('ds_write_b128 v37, v[24:27]\nds_write_b128 v37, v[28:31] offset:512\ns_waitcnt lgkmcnt(0)')
    ts(6)
    e('s_barrier')
    e(f's_cmp_ge_u32 s{sWAVE}, 2')
    br('s_cbranch_scc1', 'L_Xg')
    for i in range(8): e(f'ds_read_b128 v[{64+4*i}:{67+4*i}], v38 offset:{2048*i}')
    for i in range(0, 8, 2):
        L.append(f's_waitcnt lgkmcnt({6-i})')
        for h in (0, 2):
            a = 64 + 4 * i + h
            e(f'v_pk_add_f32 v[{a}:{a+1}], v[{a}:{a+1}], v[{a+4}:{a+5}]')
    for a, b in ((64, 72), (80, 88), (64, 80)):
        for h in (0, 2): e(f'v_pk_add_f32 v[{a+h}:{a+h+1}], v[{a+h}:{a+h+1}], v[{b+h}:{b+h+1}]')
    tag4(64, 14)
    e(f'global_store_dwordx4 v39, v[64:67], {WS} sc1')
    ts(7)
    label('L_fin')
    wave_end()
    label('L_Xg')
    e(f"""s_lshl_b32 s1, s1, 3
    s_add_u32 s1, s1, s0
    s_cmp_eq_u32 s{sWAVE}, 3
    s_cselect_b32 s1, s1, 99
    s_cmp_lt_u32 s1, 28""")
    br('s_cbranch_scc1', 'L_G')
    br('s_branch', 'L_fin')
    label('L_Xst')
    e(f"""v_cvt_pk_bf16_f32 v44, v44, v48
    v_cvt_pk_bf16_f32 v52, v52, v52
    v_and_b32 v48, 0xffff0000, v44
    v_lshlrev_b32 v44, 16, v44
    v_and_b32 v52, 0xffff0000, v52""")
    for r in (44, 48, 52): e(f'v_sub_f32 v{r}, v{r}, v56')
    for r in (44, 48, 52): e(f'v_mul_f32 v{r}, {SC}, v{r}')
    for r in (44, 48, 52): e(f'v_exp_f32 v{r}, v{r}')
    e(f'v_add_f32 v57, v40, v44\nv_add_f32 v48, v48, v52\nv_mov_b32 v58, s{sTAG}\nv_add_f32 v57, v57, v48')
    for p in (2, 4, 8): dpp_op(57, 57, f'row_ror:{p}')
    xrows(57, 59)
    exec_set(3)
    e(f'global_store_dwordx4 v15, v[56:59], {WS} sc1')
    exec_set(ALL)
    e('s_waitcnt vmcnt(1)')
    br('s_branch', 'L_Xpv')

def start_H(pend):
    global ts_pend
    ROLE[0] = 'H'
    L.append('L_H:'); ts_pend = list(pend)
    if cfg.aearly:
        e(f"""s_lshl_b32 s{sR0}, s0, 3
        s_add_u32 s{sR0}, s{sR0}, s1
        s_mov_b32 s34, s0
        s_lshl_b32 s35, s1, 1
        s_add_u32 s35, s35, s{sWAVE}
        s_lshl_b32 s36, s2, 3
        s_or_b32 s36, s36, s{sWAVE}
        s_and_b32 s36, s36, 0x26
        s_cmp_lt_u32 s35, 14
        s_cselect_b32 s36, s36, 1
        s_cmp_lg_u32 s36, 0""")
        L.append('s_cbranch_scc1 L_Hoth')
    else:
        e(f"""s_lshl_b32 s35, s0, 3
        s_mul_i32 s36, s0, 6
        s_add_u32 s36, s36, 8
        s_cmp_lt_u32 s0, 4
        s_cselect_b32 s35, s35, s36
        s_cselect_b32 s36, 8, 6
        s_add_u32 s{sR0}, s35, s1
        s_cmp_ge_u32 s1, s36""")
        L.append('s_cbranch_scc1 L_spare')
        e(f's_cmp_lg_u32 s{sWAVE}, 0')
        L.append('s_cbranch_scc1 L_Hidle')
        e(f"""s_mul_i32 s34, s{sR0}, 4682
        s_lshr_b32 s34, s34, 16
        s_mul_i32 s35, s34, 14
        s_sub_u32 s35, s{sR0}, s35""")
    L.append('L_mod:')
    c_addr(26, 27, 34, 37); w_addr(28, 29, 5376)
    e(f"""s_mul_i32 s38, s37, 5376
    s_lshl_b32 s39, s35, 7
    s_add_u32 s38, s38, s39
    s_mov_b32 s39, {8*5376}
    s_waitcnt lgkmcnt(0)""")
    ts(1)
    e(f"""global_load_ushort v16, v26, s[{sC}:{sC+1}]
    global_load_ushort v17, v27, s[{sC}:{sC+1}]
    s_add_u32 s44, s{sWM}, s38
    s_addc_u32 s45, s{sWM+1}, 0""")
    for t in range(14):
        e(f'global_load_dwordx4 v[{64+4*t}:{67+4*t}], v28, s[44:45] {cfg.nt}')
        if t < 13: e('v_add_u32 v28, s39, v28')
    ts(8)
    br('s_branch', 'L_mod2')
def role_H(pend):
    global ts_pend
    ROLE[0] = 'H'
    label('L_mod2')
    e(f's_cmp_eq_u32 s{sR0}, -1')
    br('s_cbranch_scc1', 'L_mod3')
    load_epoch()
    e('s_waitcnt lgkmcnt(0)')
    make_tag()
    label('L_mod3')
    gemv_consts()
    e(f"""v_lshlrev_b32 v18, 5, v{vN}
    v_lshl_add_u32 v18, v{vLG}, 4, v18
    s_mul_i32 s46, s34, 3584
    s_mul_i32 s47, s34, 7168
    s_add_u32 s47, s47, {M6 - 14*256}
    s_cmp_lt_u32 s35, 14
    s_cselect_b32 s46, s46, s47
    s_lshl_b32 s47, s35, 8
    s_add_u32 s46, s46, s47
    v_add_u32 v18, s46, v18""")
    tag_consts(19); tag4r_consts(48)
    e('s_waitcnt vmcnt(14)')
    silu2(16, 17)
    gemv([(16 + t // 8, (2 * t) % 16, 64 + 4 * t, f's_waitcnt vmcnt({13-t})') for t in range(14)], acc=24, val=22, A=28)
    fold(24, 32)
    tag4r(24, 19, 48)
    exec_set(0x00FF00FF)
    e(f'global_store_dwordx4 v18, v[24:27], {WS} sc1')
    exec_set(ALL)
    ts(9)
    e('s_cmp_ge_u32 s35, 14')
    br('s_cbranch_scc1', 'L_fin')
    e('s_barrier')
    br('s_branch', 'L_EF')
    def warm():
        e(f"""v_lshrrev_b32 v40, 3, v{vLANE}
        v_lshlrev_b32 v40, 13, v40
        v_and_b32 v41, 7, v{vLANE}
        v_lshl_add_u32 v40, v41, 7, v40
        s_mul_i32 s44, s1, {24*8192}
        s_mov_b32 s46, 0x10000
        s_waitcnt lgkmcnt(0)""")
        if cfg.aearly:
            e(f"""s_cmp_ge_u32 s0, 4""")
            br('s_cbranch_scc1', 'L_wl')
            e(f"""s_lshr_b32 s44, s{sWQ}, 7
            s_sub_u32 s44, 3, s44
            s_and_b32 s44, s44, 7
            s_lshl_b32 s44, s44, 7
            v_lshlrev_b32 v40, 13, v{vLANE}
            s_mov_b32 s46, 0x80000""")
            label('L_wl')
        e(f"""s_lshl_b32 s45, s0, 10
        s_add_u32 s44, s44, s45
        s_add_u32 s44, s44, {256*8192}
        v_add_u32 v40, s44, v40
        v_add_u32 v42, s46, v40
        v_add_u32 v43, s46, v42""")
        for r in (40, 42, 43): e(f'global_load_dword v63, v{r}, s[{sWQ}:{sWQ+1}] {cfg.nt}')
    def prefetch():
        e(f"""s_getpc_b64 s[40:41]
        L_pc:
        s_sub_u32 s40, s40, L_pc-{KN}
        s_subb_u32 s41, s41, 0
        v_lshlrev_b32 v15, 7, v{vLANE}
        v_add_u32 v16, 8192, v15
        v_min_u32 v16, L_end-{KN}-4, v16
        global_load_dword v63, v15, s[40:41]
        global_load_dword v63, v16, s[40:41]""")
    ts_pend = list(pend)
    if cfg.aearly:
        L.append('L_Hoth:')
        e(f's_cmp_lt_u32 s0, 4')
        L.append('s_cbranch_scc1 L_Hidle')
        e(f"""s_mul_i32 s{sR0}, s0, 6
        s_add_u32 s{sR0}, s{sR0}, s1
        s_add_u32 s{sR0}, s{sR0}, 8
        s_cmp_lt_u32 s1, 6""")
        L.append('s_cbranch_scc1 L_Hidle')
    L.append('L_spare:')
    e(f"""s_lshl_b32 s36, s0, 1
    s_add_u32 s36, s36, s1
    s_sub_u32 s36, s36, 14
    s_lshl_b32 s37, s{sWAVE}, 3
    s_add_u32 s36, s36, s37
    s_and_b32 s34, s36, 3
    s_lshr_b32 s35, s36, 2
    s_add_u32 s35, s35, 14
    s_mov_b32 s{sR0}, 99""")
    if not cfg.warm: L.append('s_branch L_mod')
    else:
        e(f's_cmp_lg_u32 s{sWAVE}, 2')
        L.append('s_cbranch_scc1 L_mod')
    L.append('L_Hidle:')
    if cfg.pf:
        e(f's_lshl_b32 s36, s1, 3\ns_add_u32 s36, s36, s{sWAVE}\ns_cmp_lg_u32 s36, 3')
        L.append('s_cbranch_scc1 L_nopf')
        prefetch()
        L.append('L_nopf:')
    if cfg.warm:
        e(f's_cmp_lg_u32 s{sWAVE}, 2')
        L.append('s_cbranch_scc1 L_nowarm')
        if cfg.aearly:
            e(f's_cmp_lt_u32 s0, 4\ns_cselect_b32 s36, s1, 7\ns_cmp_lg_u32 s36, 7')
            L.append('s_cbranch_scc1 L_nowarm')
        keep = list(ts_pend)
        warm()
        e(f's_cmp_eq_u32 s{sR0}, 99')
        br('s_cbranch_scc1', 'L_mod')
        label('L_nowarm')
        ts_pend = keep
    e('s_waitcnt lgkmcnt(0)')
    load_epoch()
    gemv_consts()
    e('s_waitcnt lgkmcnt(0)')
    make_tag(); tag_consts(19)
    e('s_barrier')
    br('s_branch', 'L_EF')

def start_B(pend):
    global ts_pend
    ROLE[0] = 'B'
    L.append('L_B:'); ts_pend = list(pend)
    e(f"""s_lshl_b32 s35, s0, 3
    s_add_u32 s{sR0}, s35, s1
    v_lshlrev_b32 v10, 4, v{vLANE}
    v_min_u32 v10, 880, v10
    v_min_u32 v11, 13, v{vN}
    s_mul_i32 s34, s{sWAVE}, 56
    v_lshl_add_u32 v11, v11, 2, s34
    v_add_lshl_u32 v12, v11, v{vLG}, 1""")
    w_addr(13, 14, 8192)
    e(f"""s_lshl_b32 s35, s34, 13
    s_lshl_b32 s36, s{sR0}, 7
    s_add_u32 s35, s35, s36
    s_mov_b32 s36, 0x10000
    s_waitcnt lgkmcnt(0)""")
    ts(1)
    e(f"""global_load_dwordx4 v[16:19], v10, s[{sX}:{sX+1}]
    global_load_ushort v20, v12, s[{sX}:{sX+1}]
    s_add_u32 s40, s{sWQ}, s35
    s_addc_u32 s41, s{sWQ+1}, 0""")
    for t in range(7):
        e(f'global_load_dwordx4 v[{64+4*t}:{67+4*t}], v13, s[40:41] {cfg.nt}')
        if t < 6: e('v_add_u32 v13, s36, v13')
    br('s_branch', 'L_B2')
def role_B():
    ROLE[0] = 'B'
    label('L_B2')
    load_epoch()
    gemv_consts()
    e(f"""v_mul_u32_u24 v15, 3584, v{vLG}
    v_lshl_add_u32 v15, v11, 2, v15""")
    red_waddr(21, 22, 320)
    quad_raddr(23, 22)
    e(f"""s_lshl_b32 s36, s0, 15
    s_lshl_b32 s37, s1, 8
    s_add_u32 s36, s36, s37
    s_add_u32 s36, s36, {M2}
    v_and_b32 v50, 3, v{vLANE}
    v_lshlrev_b32 v50, 11, v50
    v_lshrrev_b32 v51, 2, v{vLANE}
    v_lshl_add_u32 v50, v51, 4, v50
    v_add_u32 v50, s36, v50
    v_add_u32 v51, 8192, v50
    v_add_u32 v52, 16384, v50
    v_add_u32 v53, 24576, v50
    v_cmp_gt_u32 vcc, 56, v{vLANE}
    v_cndmask_b32 v31, 0, 1.0, vcc
    s_waitcnt vmcnt(7)""")
    for i in range(4):
        e(f'v_lshlrev_b32 v{32+2*i}, 16, v{16+i}\nv_and_b32 v{33+2*i}, 0xffff0000, v{16+i}')
    e("""v_pk_add_f32 v[40:41], v[32:33], v[34:35]
    v_pk_add_f32 v[42:43], v[36:37], v[38:39]
    v_pk_add_f32 v[40:41], v[40:41], v[42:43]
    v_add_f32 v40, v40, v41
    v_mul_f32 v40, v40, v31""")
    wavesum(40, 41)
    e(f'v_mul_f32 v40, {fl(1/448)}, v40')
    for i in range(8): e(f'v_sub_f32 v{32+i}, v{32+i}, v40')
    e('v_mul_f32 v42, v32, v32')
    for i in range(1, 8): e(f'v_fmac_f32 v42, v{32+i}, v{32+i}')
    e('v_mul_f32 v42, v42, v31')
    wavesum(42, 41)
    e(f'v_mul_f32 v42, {fl(1/448)}, v42')
    rnd(40, 40); rnd(42, 42)
    e(f'v_add_f32 v42, {fl(1e-5)}, v42'); rnd(42, 42)
    e('v_sqrt_f32 v42, v42'); rnd(42, 42)
    e('v_rcp_f32 v42, v42\nv_lshlrev_b32 v20, 16, v20\nv_sub_f32 v20, v20, v40'); rnd(20, 20)
    e('v_mul_f32 v20, v20, v42'); rnd(20, 20)
    ts(2)
    e('s_waitcnt lgkmcnt(0)')
    e(f's_mov_b32 s56, s{sC}\ns_mov_b32 s57, s{sC+1}')
    make_tag(); tag_consts(19)
    e(f'v_mov_b32 v58, s{sTAG}\nv_mov_b32 v59, s{sTAG}')
    if cfg.dbg: e('s_waitcnt vmcnt(0)'); ts(3)
    top = lab('bg'); out = lab('bgo')
    label(top)
    e(f"""global_load_dwordx4 v[32:35], v15, {WS} sc1
    global_load_dwordx4 v[36:39], v15, {WS} offset:1792 sc1
    s_waitcnt vmcnt(0)""")
    chk([32, 36], 40)
    br('s_cbranch_vccz', out)
    retry(top)
    label(out)
    red4rows_multi([32, 36])
    ts(4)
    rnd(36, 36); rnd(32, 32)
    e('v_add_f32 v36, 1.0, v36'); rnd(36, 36)
    e('v_mul_f32 v36, v20, v36'); rnd(36, 36)
    e('v_add_f32 v36, v36, v32\nv_cvt_pk_bf16_f32 v36, v36, v36')
    gemv([(36, 2 * t, 64 + 4 * t, None) for t in range(7)], acc=24, val=44, A=28)
    red_write(24, 21)
    e('s_waitcnt lgkmcnt(0)\ns_barrier')
    e(f's_cmp_lg_u32 s{sWAVE}, 0')
    br('s_cbranch_scc1', 'L_Bdone')
    quad_reduce(23, 32)
    e('v_cvt_pk_bf16_f32 v56, v32, v33\nv_cvt_pk_bf16_f32 v57, v34, v35')
    for i in range(4): e(f'global_store_dwordx4 v{50+i}, v[56:59], {WS} sc1')
    ts(5)
    label('L_Bdone')
    e(f"""s_barrier
    s_cmp_lt_u32 s1, 7""")
    br('s_cbranch_scc1', 'L_D')
    e(f"""s_cmp_ge_u32 s{sWAVE}, 6""")
    br('s_cbranch_scc1', 'L_fin')
    e(f"""s_lshl_b32 s36, s{sWAVE}, 3
    s_add_u32 s36, s36, s0
    s_and_b32 s34, s36, 3
    s_lshr_b32 s35, s36, 2
    s_add_u32 s35, s35, 30
    s_mov_b32 s{sR0}, -1
    s_mov_b32 s{sC}, s56
    s_mov_b32 s{sC+1}, s57""")
    br('s_branch', 'L_mod')

def role_D():
    ROLE[0] = 'D'
    label('L_D')
    w_addr(13, 14, 896)
    e(f'''s_lshl_b32 s34, s0, 3
    s_add_u32 s34, s34, s{sWAVE}
    s_mul_i32 s34, s34, {64*896}
    s_lshl_b32 s35, s1, 7
    s_add_u32 s34, s34, s35
    s_add_u32 s40, s{sWO}, s34
    s_addc_u32 s41, s{sWO+1}, 0''')
    for t in range(8):
        ld(f'global_load_dwordx4 v[{64+4*t}:{67+4*t}], v13, s[40:41] {cfg.nt}', 'o')
        if t < 7: sadd64(40, 40, 7168)
    ts(6)
    e(f'''v_bfe_u32 v10, v{vLANE}, 1, 1
    v_and_b32 v11, 1, v{vLANE}
    s_lshl_b32 s34, s{sWAVE}, 1
    v_add_u32 v10, s34, v10
    v_lshlrev_b32 v30, 7, v10
    v_lshl_add_u32 v30, v11, 4, v30
    s_lshl_b32 s35, s0, 11
    s_add_u32 s35, s35, {ST}
    v_add_u32 v30, s35, v30
    v_lshlrev_b32 v12, 3, v10
    v_lshl_add_u32 v12, v11, 7, v12
    v_lshl_add_u32 v15, v{vLG}, 2, v{vN}
    v_and_b32 v15, 15, v15
    s_lshr_b32 s34, s{sWAVE}, 2
    s_lshl_b32 s35, s34, 7
    v_lshl_add_u32 v15, v15, 3, s35
    v_lshlrev_b32 v31, 12, v{vLG}
    v_lshl_add_u32 v31, v{vN}, 4, v31
    s_lshl_b32 s35, s0, 15
    s_lshl_b32 s34, s34, 14
    s_add_u32 s35, s35, s34
    s_and_b32 s34, s{sWAVE}, 3
    s_lshl_b32 s34, s34, 8
    s_add_u32 s35, s35, s34
    s_add_u32 s35, s35, {M3}
    v_add_u32 v31, s35, v31
    s_mul_i32 s34, s0, 1792
    s_lshl_b32 s35, s1, 8
    s_add_u32 s34, s34, s35
    s_add_u32 s34, s34, {M4}
    v_lshl_add_u32 v20, v{vLANE}, 2, s34''')
    red_waddr(21, 22, 320)
    quad_raddr(23, 22)
    exec_set(0xF)
    top = lab('sg'); out = lab('sgo')
    label(top)
    e(f'global_load_dwordx3 v[32:34], v30, {WS} sc1\ns_waitcnt vmcnt(0)\nv_cmp_ne_u32 vcc, s{sTAG}, v34')
    br('s_cbranch_vccz', out)
    retry(top)
    label(out)
    e(f'ds_write_b64 v12, v[32:33] offset:{STL}')
    exec_set(ALL)
    e('s_waitcnt lgkmcnt(0)')
    ts(7)
    e('s_barrier')
    def o_loads():
        for t in range(4): e(f'global_load_dwordx4 v[{40+4*t}:{43+4*t}], v31, {WS} offset:{t*1024} sc1')
    o_loads()
    e(f'ds_read_b64 v[32:33], v15 offset:{STL}\ns_waitcnt lgkmcnt(0)\nv_mov_b32 v34, v32')
    rowsum(34, 'max')
    e(f'''v_sub_f32 v32, v32, v34
    v_mul_f32 v32, {fl(0.0625*LOG2E)}, v32
    v_exp_f32 v32, v32
    v_mul_f32 v33, v33, v32''')
    rowsum(33)
    e('v_rcp_f32 v33, v33\nv_mul_f32 v32, v32, v33')
    for t in range(4): e(f'v_mov_b32_dpp v{36+t}, v32 row_newbcast:{t} row_mask:0xf bank_mask:0xf')
    top = lab('og'); out = lab('ogo')
    label(top)
    e('s_waitcnt vmcnt(0)')
    chk([40, 44, 48, 52], 56)
    br('s_cbranch_vccz', out)
    o_loads()
    retry(top)
    e('s_waitcnt vmcnt(0)')
    label(out)
    ts(8)
    for t in range(4):
        b = 36 + (t & ~1)
        for h in (0, 2):
            if t == 0:
                e(f'v_pk_mul_f32 v[{32+h}:{33+h}], v[{40+h}:{41+h}], v[{b}:{b+1}] op_sel_hi:[1,0]')
            else:
                sel = 'op_sel_hi:[1,0,1]' if t % 2 == 0 else 'op_sel:[0,1,0] op_sel_hi:[1,1,1]'
                e(f'v_pk_fma_f32 v[{32+h}:{33+h}], v[{40+4*t+h}:{41+4*t+h}], v[{b}:{b+1}], v[{32+h}:{33+h}] {sel}')
    red4rows(32)
    e('v_cvt_pk_bf16_f32 v32, v32, v32')
    gemv([(32, 2 * t, 64 + 4 * t, None) for t in range(8)], acc=24, val=44, A=48)
    red_write(24, 21)
    e('s_waitcnt lgkmcnt(0)')
    ts(9)
    e('s_barrier')
    e(f's_cmp_lg_u32 s{sWAVE}, 0')
    br('s_cbranch_scc1', 'L_fin')
    quad_reduce(23, 32)
    tag4(32, 19)
    exec_set(0x1111111111111111)
    e(f'global_store_dwordx4 v20, v[32:35], {WS} sc1')
    exec_set(ALL)
    ts(10)
    br('s_branch', 'L_fin')

def role_EF():
    ROLE[0] = 'E'
    label('L_EF')
    if cfg.efrev:
        e(f's_and_b32 s34, s{sR0}, 1\ns_mul_i32 s34, s34, 7\ns_xor_b32 s34, s34, s{sWAVE}\ns_mul_i32 s34, s34, 56')
    else:
        e(f's_mul_i32 s34, s{sWAVE}, 56')
    e(f'''v_lshrrev_b32 v13, 3, v{vN}
    v_lshl_add_u32 v13, v13, 2, v{vLG}
    v_add_u32 v18, s34, v13
    v_mul_u32_u24 v18, 3584, v18
    v_and_b32 v12, 3, v{vN}
    v_lshl_add_u32 v18, v12, 4, v18
    s_lshl_b32 s35, s{sR0}, 6
    v_add_u32 v18, s35, v18
    v_and_b32 v12, 4, v{vN}
    v_cmp_eq_u32 vcc, 0, v12
    v_mov_b32 v16, s{sUP}
    v_mov_b32 v17, s{sGT}
    v_cndmask_b32 v16, v16, v17, vcc
    v_mov_b32 v17, s{sUP+1}
    v_mov_b32 v12, s{sGT+1}
    v_cndmask_b32 v17, v17, v12, vcc
    v_add_co_u32 v16, vcc, v16, v18
    v_addc_co_u32 v17, vcc, 0, v17, vcc
    s_mov_b32 s52, 28672
    s_mov_b32 s53, 0''')
    for t in range(7):
        ld(f'global_load_dwordx4 v[{64+4*t}:{67+4*t}], v[16:17], off {cfg.nt}', 'e')
        if t < 6: e('v_lshl_add_u64 v[16:17], v[16:17], 0, s[52:53]')
    e(f'''v_mul_u32_u24 v13, 896, v13
    v_and_b32 v12, 7, v{vN}
    v_lshl_add_u32 v13, v12, 4, v13
    s_mul_i32 s35, s{sR0}, {32*896}
    s_min_u32 s36, s{sWAVE}, 6
    s_lshl_b32 s36, s36, 7
    s_add_u32 s35, s35, s36
    s_add_u32 s54, s{sDN}, s35
    s_addc_u32 s55, s{sDN+1}, 0
    s_cmp_eq_u32 s{sWAVE}, 7''')
    br('s_cbranch_scc1', 'L_nodn')
    for t in range(4):
        ld(f'global_load_dwordx4 v[{96+4*t}:{99+4*t}], v13, s[54:55] {cfg.nt}', 'e')
        if t < 3: sadd64(54, 54, 7168)
    label('L_nodn')
    ts(6)
    e(f'''v_min_u32 v11, 13, v{vN}
    v_lshl_add_u32 v11, v11, 2, s34
    v_add_lshl_u32 v12, v11, v{vLG}, 1
    global_load_ushort v20, v12, s[{sX}:{sX+1}]
    v_mul_u32_u24 v15, 7168, v{vLG}
    v_lshl_add_u32 v15, v11, 2, v15
    v_add_u32 v15, {M6}, v15
    v_mul_u32_u24 v14, 1792, v{vLG}
    v_lshl_add_u32 v14, v11, 2, v14
    v_add_u32 v14, {M4}, v14
    v_add_u32 v13, 7168, v14
    v_cmp_gt_u32 vcc, 14, v{vN}
    v_cndmask_b32 v31, 0, 1.0, vcc''')
    red_waddr(21, 22, 256)
    e(f'''v_lshlrev_b32 v23, 4, v{vLANE}
    v_lshrrev_b32 v22, 5, v{vLANE}
    v_lshlrev_b32 v22, 2, v22
    s_lshl_b32 s36, s{sWAVE}, 4
    s_add_u32 s36, s36, {STT}
    v_add_u32 v22, s36, v22
    v_and_b32 v18, 7, v{vLANE}
    v_lshlrev_b32 v18, 4, v18
    v_add_u32 v18, {STT}, v18
    v_lshrrev_b32 v10, 1, v{vN}
    s_lshl_b32 s36, s{sWAVE}, 2
    v_add_u32 v10, s36, v10
    v_mul_u32_u24 v10, 7168, v10
    v_and_b32 v12, 1, v{vN}
    v_lshl_add_u32 v10, v12, 5, v10
    v_lshl_add_u32 v10, v{vLG}, 4, v10
    s_lshl_b32 s36, s{sR0}, 7
    s_add_u32 s36, s36, {M5}
    v_add_u32 v10, s36, v10''')
    top = lab('m6'); out = lab('m6o')
    label(top)
    e(f'''global_load_dwordx4 v[32:35], v15, {WS} sc1
    global_load_dwordx4 v[36:39], v15, {WS} offset:1792 sc1
    global_load_dwordx4 v[40:43], v15, {WS} offset:3584 sc1
    s_waitcnt vmcnt(0)''')
    chk([32, 36, 40], 44)
    br('s_cbranch_vccz', out)
    e('s_sleep 2')
    retry(top)
    label(out)
    red4rows_multi([32, 36, 40])
    rnd(56, 32); rnd(57, 36); rnd(58, 40)
    e('v_add_f32 v58, 1.0, v58'); rnd(58, 58)
    e('v_lshlrev_b32 v20, 16, v20')
    ts(7)
    top = lab('m4'); out = lab('m4o')
    label(top)
    e(f'''global_load_dwordx4 v[32:35], v14, {WS} sc1
    global_load_dwordx4 v[36:39], v13, {WS} sc1
    s_waitcnt vmcnt(0)''')
    chk([32, 36], 40)
    br('s_cbranch_vccz', out)
    retry(top)
    label(out)
    ts(10)
    pk_tree(32, 2)
    red4rows(32)
    rnd(32, 32)
    e('v_mul_f32 v32, v56, v32'); rnd(32, 32)
    e('v_add_f32 v32, v20, v32'); rnd(32, 32)
    e('''v_readfirstlane_b32 s36, v32
    v_subrev_f32 v33, s36, v32
    v_mul_f32 v33, v33, v31
    v_mul_f32 v34, v33, v33
    v_mov_b32 v36, s36
    v_permlane32_swap_b32 v33, v34
    v_add_f32 v33, v33, v34
    v_mov_b32 v34, v33
    v_permlane16_swap_b32 v33, v34
    v_add_f32 v33, v33, v34''')
    rowsum(33)
    exec_set(0x0000000100000001)
    e('ds_write_b32 v22, v33\nds_write_b32 v22, v36 offset:8')
    exec_set(ALL)
    e('s_waitcnt lgkmcnt(0)\ns_barrier\nds_read_b96 v[36:38], v18\ns_waitcnt lgkmcnt(0)')
    e(f'''v_mul_f32 v39, {fl(1/56)}, v36
    v_add_f32 v38, v38, v39
    v_fma_f32 v37, -v36, v39, v37
    v_mov_b32 v40, v38''')
    for p in ('quad_perm:[1,0,3,2]', 'quad_perm:[2,3,0,1]', 'row_half_mirror'): dpp_op(40, 40, p)
    e(f'''v_mul_f32 v40, 0.125, v40
    v_sub_f32 v38, v38, v40
    v_mul_f32 v39, {fl(56.0)}, v38
    v_fmac_f32 v37, v39, v38''')
    for p in ('quad_perm:[1,0,3,2]', 'quad_perm:[2,3,0,1]', 'row_half_mirror'): dpp_op(37, 37, p)
    rnd(40, 40)
    e(f'v_mul_f32 v37, {fl(1/448)}, v37\nv_max_f32 v37, 0, v37'); rnd(37, 37)
    e(f'v_add_f32 v37, {fl(1e-5)}, v37'); rnd(37, 37)
    e('v_sqrt_f32 v37, v37\nv_sub_f32 v32, v32, v40'); rnd(37, 37); rnd(32, 32)
    e('v_rcp_f32 v37, v37\nv_mul_f32 v32, v32, v37'); rnd(32, 32)
    e('v_mul_f32 v32, v32, v58'); rnd(32, 32)
    e('v_add_f32 v32, v32, v57\nv_cvt_pk_bf16_f32 v32, v32, v32')
    gemv([(32, 2 * t, 64 + 4 * t, None) for t in range(7)], acc=24, val=44, A=28)
    red_write(24, 21)
    e('s_waitcnt lgkmcnt(0)\ns_barrier')
    ts(11)
    e(f's_cmp_eq_u32 s{sWAVE}, 7')
    br('s_cbranch_scc1', 'L_fin')
    for i in range(4): e(f'ds_read_b128 v[{32+4*i}:{35+4*i}], v23 offset:{RED+i*1024}')
    e('s_waitcnt lgkmcnt(0)')
    pk_tree(32, 4)
    red4rows(32)
    rnd(32, 32)
    kk = -2 * math.sqrt(2 / math.pi) * LOG2E
    e(f'''v_mul_f32 v33, v32, v32
    v_mov_b32_dpp v35, v32 row_ror:8 row_mask:0xf bank_mask:0xf
    v_mul_f32 v33, {fl(0.044715*kk)}, v33
    v_add_f32 v33, {fl(kk)}, v33
    v_mul_f32 v33, v33, v32
    v_exp_f32 v33, v33
    v_add_f32 v33, 1.0, v33
    v_rcp_f32 v33, v33
    v_mul_f32 v32, v32, v33''')
    rnd(32, 32)
    e('v_mul_f32 v32, v32, v35\nv_cvt_pk_bf16_f32 v32, v32, v32')
    gemv([(32, 2 * t, 96 + 4 * t, None) for t in range(4)], acc=24, val=44, A=28)
    fold(24, 36)
    tag4(24, 19)
    exec_set(0x00FF00FF)
    e(f'global_store_dwordx4 v10, v[24:27], {WS} sc1')
    exec_set(ALL)
    br('s_branch', 'L_fin')

def red16(c):
    red4rows(c)
    dpp_op(c, c, 'row_ror:8'); dpp_op(c, c, 'row_ror:4')
def role_G():
    ROLE[0] = 'G'
    label('L_G')
    e(f'''v_and_b32 v10, 3, v{vLANE}
    v_lshrrev_b32 v11, 2, v{vLANE}
    s_lshl_b32 s34, s1, 4
    v_lshl_add_u32 v12, v10, 2, s34
    v_add_lshl_u32 v13, v12, v{vLG}, 1
    global_load_ushort v20, v13, s[{sX}:{sX+1}]
    v_and_b32 v16, 3, v11
    v_mul_u32_u24 v16, 7168, v16
    v_lshl_add_u32 v16, v12, 2, v16
    v_add_u32 v16, {M6}, v16
    v_add_u32 v15, 5376, v16
    v_and_b32 v17, 7, v11
    v_mul_u32_u24 v17, 1792, v17
    v_lshl_add_u32 v17, v12, 2, v17
    v_add_u32 v17, {M4}, v17
    s_mul_i32 s35, s1, 7168
    s_add_u32 s35, s35, {M5}
    v_lshlrev_b32 v18, 7, v11
    v_lshl_add_u32 v18, v10, 4, v18
    v_add_u32 v18, s35, v18
    v_add_u32 v19, 4096, v18
    v_min_u32 v21, 7, v11
    v_lshlrev_b32 v21, 7, v21
    v_lshl_add_u32 v21, v10, 4, v21
    v_add_u32 v21, s35, v21
    v_add_u32 v21, 6144, v21
    v_cmp_gt_u32 vcc, 32, v{vLANE}
    v_cndmask_b32 v22, 0, 1.0, vcc''')
    top = lab('g6'); out = lab('g6o')
    label(top)
    e(f'''global_load_dwordx4 v[32:35], v16, {WS} sc1
    global_load_dwordx4 v[36:39], v15, {WS} sc1
    s_waitcnt vmcnt(0)''')
    chk([32, 36], 40)
    br('s_cbranch_vccz', out)
    e('s_sleep 4')
    retry(top)
    label(out)
    for c in (32, 36):
        for r in range(4): dpp_op(c + r, c + r, 'row_ror:8')
        for r in range(4): dpp_op(c + r, c + r, 'row_ror:4')
    for r in range(1, 4):
        e(f'v_cmp_eq_u32 vcc, {r}, v{vLG}\nv_cndmask_b32 v32, v32, v{32+r}, vcc\nv_cndmask_b32 v36, v36, v{36+r}, vcc')
    rnd(56, 32); rnd(57, 36)
    e('v_lshlrev_b32 v20, 16, v20')
    ts(11)
    top = lab('g4'); out = lab('g4o')
    label(top)
    e(f'global_load_dwordx4 v[32:35], v17, {WS} sc1\ns_waitcnt vmcnt(0)')
    chk([32], 40)
    br('s_cbranch_vccz', out)
    e('s_sleep 2')
    retry(top)
    label(out)
    red16(32)
    e('v_mul_f32 v32, 0.5, v32')
    rnd(32, 32)
    e('v_mul_f32 v32, v56, v32'); rnd(32, 32)
    e('v_add_f32 v20, v20, v32'); rnd(20, 20)
    e(f'v_mov_b32 v58, {EPO}\nv_mov_b32 v59, s{sTAG}')
    ts(12)
    top = lab('g5'); out = lab('g5o')
    label(top)
    e(f'''global_load_dwordx4 v[32:35], v18, {WS} sc1
    global_load_dwordx4 v[36:39], v18, {WS} offset:2048 sc1
    global_load_dwordx4 v[40:43], v19, {WS} sc1
    global_load_dwordx4 v[44:47], v21, {WS} sc1
    s_waitcnt vmcnt(0)''')
    chk([32, 36, 40, 44], 48)
    br('s_cbranch_vccz', out)
    retry(top)
    label(out)
    ts(13)
    for h in (0, 2):
        e(f'v_pk_fma_f32 v[{40+h}:{41+h}], v[{44+h}:{45+h}], v[22:23], v[{40+h}:{41+h}] op_sel_hi:[1,0,1]')
    pk_tree(32, 3)
    red16(32)
    rnd(32, 32)
    e('v_mul_f32 v32, v57, v32'); rnd(32, 32)
    e('v_add_f32 v32, v20, v32\nv_cvt_pk_bf16_f32 v32, v32, v32')
    exec_set(0x000F000F000F000F)
    e(f'global_store_short v13, v32, s[{sOUT}:{sOUT+1}] {cfg.outpol}')
    e('s_cmp_lg_u32 s1, 0')
    br('s_cbranch_scc1', 'L_Gne')
    exec_set(1)
    e(f'global_store_dword v58, v59, {WS} sc1')
    label('L_Gne')
    exec_set(ALL)
    if cfg.hd: e('s_waitcnt vmcnt(0)'); ts(14)
    wave_end()

def tsdump():
    L.append('L_tsdump:')
    if cfg.hd:
        e(f'''v_lshlrev_b32 v10, 2, v{vLANE}
        s_mov_b64 exec, 0xffff
        v_cmp_ne_u32 vcc, 0, v{VTS}
        s_and_b64 exec, exec, vcc
        s_cbranch_execz L_exit
        global_atomic_umax v10, v{VTS}, s[100:101] sc1
        s_endpgm''')
        return
    e(f'''s_lshl_b32 s32, s2, 3
    s_add_u32 s32, s32, s{sWAVE}
    s_lshl_b32 s32, s32, 6
    s_add_u32 s32, s32, {TSB}
    v_lshlrev_b32 v10, 2, v{vLANE}
    v_add_u32 v10, s32, v10
    s_mov_b64 exec, 0xffff
    global_store_dword v10, v{VTS}, {WS}
    s_endpgm''')

pend = prologue()
for r in cfg.order: {'X': start_X, 'H': start_H, 'B': start_B}[r](pend)
role_X()
role_H(pend)
role_B()
role_D()
role_EF()
role_G()
if cfg.dbg: tsdump()
L.append('L_exit:')
L.append('s_endpgm')
L.append('L_end:')
L.append('s_endpgm')
body, nn = fix(L)
probs = taint_check(body)
for p in probs: sys.stderr.write(f'TAINT {p}\n')
if probs: sys.exit(1)
hdr = open('adaLN_cond__sliding_block_cached__geglu_ffn__decode.s.ref').read().split('; Override launch')[0]
out = hdr + '; generated by gen3.py (persistent fused kernel, one workgroup per CU)\n'
out += f'; @launch grid=(256,1,1) block=(512,1,1) lds={LDS_BYTES}\n'
out += f'.amdgcn_target "amdgcn-amd-amdhsa--gfx950"\n.text\n.globl {KN}\n.p2align 8\n.type {KN},@function\n{KN}:\n'
out += '\n'.join(l if l.endswith(':') else '    ' + l for l in body) + '\n'
out += f'''.section .rodata,"a"
.p2align 6
.amdhsa_kernel {KN}
  .amdhsa_next_free_vgpr 160
  .amdhsa_next_free_sgpr 102
  .amdhsa_accum_offset 160
  .amdhsa_group_segment_fixed_size 0
  .amdhsa_kernarg_size 112
  .amdhsa_user_sgpr_count 2
  .amdhsa_user_sgpr_kernarg_segment_ptr 1
  .amdhsa_system_sgpr_workgroup_id_x 1
  .amdhsa_float_denorm_mode_32 3
.end_amdhsa_kernel
'''
sys.stdout.write(out)
sys.stderr.write(f'instructions {len(body)} nops {nn}\n')
```

```python
import sys, math, struct, re
from hz import fix, taint_check
KN = 'adaLN_cond__sliding_block_cached__geglu_ffn__decode_kernel'

class Cfg:
    dbg = 0
    nt = 'nt'
    pf = 1
    warm = 1
    kvbar = 1
    efrev = 1
    outpol = ''
    skip = ''
    aearly = 1
    order = 'HBX'
    al = 12
    hd = 0
cfg = Cfg()
for a in sys.argv[1:]:
    k, v = a.split('=')
    assert hasattr(cfg, k), k
    setattr(cfg, k, int(v) if v.lstrip('-').isdigit() else v)
if cfg.nt == 'none': cfg.nt = ''
if cfg.hd: cfg.dbg = 1
ROLE = ['P']
HD = {('P',0):'st', ('B',4):8, ('B',5):9, ('X',4):10, ('X',7):11, ('D',10):12, ('E',7):13, ('E',11):14, ('G',14):15}
if cfg.hd == 2: HD = {('P',0):'st', ('H',1):8, ('H',9):9, ('B',1):10, ('B',2):11, ('B',3):12, ('X',2):13, ('X',3):14, ('E',6):15}

M1C = 0xD0000; M1 = 0x0000; EPO = 0x3C00; FL = 0x4000; M6 = 0x6000; M4 = 0xE000; ST = 0x12000; M5 = 0x18000; M3 = 0x50000; M2 = 0x90000
TSB = 0x100000
LOG2E = 1.4426950408889634
def fl(x): return hex(struct.unpack('<I', struct.pack('<f', x))[0])

L = []
def e(s):
    for line in s.split('\n'):
        line = line.strip()
        if line:
            L.append(line)
            if cfg.dbg and line.startswith('s_waitcnt') and 'lgkmcnt(0)' in line: ts_flush()
_lab = [0]
def lab(b):
    _lab[0] += 1
    return f'L_{b}_{_lab[0]}'
def ld(s, tag):
    if tag in cfg.skip:
        a = int(re.search(r'v\[(\d+):', s).group(1))
        for r in range(4): e(f'v_mov_b32 v{a+r}, 0')
    else: e(s)

ts_pend = []
VTS = 5
def ts(k):
    if not cfg.dbg: return
    if cfg.hd:
        k = HD.get((ROLE[0], k))
        if k is None: return
    if len(ts_pend) == (1 if cfg.hd else 2): e('s_waitcnt lgkmcnt(0)')
    used = [p for p, _ in ts_pend]
    p = 98 if 98 not in used else 100
    L.append(f's_memrealtime s[{p}:{p+1}]')
    if cfg.hd and ROLE[0] == 'H':
        L.extend(['s_waitcnt lgkmcnt(0)', 's_cmp_lt_u32 s35, 14', f's_cselect_b32 s{p}, s{p}, 0', f'v_writelane_b32 v{VTS}, s{p}, {k}'])
        return
    ts_pend.append((p, k))
def ts_flush():
    global ts_pend
    pend, ts_pend = ts_pend, []
    for p, k in pend:
        if k == 'st':
            L.append(f's_not_b32 s{p}, s{p}'); L.append(f's_and_b32 m0, s2, 7'); L.append('s_nop 0'); L.append(f'v_writelane_b32 v{VTS}, s{p}, m0')
            L.append('s_mov_b64 s[100:101], s[28:29]')
        else: L.append(f'v_writelane_b32 v{VTS}, s{p}, {k}')
def ts_sync():
    if cfg.dbg and ts_pend: e('s_waitcnt lgkmcnt(0)')
def wave_end():
    if cfg.dbg:
        ts(15); ts_sync()
        e('s_branch L_tsdump')
    else:
        e('s_endpgm')
def br(op, target):
    ts_sync(); e(f'{op} {target}')
def label(name):
    ts_sync(); e(f'{name}:')

sX, sK, sV, sWQ, sWO, sGT, sUP, sDN, sC, sWM, sOUT, sDBG, sWS = 4, 6, 8, 10, 12, 16, 18, 20, 22, 24, 26, 28, 30
sWAVE = 3; sCNT = 96; sR0 = 97
sTAG = 14
sT1, sT2, sT3 = 28, 29, 15
sP01, sP23 = 22, 23
vLANE, vLG, vN, vHM, vCJ = 1, 2, 3, 4, 6
WS = f's[{sWS}:{sWS+1}]'
ALL = (1 << 64) - 1

def exec_set(mask):
    lo = mask & 0xffffffff; hi = mask >> 32
    if mask == ALL: e('s_mov_b64 exec, -1')
    elif hi == 0 and lo < 0x80000000: e(f's_mov_b64 exec, {hex(lo)}')
    else:
        e(f's_mov_b32 exec_lo, {hex(lo)}'); e(f's_mov_b32 exec_hi, {hex(hi)}')
def rnd(dst, src, tmp=None):
    tmp = dst if tmp is None else tmp
    e(f'v_cvt_pk_bf16_f32 v{tmp}, v{src}, v{src}')
    e(f'v_and_b32 v{dst}, 0xffff0000, v{tmp}')
def red4rows(c):
    e(f'''v_permlane32_swap_b32 v{c}, v{c+2}
    v_permlane32_swap_b32 v{c+1}, v{c+3}
    v_add_f32 v{c}, v{c}, v{c+2}
    v_add_f32 v{c+1}, v{c+1}, v{c+3}
    v_permlane16_swap_b32 v{c}, v{c+1}
    v_add_f32 v{c}, v{c}, v{c+1}''')
def red4rows_multi(cs):
    for c in cs: e(f'v_permlane32_swap_b32 v{c}, v{c+2}\nv_permlane32_swap_b32 v{c+1}, v{c+3}')
    for c in cs: e(f'v_add_f32 v{c}, v{c}, v{c+2}\nv_add_f32 v{c+1}, v{c+1}, v{c+3}')
    for c in cs: e(f'v_permlane16_swap_b32 v{c}, v{c+1}')
    for c in cs: e(f'v_add_f32 v{c}, v{c}, v{c+1}')
def dpp_op(dst, src, pat, op='add'):
    e(f'v_{op}_f32_dpp v{dst}, v{src}, v{src} {pat} row_mask:0xf bank_mask:0xf')
def rowsum(v, op='add'):
    for p in ('quad_perm:[1,0,3,2]', 'quad_perm:[2,3,0,1]', 'row_half_mirror', 'row_mirror'): dpp_op(v, v, p, op)
def xrows(v, t, op='add'):
    e(f'v_mov_b32 v{t}, v{v}\nv_permlane16_swap_b32 v{v}, v{t}\nv_{op}_f32 v{v}, v{v}, v{t}')
    e(f'v_mov_b32 v{t}, v{v}\nv_permlane32_swap_b32 v{v}, v{t}\nv_{op}_f32 v{v}, v{v}, v{t}')
def wavesum(v, t):
    rowsum(v); xrows(v, t)
def gemv_consts(t=60):
    e(f'''v_and_b32 v{t}, 1, v{vLANE}
    v_cmp_eq_u32 vcc, 1, v{t}
    v_mov_b32 v{t+1}, 0xffff
    v_mov_b32 v{t+2}, 0xffff0000
    v_cndmask_b32 v{vHM}, v{t+1}, v{t+2}, vcc
    v_bfe_u32 v{t}, v{vLANE}, 1, 2''')
    for j in range(4):
        e(f'v_cmp_eq_u32 vcc, {j}, v{t}\nv_cndmask_b32 v{vCJ+j}, 0, 1.0, vcc')
def pkmul(A, val):
    b = val & ~1
    sel = 'op_sel_hi:[0,1]' if val % 2 == 0 else 'op_sel:[1,0] op_sel_hi:[1,1]'
    e(f'v_pk_mul_f32 v[{A}:{A+1}], v[{b}:{b+1}], v[{vCJ}:{vCJ+1}] {sel}')
    e(f'v_pk_mul_f32 v[{A+2}:{A+3}], v[{b}:{b+1}], v[{vCJ+2}:{vCJ+3}] {sel}')
def gemv(steps, acc, val, A):
    n = len(steps)
    def andA(t): e(f'v_and_b32_dpp v{val+t%2}, v{steps[t][0]}, v{vHM} row_newbcast:{steps[t][1]} row_mask:0xf bank_mask:0x3')
    def andB(t): e(f'v_and_b32_dpp v{val+t%2}, v{steps[t][0]}, v{vHM} row_newbcast:{steps[t][1]+1} row_mask:0xf bank_mask:0xc')
    andA(0)
    if n > 1: andA(1)
    andB(0)
    for t in range(n):
        pkmul(A, val + t % 2)
        if t + 1 < n: andB(t + 1)
        if t + 2 < n: andA(t + 2)
        if steps[t][3]: e(steps[t][3])
        Ws = steps[t][2] if isinstance(steps[t][2], list) else [steps[t][2]]
        for q, W in enumerate(Ws):
            a = acc + 4 * q
            e(f'v_mfma_f32_16x16x32_bf16 v[{a}:{a+3}], v[{A}:{A+3}], v[{W}:{W+3}], ' + ('0' if t == 0 else f'v[{a}:{a+3}]'))
def fold(acc, tmp):
    for r in range(4): e(f'v_permlane32_swap_b32 v{acc+r}, v{tmp+r}')
    for r in range(4): e(f'v_add_f32_dpp v{acc+r}, v{tmp+r}, v{acc+r} row_ror:8 row_mask:0xf bank_mask:0xf')
def sadd64(d, s, imm):
    e(f's_add_u32 s{d}, s{s}, {imm}\ns_addc_u32 s{d+1}, s{s+1}, 0')
def retry(top):
    ts_sync()
    e(f's_sub_i32 s{sCNT}, s{sCNT}, 1\ns_cmp_gt_i32 s{sCNT}, 0\ns_cbranch_scc1 {top}')
def load_epoch():
    e(f's_load_dword s{sTAG}, {WS}, {EPO}')
def make_tag():
    e(f's_add_u32 s{sTAG}, s{sTAG}, 0x01010101')
def tag_consts(vff):
    e(f'''s_lshr_b32 s{sT1}, s{sTAG}, 8
    s_lshr_b32 s{sT2}, s{sTAG}, 16
    s_lshr_b32 s{sT3}, s{sTAG}, 24
    s_mov_b32 s{sP01}, 0x0c0c0400
    s_mov_b32 s{sP23}, 0x04000c0c
    v_mov_b32 v{vff}, 0xff''')
def tag4(d, vff):
    for r, s in enumerate((sTAG, sT1, sT2, sT3)): e(f'v_bfi_b32 v{d+r}, v{vff}, s{s}, v{d+r}')
def tag4r(d, vff, st):
    for r, s in enumerate((sTAG, sT1, sT2, sT3)): e(f'v_add_u32 v{d+r}, s{st+r}, v{d+r}')
    tag4(d, vff)
def tag4r_consts(st):
    for r, s in enumerate((sTAG, sT1, sT2, sT3)): e(f's_and_b32 s{st+r}, s{s}, 0xff\ns_sub_u32 s{st+r}, 0x80, s{st+r}')
def chk(gs, t):
    for i, g in enumerate(gs):
        e(f'v_perm_b32 v{t+2*i}, v{g+1}, v{g}, s{sP01}\nv_perm_b32 v{t+2*i+1}, v{g+3}, v{g+2}, s{sP23}')
    for i, g in enumerate(gs):
        e(f'v_bitop3_b32 v{t+2*i}, v{t+2*i}, v{t+2*i+1}, s{sTAG} bitop3:0x56')
    rest = [t + 2 * i for i in range(1, len(gs))]
    while rest:
        if len(rest) >= 2: e(f'v_or3_b32 v{t}, v{t}, v{rest[0]}, v{rest[1]}'); rest = rest[2:]
        else: e(f'v_or_b32 v{t}, v{t}, v{rest[0]}'); rest = []
    e(f'v_cmp_ne_u32 vcc, 0, v{t}')
def silu2(a, b):
    for r in (a, b): e(f'v_lshlrev_b32 v{r}, 16, v{r}')
    for r in (a, b): e(f'v_mul_f32 v{r+6}, {fl(-LOG2E)}, v{r}')
    for r in (a, b): e(f'v_exp_f32 v{r+6}, v{r+6}')
    for r in (a, b): e(f'v_add_f32 v{r+6}, 1.0, v{r+6}')
    for r in (a, b): e(f'v_rcp_f32 v{r+6}, v{r+6}')
    for r in (a, b): e(f'v_mul_f32 v{r}, v{r}, v{r+6}')
    for r in (a, b): e(f'v_cvt_pk_bf16_f32 v{r}, v{r}, v{r}')
def c_addr(a, b, skq, st):
    e(f'''s_mul_i32 s{st}, s{skq}, 112
    v_lshl_add_u32 v{a}, v{vN}, 2, v{vLG}
    v_add_lshl_u32 v{a}, s{st}, v{a}, 1
    v_add_u32 v{b}, 128, v{a}
    v_min_u32 v{b}, 894, v{b}''')
def w_addr(v, t, stride):
    e(f'v_lshrrev_b32 v{v}, 3, v{vN}\nv_lshl_add_u32 v{v}, v{v}, 2, v{vLG}')
    if stride & (stride - 1) == 0: e(f'v_lshlrev_b32 v{v}, {stride.bit_length()-1}, v{v}')
    else: e(f'v_mul_u32_u24 v{v}, {stride}, v{v}')
    e(f'v_and_b32 v{t}, 7, v{vN}\nv_lshl_add_u32 v{v}, v{t}, 4, v{v}')
RED = 0; STT = 5120; STL = 5376
VALID = 0xFF00FF0000FF00FF
def red_write(acc, vaddr):
    exec_set(VALID)
    e(f'ds_write_b128 v{vaddr}, v[{acc}:{acc+3}]')
    exec_set(ALL)
def red_waddr(dst, tmp, pstr):
    e(f'''v_lshrrev_b32 v{tmp}, 1, v{vLG}
    s_lshl_b32 s32, s{sWAVE}, 1
    v_add_u32 v{tmp}, s32, v{tmp}
    v_mul_u32_u24 v{dst}, {pstr}, v{tmp}
    v_and_b32 v{tmp}, 7, v{vN}
    v_lshl_add_u32 v{dst}, v{tmp}, 5, v{dst}
    v_and_b32 v{tmp}, 1, v{vLG}
    v_lshl_add_u32 v{dst}, v{tmp}, 4, v{dst}''')
def quad_raddr(dst, tmp):
    e(f'''v_and_b32 v{tmp}, 3, v{vLANE}
    v_mul_u32_u24 v{dst}, 320, v{tmp}
    v_lshrrev_b32 v{tmp}, 2, v{vLANE}
    v_lshl_add_u32 v{dst}, v{tmp}, 4, v{dst}''')
def pk_tree(d, n):
    s = 1
    while s < n:
        for i in range(0, n - s, 2 * s):
            for h in (0, 2):
                a = d + 4 * i + h; b = d + 4 * (i + s) + h
                e(f'v_pk_add_f32 v[{a}:{a+1}], v[{a}:{a+1}], v[{b}:{b+1}]')
        s *= 2
def quad_reduce(raddr, d):
    for i in range(4): e(f'ds_read_b128 v[{d+4*i}:{d+4*i+3}], v{raddr} offset:{i*1280}')
    e('s_waitcnt lgkmcnt(0)')
    pk_tree(d, 4)
    for p in ('quad_perm:[1,0,3,2]', 'quad_perm:[2,3,0,1]'):
        for r in range(4): dpp_op(d + r, d + r, p)

def prologue():
    e(f"""s_cmp_ge_u32 s2, 256
    s_cbranch_scc1 L_exit
    s_load_dwordx16 s[4:19], s[0:1], 0
    s_load_dwordx8 s[20:27], s[0:1], 64
    s_load_dwordx4 s[28:31], s[0:1], 96""")
    if cfg.dbg:
        e(f'v_mov_b32 v{VTS}, 0'); ts(0)
        if cfg.hd: ts_sync()
    e(f"""v_lshrrev_b32 v10, 6, v0
    v_and_b32 v{vLANE}, 63, v0
    v_readfirstlane_b32 s{sWAVE}, v10
    v_bfe_u32 v{vLG}, v0, 4, 2
    v_and_b32 v{vN}, 15, v0
    s_mov_b32 s{sCNT}, 400000
    s_and_b32 s0, s2, 7
    s_lshr_b32 s34, s2, 3
    s_and_b32 s1, s34, 7""")
    tests = {'X': ('s_cmp_lt_u32 s34, 16', 'L_X'), 'H': ('s_cmp_ge_u32 s34, 24', 'L_H'), 'B': ('s_bitcmp1_b32 0xff0000, s34', 'L_B')}
    for r in cfg.order[:0:-1]:
        e(tests[r][0]); L.append(f's_cbranch_scc1 {tests[r][1]}')
    return list(ts_pend)

SB = 0; HS = 2096; KB = 4608; OB = KB; LDS_BYTES = KB + 65536
def start_X(pend):
    global ts_pend
    ROLE[0] = 'X'
    L.append('L_X:'); ts_pend = list(pend)
    e(f"""s_lshl_b32 s36, s0, 22
    s_lshl_b32 s37, s34, 16
    s_add_u32 s36, s36, s37
    s_lshl_b32 s37, s{sWAVE}, 12
    s_add_u32 m0, s37, {KB}
    s_add_u32 s36, s36, s37
    s_add_u32 s36, s36, {6144*512}
    s_and_b32 s37, s{sWAVE}, 1
    s_lshl_b32 s37, s37, 3
    v_lshrrev_b32 v14, 5, v{vLANE}
    v_and_b32 v15, 31, v{vLANE}
    v_bitop3_b32 v15, v15, v14, s37 bitop3:0x96
    v_lshlrev_b32 v15, 4, v15
    v_lshl_add_u32 v10, v14, 9, v15
    v_xor_b32 v11, 32, v10
    v_xor_b32 v12, 64, v10
    v_xor_b32 v13, 96, v10
    v_lshlrev_b32 v14, 9, v{vLG}
    v_lshl_add_u32 v14, v{vN}, 4, v14
    s_waitcnt lgkmcnt(0)""")
    ts(1)
    e(f"""s_add_u32 s40, s{sK}, s36
    s_addc_u32 s41, s{sK+1}, 0
    s_add_u32 s42, s{sV}, s36
    s_addc_u32 s43, s{sV+1}, 0""")
    for t in range(8):
        if t == 4: e('s_add_u32 m0, m0, 32768'); sadd64(40, 40, 32768)
        if 'k' not in cfg.skip: e(f'global_load_lds_dwordx4 v{10+t%4}, s[40:41] offset:{1024*(t%4)} {cfg.nt}')
    load_epoch()
    if cfg.kvbar: e('s_barrier')
    for i in range(8):
        if i == 4: sadd64(42, 42, 32768)
        ld(f'global_load_dwordx4 v[{64+4*i}:{67+4*i}], v14, s[42:43] offset:{(i&1)*256+((i>>1)&1)*2048} {cfg.nt}', 'v')
    ts(2)
    if cfg.order[-1] != 'X': br('s_branch', 'L_X2')
def role_X():
    ROLE[0] = 'X'
    label('L_X2')
    gemv_consts()
    e(f"""s_lshl_b32 s35, s0, 4
    s_add_u32 s{sR0}, s35, s34
    s_and_b32 s36, s{sWAVE}, 3
    s_lshl_b32 s37, s36, 3
    v_xor_b32 v16, s37, v{vN}
    v_lshlrev_b32 v16, 4, v16
    v_lshl_add_u32 v16, v{vLANE}, 9, v16
    v_add_u32 v16, {KB}, v16""")
    for i in range(1, 8): e(f'v_xor_b32 v{16+i}, {16*i}, v16')
    e(f"""s_lshr_b32 s37, s{sWAVE}, 2
    s_mul_i32 s37, s37, {HS}
    s_lshl_b32 s36, s36, 2
    s_add_u32 s36, s36, s37
    v_lshl_add_u32 v36, v{vLANE}, 4, s36
    v_and_b32 v40, 1, v{vN}
    v_mul_u32_u24 v40, {HS}, v40
    v_lshl_add_u32 v40, v{vLG}, 4, v40
    v_bfe_u32 v41, v{vN}, 1, 1
    v_lshl_add_u32 v40, v41, 6, v40
    v_bfe_u32 v41, v{vN}, 2, 1
    v_mul_u32_u24 v41, 1056, v41
    v_add_u32 v40, v40, v41
    v_lshrrev_b32 v41, 3, v{vN}
    v_add_u32 v41, s{sWAVE}, v41""")
    for r in range(4):
        e(f'v_add_u32 v42, {2*r}, v41\nv_and_b32 v42, 7, v42\nv_lshl_add_u32 v{32+r}, v42, 7, v40')
    e(f"""v_lshrrev_b32 v40, 1, v{vLG}
    v_lshlrev_b32 v37, 10, v40
    v_lshl_add_u32 v37, v{vN}, 5, v37
    v_and_b32 v40, 1, v{vLG}
    v_lshl_add_u32 v37, v40, 4, v37
    s_lshl_b32 s36, s{sWAVE}, 11
    s_add_u32 s36, s36, {OB}
    v_add_u32 v37, s36, v37
    s_lshl_b32 s36, s{sWAVE}, 10
    s_add_u32 s36, s36, {OB}
    v_lshl_add_u32 v38, v{vLANE}, 4, s36
    s_lshl_b32 s36, s0, 15
    s_lshl_b32 s37, s{sWAVE}, 14
    s_add_u32 s36, s36, s37
    s_lshl_b32 s37, s34, 10
    s_add_u32 s36, s36, s37
    s_add_u32 s36, s36, {M3}
    v_lshl_add_u32 v39, v{vLANE}, 4, s36
    s_lshl_b32 s36, s{sR0}, 7
    s_add_u32 s36, s36, {ST}
    v_lshl_add_u32 v15, v{vLANE}, 4, s36
    s_lshl_b32 s36, s{sR0}, 3
    s_add_u32 s36, s36, s{sWAVE}
    s_lshl_b32 s36, s36, 8
    s_add_u32 s36, s36, {M2}
    s_add_u32 s16, s{sWS}, s36
    s_addc_u32 s17, s{sWS+1}, 0
    s_mov_b32 s1, s34
    v_mov_b32 v24, 0
    v_mov_b32 v25, 0
    s_waitcnt lgkmcnt(0)""")
    make_tag(); tag_consts(14)
    e(f's_lshl_b32 s18, s{sTAG}, 4\ns_waitcnt vmcnt(8)\ns_barrier')
    ts(3)
    for h in range(2):
        for i in range(8):
            r = 96 + 32 * h + 4 * i
            e(f'ds_read_b128 v[{r}:{r+3}], v{16+i} offset:{32768*h}')
    top = lab('qg'); out = lab('qo')
    label(top)
    for i in range(4): e(f's_load_dwordx16 s[{32+16*i}:{47+16*i}], s[16:17], {64*i} glc')
    e('s_waitcnt lgkmcnt(0)\ns_add_u32 s20, s34, s38')
    for g in range(2, 16): e(f's_add_u32 s20, s20, s{34+4*g}')
    e('s_cmp_eq_u32 s20, s18')
    br('s_cbranch_scc1', out)
    retry(top)
    label(out)
    ts(4)
    for m in range(32):
        for h in range(2): e(f'v_dot2c_f32_bf16 v{24+h}, s{32+4*(m>>1)+(m&1)}, v{96+32*h+m}')
    e('ds_write_b32 v36, v24\nds_write_b32 v36, v25 offset:1056\ns_waitcnt lgkmcnt(0)\ns_barrier')
    ts(5); ts_sync()
    for r in range(4): e(f'ds_read_b128 v[{40+4*r}:{43+4*r}], v{32+r}')
    for r in range(4):
        L.append(f's_waitcnt lgkmcnt({3-r})')
        e(f'v_pk_add_f32 v[{40+4*r}:{41+4*r}], v[{40+4*r}:{41+4*r}], v[{42+4*r}:{43+4*r}]')
    for r in range(4): e(f'v_add_f32 v{40+4*r}, v{40+4*r}, v{41+4*r}')
    e('v_max3_f32 v56, v40, v44, v48\nv_max_f32 v56, v56, v52')
    for p in (2, 4, 8): dpp_op(56, 56, f'row_ror:{p}', 'max')
    xrows(56, 57, 'max')
    SC = fl(0.0625 * LOG2E)
    e(f"""v_cvt_pk_bf16_f32 v57, v40, v56
    v_lshlrev_b32 v40, 16, v57
    v_and_b32 v56, 0xffff0000, v57
    v_sub_f32 v40, v40, v56
    v_mul_f32 v40, {SC}, v40
    v_exp_f32 v40, v40
    s_cmp_eq_u32 s{sWAVE}, 7""")
    br('s_cbranch_scc1', 'L_Xst')
    e('s_waitcnt vmcnt(0)')
    label('L_Xpv')
    e('v_cvt_pk_bf16_f32 v40, v40, v40')
    gemv([(40, 2 * t, [64 + 8 * t, 68 + 8 * t], None) for t in range(4)], acc=24, val=44, A=48)
    e('ds_write_b128 v37, v[24:27]\nds_write_b128 v37, v[28:31] offset:512\ns_waitcnt lgkmcnt(0)')
    ts(6)
    e('s_barrier')
    e(f's_cmp_ge_u32 s{sWAVE}, 2')
    br('s_cbranch_scc1', 'L_Xg')
    for i in range(8): e(f'ds_read_b128 v[{64+4*i}:{67+4*i}], v38 offset:{2048*i}')
    for i in range(0, 8, 2):
        L.append(f's_waitcnt lgkmcnt({6-i})')
        for h in (0, 2):
            a = 64 + 4 * i + h
            e(f'v_pk_add_f32 v[{a}:{a+1}], v[{a}:{a+1}], v[{a+4}:{a+5}]')
    for a, b in ((64, 72), (80, 88), (64, 80)):
        for h in (0, 2): e(f'v_pk_add_f32 v[{a+h}:{a+h+1}], v[{a+h}:{a+h+1}], v[{b+h}:{b+h+1}]')
    tag4(64, 14)
    e(f'global_store_dwordx4 v39, v[64:67], {WS} sc1')
    ts(7)
    label('L_fin')
    wave_end()
    label('L_Xg')
    e(f"""s_lshl_b32 s1, s1, 3
    s_add_u32 s1, s1, s0
    s_cmp_eq_u32 s{sWAVE}, 3
    s_cselect_b32 s1, s1, 99
    s_cmp_lt_u32 s1, 28""")
    br('s_cbranch_scc1', 'L_G')
    br('s_branch', 'L_fin')
    label('L_Xst')
    e(f"""v_cvt_pk_bf16_f32 v44, v44, v48
    v_cvt_pk_bf16_f32 v52, v52, v52
    v_and_b32 v48, 0xffff0000, v44
    v_lshlrev_b32 v44, 16, v44
    v_and_b32 v52, 0xffff0000, v52""")
    for r in (44, 48, 52): e(f'v_sub_f32 v{r}, v{r}, v56')
    for r in (44, 48, 52): e(f'v_mul_f32 v{r}, {SC}, v{r}')
    for r in (44, 48, 52): e(f'v_exp_f32 v{r}, v{r}')
    e(f'v_add_f32 v57, v40, v44\nv_add_f32 v48, v48, v52\nv_mov_b32 v58, s{sTAG}\nv_add_f32 v57, v57, v48')
    for p in (2, 4, 8): dpp_op(57, 57, f'row_ror:{p}')
    xrows(57, 59)
    exec_set(3)
    e(f'global_store_dwordx4 v15, v[56:59], {WS} sc1')
    exec_set(ALL)
    e('s_waitcnt vmcnt(1)')
    br('s_branch', 'L_Xpv')

def start_H(pend):
    global ts_pend
    ROLE[0] = 'H'
    L.append('L_H:'); ts_pend = list(pend)
    if cfg.aearly:
        e(f"""s_lshl_b32 s{sR0}, s0, 3
        s_add_u32 s{sR0}, s{sR0}, s1
        s_mov_b32 s34, s0
        s_lshl_b32 s35, s1, 1
        s_add_u32 s35, s35, s{sWAVE}
        s_lshl_b32 s36, s2, 3
        s_or_b32 s36, s36, s{sWAVE}
        s_and_b32 s36, s36, 0x26
        s_cmp_lt_u32 s35, 14
        s_cselect_b32 s36, s36, 1
        s_cmp_lg_u32 s36, 0""")
        L.append('s_cbranch_scc1 L_Hoth')
    else:
        e(f"""s_lshl_b32 s35, s0, 3
        s_mul_i32 s36, s0, 6
        s_add_u32 s36, s36, 8
        s_cmp_lt_u32 s0, 4
        s_cselect_b32 s35, s35, s36
        s_cselect_b32 s36, 8, 6
        s_add_u32 s{sR0}, s35, s1
        s_cmp_ge_u32 s1, s36""")
        L.append('s_cbranch_scc1 L_spare')
        e(f's_cmp_lg_u32 s{sWAVE}, 0')
        L.append('s_cbranch_scc1 L_Hidle')
        e(f"""s_mul_i32 s34, s{sR0}, 4682
        s_lshr_b32 s34, s34, 16
        s_mul_i32 s35, s34, 14
        s_sub_u32 s35, s{sR0}, s35""")
    L.append('L_mod:')
    c_addr(26, 27, 34, 37); w_addr(28, 29, 5376)
    e(f"""s_mul_i32 s38, s37, 5376
    s_lshl_b32 s39, s35, 7
    s_add_u32 s38, s38, s39
    s_mov_b32 s39, {8*5376}
    s_waitcnt lgkmcnt(0)""")
    ts(1)
    e(f"""global_load_ushort v16, v26, s[{sC}:{sC+1}]
    global_load_ushort v17, v27, s[{sC}:{sC+1}]
    s_add_u32 s44, s{sWM}, s38
    s_addc_u32 s45, s{sWM+1}, 0""")
    for t in range(14):
        e(f'global_load_dwordx4 v[{64+4*t}:{67+4*t}], v28, s[44:45] {cfg.nt}')
        if t < 13: e('v_add_u32 v28, s39, v28')
    ts(8)
    br('s_branch', 'L_mod2')
def role_H(pend):
    global ts_pend
    ROLE[0] = 'H'
    label('L_mod2')
    e(f's_cmp_eq_u32 s{sR0}, -1')
    br('s_cbranch_scc1', 'L_mod3')
    load_epoch()
    e('s_waitcnt lgkmcnt(0)')
    make_tag()
    label('L_mod3')
    gemv_consts()
    e(f"""v_lshlrev_b32 v18, 5, v{vN}
    v_lshl_add_u32 v18, v{vLG}, 4, v18
    s_mul_i32 s46, s34, 3584
    s_mul_i32 s47, s34, 7168
    s_add_u32 s47, s47, {M6 - 14*256}
    s_cmp_lt_u32 s35, 14
    s_cselect_b32 s46, s46, s47
    s_lshl_b32 s47, s35, 8
    s_add_u32 s46, s46, s47
    v_add_u32 v18, s46, v18""")
    tag_consts(19); tag4r_consts(48)
    e('s_waitcnt vmcnt(14)')
    silu2(16, 17)
    gemv([(16 + t // 8, (2 * t) % 16, 64 + 4 * t, f's_waitcnt vmcnt({13-t})') for t in range(14)], acc=24, val=22, A=28)
    fold(24, 32)
    tag4r(24, 19, 48)
    exec_set(0x00FF00FF)
    e(f'global_store_dwordx4 v18, v[24:27], {WS} sc1')
    exec_set(ALL)
    ts(9)
    e('s_cmp_ge_u32 s35, 14')
    br('s_cbranch_scc1', 'L_fin')
    e('s_barrier')
    br('s_branch', 'L_EF')
    def warm():
        e(f"""v_lshrrev_b32 v40, 3, v{vLANE}
        v_lshlrev_b32 v40, 13, v40
        v_and_b32 v41, 7, v{vLANE}
        v_lshl_add_u32 v40, v41, 7, v40
        s_mul_i32 s44, s1, {24*8192}
        s_mov_b32 s46, 0x10000
        s_waitcnt lgkmcnt(0)""")
        if cfg.aearly:
            e(f"""s_cmp_ge_u32 s0, 4""")
            br('s_cbranch_scc1', 'L_wl')
            e(f"""s_lshr_b32 s44, s{sWQ}, 7
            s_sub_u32 s44, 3, s44
            s_and_b32 s44, s44, 7
            s_lshl_b32 s44, s44, 7
            v_lshlrev_b32 v40, 13, v{vLANE}
            s_mov_b32 s46, 0x80000""")
            label('L_wl')
        e(f"""s_lshl_b32 s45, s0, 10
        s_add_u32 s44, s44, s45
        s_add_u32 s44, s44, {256*8192}
        v_add_u32 v40, s44, v40
        v_add_u32 v42, s46, v40
        v_add_u32 v43, s46, v42""")
        for r in (40, 42, 43): e(f'global_load_dword v63, v{r}, s[{sWQ}:{sWQ+1}] {cfg.nt}')
    def prefetch():
        e(f"""s_getpc_b64 s[40:41]
        L_pc:
        s_sub_u32 s40, s40, L_pc-{KN}
        s_subb_u32 s41, s41, 0
        v_lshlrev_b32 v15, 7, v{vLANE}
        v_add_u32 v16, 8192, v15
        v_min_u32 v16, L_end-{KN}-4, v16
        global_load_dword v63, v15, s[40:41]
        global_load_dword v63, v16, s[40:41]""")
    ts_pend = list(pend)
    if cfg.aearly:
        L.append('L_Hoth:')
        e(f's_cmp_lt_u32 s0, 4')
        L.append('s_cbranch_scc1 L_Hidle')
        e(f"""s_mul_i32 s{sR0}, s0, 6
        s_add_u32 s{sR0}, s{sR0}, s1
        s_add_u32 s{sR0}, s{sR0}, 8
        s_cmp_lt_u32 s1, 6""")
        L.append('s_cbranch_scc1 L_Hidle')
    L.append('L_spare:')
    e(f"""s_lshl_b32 s36, s0, 1
    s_add_u32 s36, s36, s1
    s_sub_u32 s36, s36, 14
    s_lshl_b32 s37, s{sWAVE}, 3
    s_add_u32 s36, s36, s37
    s_and_b32 s34, s36, 3
    s_lshr_b32 s35, s36, 2
    s_add_u32 s35, s35, 14
    s_mov_b32 s{sR0}, 99""")
    if not cfg.warm: L.append('s_branch L_mod')
    else:
        e(f's_cmp_lg_u32 s{sWAVE}, 2')
        L.append('s_cbranch_scc1 L_mod')
    L.append('L_Hidle:')
    if cfg.pf:
        e(f's_lshl_b32 s36, s1, 3\ns_add_u32 s36, s36, s{sWAVE}\ns_cmp_lg_u32 s36, 3')
        L.append('s_cbranch_scc1 L_nopf')
        prefetch()
        L.append('L_nopf:')
    if cfg.warm:
        e(f's_cmp_lg_u32 s{sWAVE}, 2')
        L.append('s_cbranch_scc1 L_nowarm')
        if cfg.aearly:
            e(f's_cmp_lt_u32 s0, 4\ns_cselect_b32 s36, s1, 7\ns_cmp_lg_u32 s36, 7')
            L.append('s_cbranch_scc1 L_nowarm')
        keep = list(ts_pend)
        warm()
        e(f's_cmp_eq_u32 s{sR0}, 99')
        br('s_cbranch_scc1', 'L_mod')
        label('L_nowarm')
        ts_pend = keep
    e('s_waitcnt lgkmcnt(0)')
    load_epoch()
    gemv_consts()
    e('s_waitcnt lgkmcnt(0)')
    make_tag(); tag_consts(19)
    e('s_barrier')
    br('s_branch', 'L_EF')

def start_B(pend):
    global ts_pend
    ROLE[0] = 'B'
    L.append('L_B:'); ts_pend = list(pend)
    e(f"""s_lshl_b32 s35, s0, 3
    s_add_u32 s{sR0}, s35, s1
    v_lshlrev_b32 v10, 4, v{vLANE}
    v_min_u32 v10, 880, v10
    v_min_u32 v11, 13, v{vN}
    s_mul_i32 s34, s{sWAVE}, 56
    v_lshl_add_u32 v11, v11, 2, s34
    v_add_lshl_u32 v12, v11, v{vLG}, 1""")
    w_addr(13, 14, 8192)
    e(f"""s_lshl_b32 s35, s34, 13
    s_lshl_b32 s36, s{sR0}, 7
    s_add_u32 s35, s35, s36
    s_mov_b32 s36, 0x10000
    s_waitcnt lgkmcnt(0)""")
    ts(1)
    e(f"""global_load_dwordx4 v[16:19], v10, s[{sX}:{sX+1}]
    global_load_ushort v20, v12, s[{sX}:{sX+1}]
    s_add_u32 s40, s{sWQ}, s35
    s_addc_u32 s41, s{sWQ+1}, 0""")
    for t in range(7):
        e(f'global_load_dwordx4 v[{64+4*t}:{67+4*t}], v13, s[40:41] {cfg.nt}')
        if t < 6: e('v_add_u32 v13, s36, v13')
    br('s_branch', 'L_B2')
def role_B():
    ROLE[0] = 'B'
    label('L_B2')
    load_epoch()
    gemv_consts()
    e(f"""v_mul_u32_u24 v15, 3584, v{vLG}
    v_lshl_add_u32 v15, v11, 2, v15""")
    red_waddr(21, 22, 320)
    quad_raddr(23, 22)
    e(f"""s_lshl_b32 s36, s0, 15
    s_lshl_b32 s37, s1, 8
    s_add_u32 s36, s36, s37
    s_add_u32 s36, s36, {M2}
    v_and_b32 v50, 3, v{vLANE}
    v_lshlrev_b32 v50, 11, v50
    v_lshrrev_b32 v51, 2, v{vLANE}
    v_lshl_add_u32 v50, v51, 4, v50
    v_add_u32 v50, s36, v50
    v_add_u32 v51, 8192, v50
    v_add_u32 v52, 16384, v50
    v_add_u32 v53, 24576, v50
    v_cmp_gt_u32 vcc, 56, v{vLANE}
    v_cndmask_b32 v31, 0, 1.0, vcc
    s_waitcnt vmcnt(7)""")
    for i in range(4):
        e(f'v_lshlrev_b32 v{32+2*i}, 16, v{16+i}\nv_and_b32 v{33+2*i}, 0xffff0000, v{16+i}')
    e("""v_pk_add_f32 v[40:41], v[32:33], v[34:35]
    v_pk_add_f32 v[42:43], v[36:37], v[38:39]
    v_pk_add_f32 v[40:41], v[40:41], v[42:43]
    v_add_f32 v40, v40, v41
    v_mul_f32 v40, v40, v31""")
    wavesum(40, 41)
    e(f'v_mul_f32 v40, {fl(1/448)}, v40')
    for i in range(8): e(f'v_sub_f32 v{32+i}, v{32+i}, v40')
    e('v_mul_f32 v42, v32, v32')
    for i in range(1, 8): e(f'v_fmac_f32 v42, v{32+i}, v{32+i}')
    e('v_mul_f32 v42, v42, v31')
    wavesum(42, 41)
    e(f'v_mul_f32 v42, {fl(1/448)}, v42')
    rnd(40, 40); rnd(42, 42)
    e(f'v_add_f32 v42, {fl(1e-5)}, v42'); rnd(42, 42)
    e('v_sqrt_f32 v42, v42'); rnd(42, 42)
    e('v_rcp_f32 v42, v42\nv_lshlrev_b32 v20, 16, v20\nv_sub_f32 v20, v20, v40'); rnd(20, 20)
    e('v_mul_f32 v20, v20, v42'); rnd(20, 20)
    ts(2)
    e('s_waitcnt lgkmcnt(0)')
    e(f's_mov_b32 s56, s{sC}\ns_mov_b32 s57, s{sC+1}')
    make_tag(); tag_consts(19)
    e(f'v_mov_b32 v58, s{sTAG}\nv_mov_b32 v59, s{sTAG}')
    if cfg.dbg: e('s_waitcnt vmcnt(0)'); ts(3)
    top = lab('bg'); out = lab('bgo')
    label(top)
    e(f"""global_load_dwordx4 v[32:35], v15, {WS} sc1
    global_load_dwordx4 v[36:39], v15, {WS} offset:1792 sc1
    s_waitcnt vmcnt(0)""")
    chk([32, 36], 40)
    br('s_cbranch_vccz', out)
    retry(top)
    label(out)
    red4rows_multi([32, 36])
    ts(4)
    rnd(36, 36); rnd(32, 32)
    e('v_add_f32 v36, 1.0, v36'); rnd(36, 36)
    e('v_mul_f32 v36, v20, v36'); rnd(36, 36)
    e('v_add_f32 v36, v36, v32\nv_cvt_pk_bf16_f32 v36, v36, v36')
    gemv([(36, 2 * t, 64 + 4 * t, None) for t in range(7)], acc=24, val=44, A=28)
    red_write(24, 21)
    e('s_waitcnt lgkmcnt(0)\ns_barrier')
    e(f's_cmp_lg_u32 s{sWAVE}, 0')
    br('s_cbranch_scc1', 'L_Bdone')
    quad_reduce(23, 32)
    e('v_cvt_pk_bf16_f32 v56, v32, v33\nv_cvt_pk_bf16_f32 v57, v34, v35')
    for i in range(4): e(f'global_store_dwordx4 v{50+i}, v[56:59], {WS} sc1')
    ts(5)
    label('L_Bdone')
    e(f"""s_barrier
    s_cmp_lt_u32 s1, 7""")
    br('s_cbranch_scc1', 'L_D')
    e(f"""s_cmp_ge_u32 s{sWAVE}, 6""")
    br('s_cbranch_scc1', 'L_fin')
    e(f"""s_lshl_b32 s36, s{sWAVE}, 3
    s_add_u32 s36, s36, s0
    s_and_b32 s34, s36, 3
    s_lshr_b32 s35, s36, 2
    s_add_u32 s35, s35, 30
    s_mov_b32 s{sR0}, -1
    s_mov_b32 s{sC}, s56
    s_mov_b32 s{sC+1}, s57""")
    br('s_branch', 'L_mod')

def role_D():
    ROLE[0] = 'D'
    label('L_D')
    w_addr(13, 14, 896)
    e(f'''s_lshl_b32 s34, s0, 3
    s_add_u32 s34, s34, s{sWAVE}
    s_mul_i32 s34, s34, {64*896}
    s_lshl_b32 s35, s1, 7
    s_add_u32 s34, s34, s35
    s_add_u32 s40, s{sWO}, s34
    s_addc_u32 s41, s{sWO+1}, 0''')
    for t in range(8):
        ld(f'global_load_dwordx4 v[{64+4*t}:{67+4*t}], v13, s[40:41] {cfg.nt}', 'o')
        if t < 7: sadd64(40, 40, 7168)
    ts(6)
    e(f'''v_bfe_u32 v10, v{vLANE}, 1, 1
    v_and_b32 v11, 1, v{vLANE}
    s_lshl_b32 s34, s{sWAVE}, 1
    v_add_u32 v10, s34, v10
    v_lshlrev_b32 v30, 7, v10
    v_lshl_add_u32 v30, v11, 4, v30
    s_lshl_b32 s35, s0, 11
    s_add_u32 s35, s35, {ST}
    v_add_u32 v30, s35, v30
    v_lshlrev_b32 v12, 3, v10
    v_lshl_add_u32 v12, v11, 7, v12
    v_lshl_add_u32 v15, v{vLG}, 2, v{vN}
    v_and_b32 v15, 15, v15
    s_lshr_b32 s34, s{sWAVE}, 2
    s_lshl_b32 s35, s34, 7
    v_lshl_add_u32 v15, v15, 3, s35
    v_lshlrev_b32 v31, 12, v{vLG}
    v_lshl_add_u32 v31, v{vN}, 4, v31
    s_lshl_b32 s35, s0, 15
    s_lshl_b32 s34, s34, 14
    s_add_u32 s35, s35, s34
    s_and_b32 s34, s{sWAVE}, 3
    s_lshl_b32 s34, s34, 8
    s_add_u32 s35, s35, s34
    s_add_u32 s35, s35, {M3}
    v_add_u32 v31, s35, v31
    s_mul_i32 s34, s0, 1792
    s_lshl_b32 s35, s1, 8
    s_add_u32 s34, s34, s35
    s_add_u32 s34, s34, {M4}
    v_lshl_add_u32 v20, v{vLANE}, 2, s34''')
    red_waddr(21, 22, 320)
    quad_raddr(23, 22)
    exec_set(0xF)
    top = lab('sg'); out = lab('sgo')
    label(top)
    e(f'global_load_dwordx3 v[32:34], v30, {WS} sc1\ns_waitcnt vmcnt(0)\nv_cmp_ne_u32 vcc, s{sTAG}, v34')
    br('s_cbranch_vccz', out)
    retry(top)
    label(out)
    e(f'ds_write_b64 v12, v[32:33] offset:{STL}')
    exec_set(ALL)
    e('s_waitcnt lgkmcnt(0)')
    ts(7)
    e('s_barrier')
    def o_loads():
        for t in range(4): e(f'global_load_dwordx4 v[{40+4*t}:{43+4*t}], v31, {WS} offset:{t*1024} sc1')
    o_loads()
    e(f'ds_read_b64 v[32:33], v15 offset:{STL}\ns_waitcnt lgkmcnt(0)\nv_mov_b32 v34, v32')
    rowsum(34, 'max')
    e(f'''v_sub_f32 v32, v32, v34
    v_mul_f32 v32, {fl(0.0625*LOG2E)}, v32
    v_exp_f32 v32, v32
    v_mul_f32 v33, v33, v32''')
    rowsum(33)
    e('v_rcp_f32 v33, v33\nv_mul_f32 v32, v32, v33')
    for t in range(4): e(f'v_mov_b32_dpp v{36+t}, v32 row_newbcast:{t} row_mask:0xf bank_mask:0xf')
    top = lab('og'); out = lab('ogo')
    label(top)
    e('s_waitcnt vmcnt(0)')
    chk([40, 44, 48, 52], 56)
    br('s_cbranch_vccz', out)
    o_loads()
    retry(top)
    e('s_waitcnt vmcnt(0)')
    label(out)
    ts(8)
    for t in range(4):
        b = 36 + (t & ~1)
        for h in (0, 2):
            if t == 0:
                e(f'v_pk_mul_f32 v[{32+h}:{33+h}], v[{40+h}:{41+h}], v[{b}:{b+1}] op_sel_hi:[1,0]')
            else:
                sel = 'op_sel_hi:[1,0,1]' if t % 2 == 0 else 'op_sel:[0,1,0] op_sel_hi:[1,1,1]'
                e(f'v_pk_fma_f32 v[{32+h}:{33+h}], v[{40+4*t+h}:{41+4*t+h}], v[{b}:{b+1}], v[{32+h}:{33+h}] {sel}')
    red4rows(32)
    e('v_cvt_pk_bf16_f32 v32, v32, v32')
    gemv([(32, 2 * t, 64 + 4 * t, None) for t in range(8)], acc=24, val=44, A=48)
    red_write(24, 21)
    e('s_waitcnt lgkmcnt(0)')
    ts(9)
    e('s_barrier')
    e(f's_cmp_lg_u32 s{sWAVE}, 0')
    br('s_cbranch_scc1', 'L_fin')
    quad_reduce(23, 32)
    tag4(32, 19)
    exec_set(0x1111111111111111)
    e(f'global_store_dwordx4 v20, v[32:35], {WS} sc1')
    exec_set(ALL)
    ts(10)
    br('s_branch', 'L_fin')

def role_EF():
    ROLE[0] = 'E'
    label('L_EF')
    if cfg.efrev:
        e(f's_and_b32 s34, s{sR0}, 1\ns_mul_i32 s34, s34, 7\ns_xor_b32 s34, s34, s{sWAVE}\ns_mul_i32 s34, s34, 56')
    else:
        e(f's_mul_i32 s34, s{sWAVE}, 56')
    e(f'''v_lshrrev_b32 v13, 3, v{vN}
    v_lshl_add_u32 v13, v13, 2, v{vLG}
    v_add_u32 v18, s34, v13
    v_mul_u32_u24 v18, 3584, v18
    v_and_b32 v12, 3, v{vN}
    v_lshl_add_u32 v18, v12, 4, v18
    s_lshl_b32 s35, s{sR0}, 6
    v_add_u32 v18, s35, v18
    v_and_b32 v12, 4, v{vN}
    v_cmp_eq_u32 vcc, 0, v12
    v_mov_b32 v16, s{sUP}
    v_mov_b32 v17, s{sGT}
    v_cndmask_b32 v16, v16, v17, vcc
    v_mov_b32 v17, s{sUP+1}
    v_mov_b32 v12, s{sGT+1}
    v_cndmask_b32 v17, v17, v12, vcc
    v_add_co_u32 v16, vcc, v16, v18
    v_addc_co_u32 v17, vcc, 0, v17, vcc
    s_mov_b32 s52, 28672
    s_mov_b32 s53, 0''')
    for t in range(7):
        ld(f'global_load_dwordx4 v[{64+4*t}:{67+4*t}], v[16:17], off {cfg.nt}', 'e')
        if t < 6: e('v_lshl_add_u64 v[16:17], v[16:17], 0, s[52:53]')
    e(f'''v_mul_u32_u24 v13, 896, v13
    v_and_b32 v12, 7, v{vN}
    v_lshl_add_u32 v13, v12, 4, v13
    s_mul_i32 s35, s{sR0}, {32*896}
    s_min_u32 s36, s{sWAVE}, 6
    s_lshl_b32 s36, s36, 7
    s_add_u32 s35, s35, s36
    s_add_u32 s54, s{sDN}, s35
    s_addc_u32 s55, s{sDN+1}, 0
    s_cmp_eq_u32 s{sWAVE}, 7''')
    br('s_cbranch_scc1', 'L_nodn')
    for t in range(4):
        ld(f'global_load_dwordx4 v[{96+4*t}:{99+4*t}], v13, s[54:55] {cfg.nt}', 'e')
        if t < 3: sadd64(54, 54, 7168)
    label('L_nodn')
    ts(6)
    e(f'''v_min_u32 v11, 13, v{vN}
    v_lshl_add_u32 v11, v11, 2, s34
    v_add_lshl_u32 v12, v11, v{vLG}, 1
    global_load_ushort v20, v12, s[{sX}:{sX+1}]
    v_mul_u32_u24 v15, 7168, v{vLG}
    v_lshl_add_u32 v15, v11, 2, v15
    v_add_u32 v15, {M6}, v15
    v_mul_u32_u24 v14, 1792, v{vLG}
    v_lshl_add_u32 v14, v11, 2, v14
    v_add_u32 v14, {M4}, v14
    v_add_u32 v13, 7168, v14
    v_cmp_gt_u32 vcc, 14, v{vN}
    v_cndmask_b32 v31, 0, 1.0, vcc''')
    red_waddr(21, 22, 256)
    e(f'''v_lshlrev_b32 v23, 4, v{vLANE}
    v_lshrrev_b32 v22, 5, v{vLANE}
    v_lshlrev_b32 v22, 2, v22
    s_lshl_b32 s36, s{sWAVE}, 4
    s_add_u32 s36, s36, {STT}
    v_add_u32 v22, s36, v22
    v_and_b32 v18, 7, v{vLANE}
    v_lshlrev_b32 v18, 4, v18
    v_add_u32 v18, {STT}, v18
    v_lshrrev_b32 v10, 1, v{vN}
    s_lshl_b32 s36, s{sWAVE}, 2
    v_add_u32 v10, s36, v10
    v_mul_u32_u24 v10, 7168, v10
    v_and_b32 v12, 1, v{vN}
    v_lshl_add_u32 v10, v12, 5, v10
    v_lshl_add_u32 v10, v{vLG}, 4, v10
    s_lshl_b32 s36, s{sR0}, 7
    s_add_u32 s36, s36, {M5}
    v_add_u32 v10, s36, v10''')
    top = lab('m6'); out = lab('m6o')
    label(top)
    e(f'''global_load_dwordx4 v[32:35], v15, {WS} sc1
    global_load_dwordx4 v[36:39], v15, {WS} offset:1792 sc1
    global_load_dwordx4 v[40:43], v15, {WS} offset:3584 sc1
    s_waitcnt vmcnt(0)''')
    chk([32, 36, 40], 44)
    br('s_cbranch_vccz', out)
    e('s_sleep 2')
    retry(top)
    label(out)
    red4rows_multi([32, 36, 40])
    rnd(56, 32); rnd(57, 36); rnd(58, 40)
    e('v_add_f32 v58, 1.0, v58'); rnd(58, 58)
    e('v_lshlrev_b32 v20, 16, v20')
    ts(7)
    top = lab('m4'); out = lab('m4o')
    label(top)
    e(f'''global_load_dwordx4 v[32:35], v14, {WS} sc1
    global_load_dwordx4 v[36:39], v13, {WS} sc1
    s_waitcnt vmcnt(0)''')
    chk([32, 36], 40)
    br('s_cbranch_vccz', out)
    retry(top)
    label(out)
    ts(10)
    pk_tree(32, 2)
    red4rows(32)
    rnd(32, 32)
    e('v_mul_f32 v32, v56, v32'); rnd(32, 32)
    e('v_add_f32 v32, v20, v32'); rnd(32, 32)
    e('''v_readfirstlane_b32 s36, v32
    v_subrev_f32 v33, s36, v32
    v_mul_f32 v33, v33, v31
    v_mul_f32 v34, v33, v33
    v_mov_b32 v36, s36
    v_permlane32_swap_b32 v33, v34
    v_add_f32 v33, v33, v34
    v_mov_b32 v34, v33
    v_permlane16_swap_b32 v33, v34
    v_add_f32 v33, v33, v34''')
    rowsum(33)
    exec_set(0x0000000100000001)
    e('ds_write_b32 v22, v33\nds_write_b32 v22, v36 offset:8')
    exec_set(ALL)
    e('s_waitcnt lgkmcnt(0)\ns_barrier\nds_read_b96 v[36:38], v18\ns_waitcnt lgkmcnt(0)')
    e(f'''v_mul_f32 v39, {fl(1/56)}, v36
    v_add_f32 v38, v38, v39
    v_fma_f32 v37, -v36, v39, v37
    v_mov_b32 v40, v38''')
    for p in ('quad_perm:[1,0,3,2]', 'quad_perm:[2,3,0,1]', 'row_half_mirror'): dpp_op(40, 40, p)
    e(f'''v_mul_f32 v40, 0.125, v40
    v_sub_f32 v38, v38, v40
    v_mul_f32 v39, {fl(56.0)}, v38
    v_fmac_f32 v37, v39, v38''')
    for p in ('quad_perm:[1,0,3,2]', 'quad_perm:[2,3,0,1]', 'row_half_mirror'): dpp_op(37, 37, p)
    rnd(40, 40)
    e(f'v_mul_f32 v37, {fl(1/448)}, v37\nv_max_f32 v37, 0, v37'); rnd(37, 37)
    e(f'v_add_f32 v37, {fl(1e-5)}, v37'); rnd(37, 37)
    e('v_sqrt_f32 v37, v37\nv_sub_f32 v32, v32, v40'); rnd(37, 37); rnd(32, 32)
    e('v_rcp_f32 v37, v37\nv_mul_f32 v32, v32, v37'); rnd(32, 32)
    e('v_mul_f32 v32, v32, v58'); rnd(32, 32)
    e('v_add_f32 v32, v32, v57\nv_cvt_pk_bf16_f32 v32, v32, v32')
    gemv([(32, 2 * t, 64 + 4 * t, None) for t in range(7)], acc=24, val=44, A=28)
    red_write(24, 21)
    e('s_waitcnt lgkmcnt(0)\ns_barrier')
    ts(11)
    e(f's_cmp_eq_u32 s{sWAVE}, 7')
    br('s_cbranch_scc1', 'L_fin')
    for i in range(4): e(f'ds_read_b128 v[{32+4*i}:{35+4*i}], v23 offset:{RED+i*1024}')
    e('s_waitcnt lgkmcnt(0)')
    pk_tree(32, 4)
    red4rows(32)
    rnd(32, 32)
    kk = -2 * math.sqrt(2 / math.pi) * LOG2E
    e(f'''v_mul_f32 v33, v32, v32
    v_mov_b32_dpp v35, v32 row_ror:8 row_mask:0xf bank_mask:0xf
    v_mul_f32 v33, {fl(0.044715*kk)}, v33
    v_add_f32 v33, {fl(kk)}, v33
    v_mul_f32 v33, v33, v32
    v_exp_f32 v33, v33
    v_add_f32 v33, 1.0, v33
    v_rcp_f32 v33, v33
    v_mul_f32 v32, v32, v33''')
    rnd(32, 32)
    e('v_mul_f32 v32, v32, v35\nv_cvt_pk_bf16_f32 v32, v32, v32')
    gemv([(32, 2 * t, 96 + 4 * t, None) for t in range(4)], acc=24, val=44, A=28)
    fold(24, 36)
    tag4(24, 19)
    exec_set(0x00FF00FF)
    e(f'global_store_dwordx4 v10, v[24:27], {WS} sc1')
    exec_set(ALL)
    br('s_branch', 'L_fin')

def red16(c):
    red4rows(c)
    dpp_op(c, c, 'row_ror:8'); dpp_op(c, c, 'row_ror:4')
def role_G():
    ROLE[0] = 'G'
    label('L_G')
    e(f'''v_and_b32 v10, 3, v{vLANE}
    v_lshrrev_b32 v11, 2, v{vLANE}
    s_lshl_b32 s34, s1, 4
    v_lshl_add_u32 v12, v10, 2, s34
    v_add_lshl_u32 v13, v12, v{vLG}, 1
    global_load_ushort v20, v13, s[{sX}:{sX+1}]
    v_and_b32 v16, 3, v11
    v_mul_u32_u24 v16, 7168, v16
    v_lshl_add_u32 v16, v12, 2, v16
    v_add_u32 v16, {M6}, v16
    v_add_u32 v15, 5376, v16
    v_and_b32 v17, 7, v11
    v_mul_u32_u24 v17, 1792, v17
    v_lshl_add_u32 v17, v12, 2, v17
    v_add_u32 v17, {M4}, v17
    s_mul_i32 s35, s1, 7168
    s_add_u32 s35, s35, {M5}
    v_lshlrev_b32 v18, 7, v11
    v_lshl_add_u32 v18, v10, 4, v18
    v_add_u32 v18, s35, v18
    v_add_u32 v19, 4096, v18
    v_min_u32 v21, 7, v11
    v_lshlrev_b32 v21, 7, v21
    v_lshl_add_u32 v21, v10, 4, v21
    v_add_u32 v21, s35, v21
    v_add_u32 v21, 6144, v21
    v_cmp_gt_u32 vcc, 32, v{vLANE}
    v_cndmask_b32 v22, 0, 1.0, vcc''')
    top = lab('g6'); out = lab('g6o')
    label(top)
    e(f'''global_load_dwordx4 v[32:35], v16, {WS} sc1
    global_load_dwordx4 v[36:39], v15, {WS} sc1
    s_waitcnt vmcnt(0)''')
    chk([32, 36], 40)
    br('s_cbranch_vccz', out)
    e('s_sleep 4')
    retry(top)
    label(out)
    for c in (32, 36):
        for r in range(4): dpp_op(c + r, c + r, 'row_ror:8')
        for r in range(4): dpp_op(c + r, c + r, 'row_ror:4')
    for r in range(1, 4):
        e(f'v_cmp_eq_u32 vcc, {r}, v{vLG}\nv_cndmask_b32 v32, v32, v{32+r}, vcc\nv_cndmask_b32 v36, v36, v{36+r}, vcc')
    rnd(56, 32); rnd(57, 36)
    e('v_lshlrev_b32 v20, 16, v20')
    ts(11)
    top = lab('g4'); out = lab('g4o')
    label(top)
    e(f'global_load_dwordx4 v[32:35], v17, {WS} sc1\ns_waitcnt vmcnt(0)')
    chk([32], 40)
    br('s_cbranch_vccz', out)
    e('s_sleep 2')
    retry(top)
    label(out)
    red16(32)
    e('v_mul_f32 v32, 0.5, v32')
    rnd(32, 32)
    e('v_mul_f32 v32, v56, v32'); rnd(32, 32)
    e('v_add_f32 v20, v20, v32'); rnd(20, 20)
    e(f'v_mov_b32 v58, {EPO}\nv_mov_b32 v59, s{sTAG}')
    ts(12)
    top = lab('g5'); out = lab('g5o')
    label(top)
    e(f'''global_load_dwordx4 v[32:35], v18, {WS} sc1
    global_load_dwordx4 v[36:39], v18, {WS} offset:2048 sc1
    global_load_dwordx4 v[40:43], v19, {WS} sc1
    global_load_dwordx4 v[44:47], v21, {WS} sc1
    s_waitcnt vmcnt(0)''')
    chk([32, 36, 40, 44], 48)
    br('s_cbranch_vccz', out)
    retry(top)
    label(out)
    ts(13)
    for h in (0, 2):
        e(f'v_pk_fma_f32 v[{40+h}:{41+h}], v[{44+h}:{45+h}], v[22:23], v[{40+h}:{41+h}] op_sel_hi:[1,0,1]')
    pk_tree(32, 3)
    red16(32)
    rnd(32, 32)
    e('v_mul_f32 v32, v57, v32'); rnd(32, 32)
    e('v_add_f32 v32, v20, v32\nv_cvt_pk_bf16_f32 v32, v32, v32')
    exec_set(0x000F000F000F000F)
    e(f'global_store_short v13, v32, s[{sOUT}:{sOUT+1}] {cfg.outpol}')
    e('s_cmp_lg_u32 s1, 0')
    br('s_cbranch_scc1', 'L_Gne')
    exec_set(1)
    e(f'global_store_dword v58, v59, {WS} sc1')
    label('L_Gne')
    exec_set(ALL)
    if cfg.hd: e('s_waitcnt vmcnt(0)'); ts(14)
    wave_end()

def tsdump():
    L.append('L_tsdump:')
    if cfg.hd:
        e(f'''s_and_b32 m0, s2, 7
        s_nop 0
        v_readlane_b32 s34, v{VTS}, m0
        s_nop 4
        s_not_b32 s34, s34
        s_mov_b32 s35, 3000
        L_hdw:
        s_sleep 4
        s_memrealtime s[32:33]
        s_waitcnt lgkmcnt(0)
        s_sub_u32 s35, s35, 1
        s_cmp_eq_u32 s35, 0
        s_cbranch_scc1 L_hdo
        s_sub_u32 s32, s32, s34
        s_cmp_lt_u32 s32, 2000
        s_cbranch_scc1 L_hdw
        L_hdo:
        v_lshlrev_b32 v10, 2, v{vLANE}
        s_cmp_eq_u32 s{sWAVE}, 0
        s_cselect_b32 s32, 0xff, 0
        s_or_b32 s32, s32, 0xff00
        s_mov_b32 exec_lo, s32
        s_mov_b32 exec_hi, 0
        v_cmp_ne_u32 vcc, 0, v{VTS}
        s_and_b64 exec, exec, vcc
        s_cbranch_execz L_exit
        global_atomic_umax v10, v{VTS}, s[100:101] sc1
        s_endpgm''')
        return
    e(f'''s_lshl_b32 s32, s2, 3
    s_add_u32 s32, s32, s{sWAVE}
    s_lshl_b32 s32, s32, 6
    s_add_u32 s32, s32, {TSB}
    v_lshlrev_b32 v10, 2, v{vLANE}
    v_add_u32 v10, s32, v10
    s_mov_b64 exec, 0xffff
    global_store_dword v10, v{VTS}, {WS}
    s_endpgm''')

pend = prologue()
for r in cfg.order: {'X': start_X, 'H': start_H, 'B': start_B}[r](pend)
role_X()
role_H(pend)
role_B()
role_D()
role_EF()
role_G()
if cfg.dbg: tsdump()
L.append('L_exit:')
L.append('s_endpgm')
L.append('L_end:')
L.append('s_endpgm')
body, nn = fix(L)
probs = taint_check(body)
for p in probs: sys.stderr.write(f'TAINT {p}\n')
if probs: sys.exit(1)
hdr = open('adaLN_cond__sliding_block_cached__geglu_ffn__decode.s.ref').read().split('; Override launch')[0]
out = hdr + '; generated by gen3.py (persistent fused kernel, one workgroup per CU)\n'
out += f'; @launch grid=(256,1,1) block=(512,1,1) lds={LDS_BYTES}\n'
out += f'.amdgcn_target "amdgcn-amd-amdhsa--gfx950"\n.text\n.globl {KN}\n.p2align {cfg.al}\n.p2align 8\n.type {KN},@function\n{KN}:\n'
out += '\n'.join(l if l.endswith(':') else '    ' + l for l in body) + '\n'
out += f'''.section .rodata,"a"
.p2align 6
.amdhsa_kernel {KN}
  .amdhsa_next_free_vgpr 160
  .amdhsa_next_free_sgpr 102
  .amdhsa_accum_offset 160
  .amdhsa_group_segment_fixed_size 0
  .amdhsa_kernarg_size 112
  .amdhsa_user_sgpr_count 2
  .amdhsa_user_sgpr_kernarg_segment_ptr 1
  .amdhsa_system_sgpr_workgroup_id_x 1
  .amdhsa_float_denorm_mode_32 3
.end_amdhsa_kernel
'''
sys.stdout.write(out)
sys.stderr.write(f'instructions {len(body)} nops {nn}\n')
```

```python
import sys, math, struct, re
from hz import fix, taint_check
KN = 'adaLN_cond__sliding_block_cached__geglu_ffn__decode_kernel'

class Cfg:
    dbg = 0
    nt = 'nt'
    pf = 1
    warm = 0
    gate = 0
    adup = 0
    host = 'D'
    xd = 0
    slow = 1
    xw = 9
    xn = 4
    bsl = 0
    m1c = 1
    fast = 1
    bbar = 1
    pb = 1
    pe = 1
    pg = 1
    psl = 4
    rearly = 0
    lay = 1
    kvbar = 1
    efrev = 1
    outpol = ''
    skip = ''
    order = 'HBX'
    al = 12
    hd = 0
cfg = Cfg()
for a in sys.argv[1:]:
    k, v = a.split('=')
    assert hasattr(cfg, k), k
    setattr(cfg, k, int(v) if v.lstrip('-').isdigit() else v)
if cfg.nt == 'none': cfg.nt = ''
if cfg.hd: cfg.dbg = 1
ROLE = ['P']
HD = {('P',0):'st', ('B',4):8, ('B',5):9, ('X',4):10, ('X',7):11, ('D',10):12, ('E',7):13, ('E',11):14, ('G',14):15}
if cfg.hd == 3: HD = {('P',0):'st'}
if cfg.hd == 2: HD = {('P',0):'st', ('H',1):8, ('H',3):9, ('B',1):10, ('B',2):11, ('B',3):12, ('X',2):13, ('X',3):14, ('E',6):15}

M1 = 0x200; EPO = 0x4400; M6 = 0x6200; M4 = 0x10200; ST = 0x18000; M5 = 0x20200; M3 = 0x60200; M2 = 0x100000; M1C = 0x1C0200
TSB = 0x200000
FOFF = 0x400000
FTH = 0x7fff - 32
LOG2E = 1.4426950408889634
def fl(x): return hex(struct.unpack('<I', struct.pack('<f', x))[0])

L = []
def e(s):
    for line in s.split('\n'):
        line = line.strip()
        if line:
            L.append(line)
            if cfg.dbg and line.startswith('s_waitcnt') and 'lgkmcnt(0)' in line: ts_flush()
_lab = [0]
def lab(b):
    _lab[0] += 1
    return f'L_{b}_{_lab[0]}'
def ld(s, tag):
    if tag in cfg.skip:
        a = int(re.search(r'v\[(\d+):', s).group(1))
        for r in range(4): e(f'v_mov_b32 v{a+r}, 0')
    else: e(s)

ts_pend = []
CARRY = {}
VTS = 5
def ts(k):
    if not cfg.dbg: return
    if cfg.hd:
        k = HD.get((ROLE[0], k))
        if k is None: return
    if len(ts_pend) == (1 if cfg.hd else 2): e('s_waitcnt lgkmcnt(0)')
    used = [p for p, _ in ts_pend]
    p = 98 if 98 not in used else 100
    L.append(f's_memrealtime s[{p}:{p+1}]')
    if cfg.hd and ROLE[0] == 'H':
        L.extend(['s_waitcnt lgkmcnt(0)', 's_cmp_lt_u32 s35, 14', f's_cselect_b32 s{p}, s{p}, 0', f'v_writelane_b32 v{VTS}, s{p}, {k}'])
        return
    ts_pend.append((p, k))
def ts_flush():
    global ts_pend
    pend, ts_pend = ts_pend, []
    for p, k in pend:
        if k == 'st':
            L.append(f's_not_b32 s{p}, s{p}'); L.append(f's_and_b32 m0, s2, 7'); L.append('s_nop 0'); L.append(f'v_writelane_b32 v{VTS}, s{p}, m0')
            L.append('s_mov_b64 s[100:101], s[28:29]')
        else: L.append(f'v_writelane_b32 v{VTS}, s{p}, {k}')
def ts_sync():
    if cfg.dbg and ts_pend: e('s_waitcnt lgkmcnt(0)')
def wave_end():
    if cfg.dbg:
        ts(15); ts_sync()
        e('s_branch L_tsdump')
    else:
        e('s_endpgm')
def br(op, target):
    ts_sync(); e(f'{op} {target}')
def label(name):
    ts_sync(); e(f'{name}:')

sX, sK, sV, sWQ, sWO, sGT, sUP, sDN, sC, sWM, sOUT, sDBG, sWS = 4, 6, 8, 10, 12, 16, 18, 20, 22, 24, 26, 28, 30
sWAVE = 3; sCNT = 96; sR0 = 97
sTAG = 14
sT1, sT2, sT3 = 28, 29, 15
sP01, sP23 = 22, 23
vLANE, vLG, vN, vHM, vCJ = 1, 2, 3, 4, 6
vROW, vCOL = 62, 61
WS = f's[{sWS}:{sWS+1}]'
ALL = (1 << 64) - 1

def exec_set(mask):
    lo = mask & 0xffffffff; hi = mask >> 32
    if mask == ALL: e('s_mov_b64 exec, -1')
    elif hi == 0 and lo < 0x80000000: e(f's_mov_b64 exec, {hex(lo)}')
    else:
        e(f's_mov_b32 exec_lo, {hex(lo)}'); e(f's_mov_b32 exec_hi, {hex(hi)}')
def rnd(dst, src, tmp=None):
    tmp = dst if tmp is None else tmp
    e(f'v_cvt_pk_bf16_f32 v{tmp}, v{src}, v{src}')
    e(f'v_and_b32 v{dst}, 0xffff0000, v{tmp}')
def red4rows(c):
    e(f'''v_permlane32_swap_b32 v{c}, v{c+2}
    v_permlane32_swap_b32 v{c+1}, v{c+3}
    v_add_f32 v{c}, v{c}, v{c+2}
    v_add_f32 v{c+1}, v{c+1}, v{c+3}
    v_permlane16_swap_b32 v{c}, v{c+1}
    v_add_f32 v{c}, v{c}, v{c+1}''')
def red4rows_multi(cs):
    for c in cs: e(f'v_permlane32_swap_b32 v{c}, v{c+2}\nv_permlane32_swap_b32 v{c+1}, v{c+3}')
    for c in cs: e(f'v_add_f32 v{c}, v{c}, v{c+2}\nv_add_f32 v{c+1}, v{c+1}, v{c+3}')
    for c in cs: e(f'v_permlane16_swap_b32 v{c}, v{c+1}')
    for c in cs: e(f'v_add_f32 v{c}, v{c}, v{c+1}')
def dpp_op(dst, src, pat, op='add'):
    e(f'v_{op}_f32_dpp v{dst}, v{src}, v{src} {pat} row_mask:0xf bank_mask:0xf')
def rowsum(v, op='add'):
    for p in ('quad_perm:[1,0,3,2]', 'quad_perm:[2,3,0,1]', 'row_half_mirror', 'row_mirror'): dpp_op(v, v, p, op)
def xrows(v, t, op='add'):
    e(f'v_mov_b32 v{t}, v{v}\nv_permlane16_swap_b32 v{v}, v{t}\nv_{op}_f32 v{v}, v{v}, v{t}')
    e(f'v_mov_b32 v{t}, v{v}\nv_permlane32_swap_b32 v{v}, v{t}\nv_{op}_f32 v{v}, v{v}, v{t}')
def wavesum(v, t):
    rowsum(v); xrows(v, t)
def gemv_consts(t=60):
    e(f'''v_and_b32 v{t}, 1, v{vLANE}
    v_cmp_eq_u32 vcc, 1, v{t}
    v_mov_b32 v{t+1}, 0xffff
    v_mov_b32 v{t+2}, 0xffff0000
    v_cndmask_b32 v{vHM}, v{t+1}, v{t+2}, vcc
    v_bfe_u32 v{t}, v{vLANE}, 1, 2''')
    for j in range(4):
        e(f'v_cmp_eq_u32 vcc, {j}, v{t}\nv_cndmask_b32 v{vCJ+j}, 0, 1.0, vcc')
def pkmul(A, val):
    b = val & ~1
    sel = 'op_sel_hi:[0,1]' if val % 2 == 0 else 'op_sel:[1,0] op_sel_hi:[1,1]'
    e(f'v_pk_mul_f32 v[{A}:{A+1}], v[{b}:{b+1}], v[{vCJ}:{vCJ+1}] {sel}')
    e(f'v_pk_mul_f32 v[{A+2}:{A+3}], v[{b}:{b+1}], v[{vCJ+2}:{vCJ+3}] {sel}')
def gemv(steps, acc, val, A):
    n = len(steps)
    def andA(t): e(f'v_and_b32_dpp v{val+t%2}, v{steps[t][0]}, v{vHM} row_newbcast:{steps[t][1]} row_mask:0xf bank_mask:0x3')
    def andB(t): e(f'v_and_b32_dpp v{val+t%2}, v{steps[t][0]}, v{vHM} row_newbcast:{steps[t][1]+1} row_mask:0xf bank_mask:0xc')
    andA(0)
    if n > 1: andA(1)
    andB(0)
    for t in range(n):
        pkmul(A, val + t % 2)
        if t + 1 < n: andB(t + 1)
        if t + 2 < n: andA(t + 2)
        if steps[t][3]: e(steps[t][3])
        Ws = steps[t][2] if isinstance(steps[t][2], list) else [steps[t][2]]
        for q, W in enumerate(Ws):
            a = acc + 4 * q
            e(f'v_mfma_f32_16x16x32_bf16 v[{a}:{a+3}], v[{A}:{A+3}], v[{W}:{W+3}], ' + ('0' if t == 0 else f'v[{a}:{a+3}]'))
def fold(acc, tmp):
    for r in range(4): e(f'v_permlane32_swap_b32 v{acc+r}, v{tmp+r}')
    for r in range(4): e(f'v_add_f32_dpp v{acc+r}, v{tmp+r}, v{acc+r} row_ror:8 row_mask:0xf bank_mask:0xf')
def sadd64(d, s, imm):
    e(f's_add_u32 s{d}, s{s}, {imm}\ns_addc_u32 s{d+1}, s{s+1}, 0')
def retry(top):
    ts_sync()
    e(f's_sub_i32 s{sCNT}, s{sCNT}, 1\ns_cmp_gt_i32 s{sCNT}, 0\ns_cbranch_scc1 {top}')
def ppoll(name, D, sets, issue, nld, check, take, first=False):
    top = lab(name); out = lab(name + 'o'); oks = [lab(name + 'k') for _ in range(D)]
    if D == 1:
        label(top); issue(sets[0]); e('s_waitcnt vmcnt(0)'); check(sets[0])
        br('s_cbranch_vccz', oks[0]); retry(top); label(oks[0]); take(sets[0])
        return
    if first:
        issue(sets[0]); e('s_waitcnt vmcnt(0)'); check(sets[0]); br('s_cbranch_vccz', oks[0])
    for k in range(D):
        issue(sets[k]); e(f's_sleep {cfg.psl}')
    label(top)
    for k in range(D):
        e(f's_waitcnt vmcnt({(D-1)*nld})'); check(sets[k]); br('s_cbranch_vccz', oks[k])
        issue(sets[k]); e(f's_sleep {cfg.psl}')
    retry(top)
    for k in range(D - 1, -1, -1):
        label(oks[k]); take(sets[k])
        if k: br('s_branch', out)
    label(out)
def fsel(d, f, sl):
    e(f's_cmpk_lt_u32 s{sCNT}, {FTH}\ns_cselect_b32 s{d}, s{sl}, s{f}\ns_cselect_b32 s{d+1}, s{sl+1}, s{f+1}')
def load_epoch():
    e(f's_load_dword s{sTAG}, {WS}, {EPO}')
def make_tag():
    e(f's_add_u32 s{sTAG}, s{sTAG}, 0x01010101')
def tag_consts(vff):
    e(f'''s_lshr_b32 s{sT1}, s{sTAG}, 8
    s_lshr_b32 s{sT2}, s{sTAG}, 16
    s_lshr_b32 s{sT3}, s{sTAG}, 24
    s_mov_b32 s{sP01}, 0x0c0c0400
    s_mov_b32 s{sP23}, 0x04000c0c
    v_mov_b32 v{vff}, 0xff''')
def tag4(d, vff):
    for r, s in enumerate((sTAG, sT1, sT2, sT3)): e(f'v_bfi_b32 v{d+r}, v{vff}, s{s}, v{d+r}')
def tag4r(d, vff, st):
    for r, s in enumerate((sTAG, sT1, sT2, sT3)): e(f'v_add_u32 v{d+r}, s{st+r}, v{d+r}')
    tag4(d, vff)
def tag4r_consts(st):
    for r, s in enumerate((sTAG, sT1, sT2, sT3)): e(f's_and_b32 s{st+r}, s{s}, 0xff\ns_sub_u32 s{st+r}, 0x80, s{st+r}')
def chk(gs, t):
    for i, g in enumerate(gs):
        e(f'v_perm_b32 v{t+2*i}, v{g+1}, v{g}, s{sP01}\nv_perm_b32 v{t+2*i+1}, v{g+3}, v{g+2}, s{sP23}')
    for i, g in enumerate(gs):
        e(f'v_bitop3_b32 v{t+2*i}, v{t+2*i}, v{t+2*i+1}, s{sTAG} bitop3:0x56')
    rest = [t + 2 * i for i in range(1, len(gs))]
    while rest:
        if len(rest) >= 2: e(f'v_or3_b32 v{t}, v{t}, v{rest[0]}, v{rest[1]}'); rest = rest[2:]
        else: e(f'v_or_b32 v{t}, v{t}, v{rest[0]}'); rest = []
    e(f'v_cmp_ne_u32 vcc, 0, v{t}')
def silu2(a, b):
    for r in (a, b): e(f'v_lshlrev_b32 v{r}, 16, v{r}')
    for r in (a, b): e(f'v_mul_f32 v{r+6}, {fl(-LOG2E)}, v{r}')
    for r in (a, b): e(f'v_exp_f32 v{r+6}, v{r+6}')
    for r in (a, b): e(f'v_add_f32 v{r+6}, 1.0, v{r+6}')
    for r in (a, b): e(f'v_rcp_f32 v{r+6}, v{r+6}')
    for r in (a, b): e(f'v_mul_f32 v{r}, v{r}, v{r+6}')
    for r in (a, b): e(f'v_cvt_pk_bf16_f32 v{r}, v{r}, v{r}')
def c_addr(a, b, skq, st):
    e(f'''s_mul_i32 s{st}, s{skq}, 112
    v_lshl_add_u32 v{a}, v{vN}, 2, v{vLG}
    v_add_lshl_u32 v{a}, s{st}, v{a}, 1
    v_add_u32 v{b}, 128, v{a}
    v_min_u32 v{b}, 894, v{b}''')
def w_addr(v, t, stride):
    e(f'v_lshrrev_b32 v{v}, 3, v{vN}\nv_lshl_add_u32 v{v}, v{v}, 2, v{vLG}')
    if stride & (stride - 1) == 0: e(f'v_lshlrev_b32 v{v}, {stride.bit_length()-1}, v{v}')
    else: e(f'v_mul_u32_u24 v{v}, {stride}, v{v}')
    e(f'v_and_b32 v{t}, 7, v{vN}\nv_lshl_add_u32 v{v}, v{t}, 4, v{v}')
RED = 0; STT = 5120; STL = 5376
VALID = 0xFF00FF0000FF00FF
def red_write(acc, vaddr):
    exec_set(VALID)
    e(f'ds_write_b128 v{vaddr}, v[{acc}:{acc+3}]')
    exec_set(ALL)
def red_waddr(dst, tmp, pstr):
    e(f'''v_lshrrev_b32 v{tmp}, 1, v{vLG}
    s_lshl_b32 s32, s{sWAVE}, 1
    v_add_u32 v{tmp}, s32, v{tmp}
    v_mul_u32_u24 v{dst}, {pstr}, v{tmp}
    v_and_b32 v{tmp}, 7, v{vN}
    v_lshl_add_u32 v{dst}, v{tmp}, 5, v{dst}
    v_and_b32 v{tmp}, 1, v{vLG}
    v_lshl_add_u32 v{dst}, v{tmp}, 4, v{dst}''')
def quad_raddr(dst, tmp):
    e(f'''v_and_b32 v{tmp}, 3, v{vLANE}
    v_mul_u32_u24 v{dst}, 320, v{tmp}
    v_lshrrev_b32 v{tmp}, 2, v{vLANE}
    v_lshl_add_u32 v{dst}, v{tmp}, 4, v{dst}''')
def pk_tree(d, n):
    s = 1
    while s < n:
        for i in range(0, n - s, 2 * s):
            for h in (0, 2):
                a = d + 4 * i + h; b = d + 4 * (i + s) + h
                e(f'v_pk_add_f32 v[{a}:{a+1}], v[{a}:{a+1}], v[{b}:{b+1}]')
        s *= 2
def quad_reduce(raddr, d):
    for i in range(4): e(f'ds_read_b128 v[{d+4*i}:{d+4*i+3}], v{raddr} offset:{i*1280}')
    e('s_waitcnt lgkmcnt(0)')
    pk_tree(d, 4)
    for p in ('quad_perm:[1,0,3,2]', 'quad_perm:[2,3,0,1]'):
        for r in range(4): dpp_op(d + r, d + r, p)

def prologue():
    e(f"""s_cmp_ge_u32 s2, 256
    s_cbranch_scc1 L_exit
    s_load_dwordx16 s[4:19], s[0:1], 0
    s_load_dwordx8 s[20:27], s[0:1], 64
    s_load_dwordx4 s[28:31], s[0:1], 96""")
    if cfg.dbg:
        e(f'v_mov_b32 v{VTS}, 0'); ts(0)
        if cfg.hd: ts_sync()
    e('s_lshr_b32 s34, s2, 3')
    if cfg.pf:
        e(f"""s_cmp_lg_u32 s34, 31""")
        L.append('s_cbranch_scc1 L_nopf')
        e(f"""s_getpc_b64 s[40:41]
        L_pc:
        v_lshlrev_b32 v15, 7, v0
        v_min_u32 v15, L_end-L_pc-4, v15
        global_load_dword v63, v15, s[40:41]
        L_nopf:""")
    e(f"""v_lshrrev_b32 v10, 6, v0
    v_and_b32 v{vLANE}, 63, v0
    v_readfirstlane_b32 s{sWAVE}, v10
    v_bfe_u32 v{vLG}, v0, 4, 2
    v_and_b32 v{vN}, 15, v0
    s_movk_i32 s{sCNT}, 0x7fff
    s_and_b32 s0, s2, 7
    s_and_b32 s1, s34, 7
    v_lshrrev_b32 v{vROW}, 3, v{vN}
    v_and_b32 v{vCOL}, 7, v0
    v_lshl_add_u32 v{vROW}, v{vROW}, 2, v{vLG}
    v_lshlrev_b32 v{vCOL}, 4, v{vCOL}""")
    tests = {'X': ('s_cmp_lt_u32 s34, 16', 'L_X'), 'H': ('s_cmp_ge_u32 s34, 24', 'L_H'), 'B': ('s_bitcmp1_b32 0xff0000, s34', 'L_B')}
    for r in cfg.order[:0:-1]:
        e(tests[r][0]); L.append(f's_cbranch_scc1 {tests[r][1]}')
    return list(ts_pend)

HS = 2096; KB = 0; OB = KB; SB = 65536; LDS_BYTES = 65536 + 4608
def v_loads():
    if cfg.kvbar: e('s_barrier')
    for i in range(8):
        if i == 4: sadd64(42, 42, 32768)
        ld(f'global_load_dwordx4 v[{64+4*i}:{67+4*i}], v14, s[42:43] offset:{(i&1)*256+((i>>1)&1)*2048} {cfg.nt}', 'v')
    ts(2)
def start_X(pend):
    global ts_pend
    ROLE[0] = 'X'
    L.append('L_X:'); ts_pend = list(pend)
    e(f"""s_lshl_b32 s36, s0, 6
    s_add_u32 s36, s36, s34
    s_add_u32 s36, s36, 48
    s_lshl4_add_u32 s36, s36, s{sWAVE}
    s_lshl_b32 s36, s36, 12
    s_lshl_b32 m0, s{sWAVE}, 12
    s_and_b32 s37, s{sWAVE}, 1
    s_lshl_b32 s37, s37, 3
    v_lshrrev_b32 v14, 5, v{vLANE}
    v_and_b32 v15, 31, v{vLANE}
    v_bitop3_b32 v15, v15, v14, s37 bitop3:0x96
    v_lshlrev_b32 v15, 4, v15
    v_lshl_add_u32 v10, v14, 9, v15
    v_xor_b32 v11, 32, v10
    v_xor_b32 v12, 64, v10
    v_xor_b32 v13, 96, v10
    v_lshlrev_b32 v14, 9, v{vLG}
    v_lshl_add_u32 v14, v{vN}, 4, v14
    s_waitcnt lgkmcnt(0)""")
    ts(1)
    e(f"""s_add_u32 s40, s{sK}, s36
    s_addc_u32 s41, s{sK+1}, 0
    s_add_u32 s42, s{sV}, s36
    s_addc_u32 s43, s{sV+1}, 0""")
    for t in range(8):
        if t == 4: e('s_add_u32 m0, m0, 32768'); sadd64(40, 40, 32768)
        if cfg.xw <= t <= cfg.xn: e(f's_waitcnt vmcnt({cfg.xw-1})')
        if 'k' not in cfg.skip: e(f'global_load_lds_dwordx4 v{10+t%4}, s[40:41] offset:{1024*(t%4)} {cfg.nt}')
    load_epoch()
    if not cfg.fast: v_loads()
    CARRY['X'] = list(ts_pend); L.append('s_branch L_X2')
def role_X():
    global ts_pend
    ROLE[0] = 'X'
    L.append('L_X2:'); ts_pend = CARRY['X']
    e(f"""s_lshl4_add_u32 s{sR0}, s0, s34
    s_lshl_b32 s36, s0, 16
    s_lshl_b32 s37, s{sWAVE}, 15
    s_add_u32 s36, s36, s37
    s_lshl_b32 s37, s34, 11
    s_add_u32 s36, s36, s37
    s_add_u32 s36, s36, {M3}
    v_lshl_add_u32 v39, v{vLANE}, 4, s36
    v_and_b32 v40, 32, v{vLANE}
    v_lshl_add_u32 v39, v40, 4, v39
    s_lshl_b32 s36, s{sR0}, 8
    s_add_u32 s36, s36, {ST}
    v_lshl_add_u32 v15, v{vLANE}, 4, s36
    s_add_u32 s10, s{sWS}, {FOFF}
    s_addc_u32 s11, s{sWS+1}, 0""")
    if cfg.fast:
        e(f's_sub_u32 s36, s{sWAVE}, 2\ns_cmp_lt_u32 s36, 5')
        L.append('s_cbranch_scc1 L_Xnd')
        e(f"""s_cmp_eq_u32 s{sWAVE}, 7
        s_cselect_b64 vcc, -1, 0
        v_cndmask_b32 v12, v39, v15, vcc
        s_cselect_b64 exec, 0xff, -1""")
        L.append('s_waitcnt lgkmcnt(0)')
        for r in range(4): e(f'v_mov_b32 v{40+r}, s{sTAG}')
        e('global_store_dwordx4 v12, v[40:43], s[10:11]')
        exec_set(ALL)
        L.append('L_Xnd:')
        v_loads()
    gemv_consts()
    e(f"""
    s_and_b32 s36, s{sWAVE}, 3
    s_lshl_b32 s37, s36, 3
    v_xor_b32 v16, s37, v{vN}
    v_lshlrev_b32 v16, 4, v16
    v_lshl_add_u32 v16, v{vLANE}, 9, v16""")
    for i in range(1, 8): e(f'v_xor_b32 v{16+i}, {16*i}, v16')
    e(f"""s_lshr_b32 s37, s{sWAVE}, 2
    s_mul_i32 s37, s37, {HS}
    s_lshl_b32 s36, s36, 2
    s_add_u32 s36, s36, s37
    s_add_u32 s36, s36, {SB}
    v_lshl_add_u32 v36, v{vLANE}, 4, s36
    v_and_b32 v40, 1, v{vN}
    v_mul_u32_u24 v40, {HS}, v40
    v_add_u32 v40, {SB}, v40
    v_lshl_add_u32 v40, v{vLG}, 4, v40
    v_bfe_u32 v41, v{vN}, 1, 1
    v_lshl_add_u32 v40, v41, 6, v40
    v_bfe_u32 v41, v{vN}, 2, 1
    v_mul_u32_u24 v41, 1056, v41
    v_add_u32 v40, v40, v41
    v_lshrrev_b32 v41, 3, v{vN}
    v_add_u32 v41, s{sWAVE}, v41""")
    for r in range(4):
        e(f'v_add_u32 v42, {2*r}, v41\nv_and_b32 v42, 7, v42\nv_lshl_add_u32 v{32+r}, v42, 7, v40')
    e(f"""v_lshrrev_b32 v40, 1, v{vLG}
    v_lshlrev_b32 v37, 10, v40
    v_lshl_add_u32 v37, v{vN}, 5, v37
    v_and_b32 v40, 1, v{vLG}
    v_lshl_add_u32 v37, v40, 4, v37
    s_lshl_b32 s36, s{sWAVE}, 11
    v_add_u32 v37, s36, v37
    s_lshl_b32 s36, s{sWAVE}, 10
    v_lshl_add_u32 v38, v{vLANE}, 4, s36
    s_lshl3_add_u32 s36, s0, s{sWAVE}
    s_lshl_b32 s36, s36, 9
    s_add_u32 s36, s36, {M2}
    s_add_u32 s6, s{sWS}, s36
    s_addc_u32 s7, s{sWS+1}, 0
    s_add_u32 s8, s6, {FOFF if cfg.fast else 0}
    s_addc_u32 s9, s7, 0
    s_mov_b64 s[16:17], s[8:9]
    s_mov_b32 s1, s34
    v_mov_b32 v24, 0
    v_mov_b32 v25, 0
    s_waitcnt lgkmcnt(0)""")
    make_tag(); tag_consts(14)
    e(f's_lshl_b32 s18, s{sTAG}, 4\ns_waitcnt vmcnt(8)\ns_barrier')
    ts(3)
    for h in range(2):
        for i in range(8):
            r = 96 + 32 * h + 4 * i
            e(f'ds_read_b128 v[{r}:{r+3}], v{16+i} offset:{32768*h}')
    L.append('C_X0:')
    top = lab('qg'); out = lab('qo')
    label(top)
    for i in range(4): e(f's_load_dwordx16 s[{32+16*i}:{47+16*i}], s[16:17], {64*i} glc')
    e('s_waitcnt lgkmcnt(0)\ns_add_u32 s20, s34, s38')
    for g in range(2, 16): e(f's_add_u32 s20, s20, s{34+4*g}')
    e('s_cmp_eq_u32 s20, s18')
    br('s_cbranch_scc1', out)
    if cfg.fast: fsel(16, 8, 6)
    retry(top)
    label(out)
    ts(4)
    for m in range(32):
        for h in range(2): e(f'v_dot2c_f32_bf16 v{24+h}, s{32+4*(m>>1)+(m&1)}, v{96+32*h+m}')
    e('ds_write_b32 v36, v24\nds_write_b32 v36, v25 offset:1056\ns_waitcnt lgkmcnt(0)\ns_barrier')
    ts(5); ts_sync()
    for r in range(4): e(f'ds_read_b128 v[{40+4*r}:{43+4*r}], v{32+r}')
    for r in range(4):
        L.append(f's_waitcnt lgkmcnt({3-r})')
        e(f'v_pk_add_f32 v[{40+4*r}:{41+4*r}], v[{40+4*r}:{41+4*r}], v[{42+4*r}:{43+4*r}]')
    for r in range(4): e(f'v_add_f32 v{40+4*r}, v{40+4*r}, v{41+4*r}')
    e('v_max3_f32 v56, v40, v44, v48\nv_max_f32 v56, v56, v52')
    for p in (2, 4, 8): dpp_op(56, 56, f'row_ror:{p}', 'max')
    xrows(56, 57, 'max')
    SC = fl(0.0625 * LOG2E)
    e(f"""v_cvt_pk_bf16_f32 v57, v40, v56
    v_lshlrev_b32 v40, 16, v57
    v_and_b32 v56, 0xffff0000, v57
    v_sub_f32 v40, v40, v56
    v_mul_f32 v40, {SC}, v40
    v_exp_f32 v40, v40
    s_cmp_eq_u32 s{sWAVE}, 7""")
    br('s_cbranch_scc1', 'L_Xst')
    ts(9)
    e('s_waitcnt vmcnt(0)')
    ts(10)
    label('L_Xpv')
    e('v_cvt_pk_bf16_f32 v40, v40, v40')
    gemv([(40, 2 * t, [64 + 8 * t, 68 + 8 * t], None) for t in range(4)], acc=24, val=44, A=48)
    e('ds_write_b128 v37, v[24:27]\nds_write_b128 v37, v[28:31] offset:512\ns_waitcnt lgkmcnt(0)')
    ts(6)
    e('s_barrier')
    e(f's_cmp_ge_u32 s{sWAVE}, 2')
    br('s_cbranch_scc1', 'L_Xg')
    for i in range(8): e(f'ds_read_b128 v[{64+4*i}:{67+4*i}], v38 offset:{2048*i}')
    for i in range(0, 8, 2):
        L.append(f's_waitcnt lgkmcnt({6-i})')
        for h in (0, 2):
            a = 64 + 4 * i + h
            e(f'v_pk_add_f32 v[{a}:{a+1}], v[{a}:{a+1}], v[{a+4}:{a+5}]')
    for a, b in ((64, 72), (80, 88), (64, 80)):
        for h in (0, 2): e(f'v_pk_add_f32 v[{a+h}:{a+h+1}], v[{a+h}:{a+h+1}], v[{b+h}:{b+h+1}]')
    tag4(64, 14)
    if cfg.fast: e(f'global_store_dwordx4 v39, v[64:67], s[10:11]')
    e(f'global_store_dwordx4 v39, v[64:67], {WS} sc1')
    ts(7)
    label('L_fin')
    wave_end()
    label('L_Xg')
    e(f"""s_lshl_b32 s1, s1, 3
    s_add_u32 s1, s1, s0
    s_cmp_eq_u32 s{sWAVE}, 3
    s_cselect_b32 s1, s1, 99
    s_cmp_lt_u32 s1, 28""")
    br('s_cbranch_scc1', 'L_G')
    br('s_branch', 'L_fin')
    label('L_Xst')
    e(f"""v_cvt_pk_bf16_f32 v44, v44, v48
    v_cvt_pk_bf16_f32 v52, v52, v52
    v_and_b32 v48, 0xffff0000, v44
    v_lshlrev_b32 v44, 16, v44
    v_and_b32 v52, 0xffff0000, v52""")
    for r in (44, 48, 52): e(f'v_sub_f32 v{r}, v{r}, v56')
    for r in (44, 48, 52): e(f'v_mul_f32 v{r}, {SC}, v{r}')
    for r in (44, 48, 52): e(f'v_exp_f32 v{r}, v{r}')
    e(f'v_add_f32 v57, v40, v44\nv_add_f32 v48, v48, v52\nv_mov_b32 v58, s{sTAG}\nv_add_f32 v57, v57, v48')
    for p in (2, 4, 8): dpp_op(57, 57, f'row_ror:{p}')
    xrows(57, 59)
    exec_set(3)
    if cfg.fast: e(f'global_store_dwordx4 v15, v[56:59], s[10:11]')
    e(f'global_store_dwordx4 v15, v[56:59], {WS} sc1')
    ts(8)
    exec_set(ALL)
    e(f's_waitcnt vmcnt({2 if cfg.fast else 1})')
    br('s_branch', 'L_Xpv'); L.append('C_X1:')

def warm_addr():
    e(f"""v_lshrrev_b32 v40, 3, v{vLANE}
    v_mul_u32_u24 v40, 7168, v40
    v_lshl_add_u32 v40, v{vLANE}, 7, v40
    s_mul_i32 s42, s1, 24
    s_addk_i32 s42, 256
    s_lshl3_add_u32 s42, s42, s0
    s_lshl_b32 s42, s42, 10
    s_mov_b32 s46, 0x10000
    v_add_u32 v40, s42, v40
    v_add_u32 v42, s46, v40
    v_add_u32 v43, s46, v42""")
def start_H(pend):
    global ts_pend
    ROLE[0] = 'H'
    L.append('L_H:'); ts_pend = list(pend)
    if cfg.adup:
        e(f"""s_and_b32 s34, s0, 3
        s_lshl1_add_u32 s35, s1, s{sWAVE}
        s_cmp_lt_u32 s1, 7
        s_cselect_b32 s36, s{sWAVE}, 2
        s_cmp_ge_u32 s36, 2""")
    else:
        e(f"""s_lshr_b32 s34, s0, 1
        s_and_b32 s35, s0, 1
        s_mul_i32 s35, s35, 7
        s_add_u32 s35, s35, s1
        s_cmp_lt_u32 s1, 7
        s_cselect_b32 s36, s{sWAVE}, 1
        s_cmp_lg_u32 s36, 0""")
    L.append('s_cbranch_scc1 L_Hoth' if cfg.slow or cfg.rearly else 's_cbranch_scc1 L_Hidle')
    L.append('L_mod:')
    e(f"""s_mul_i32 s37, s34, 56
    s_movk_i32 s39, 5376
    v_lshl_add_u32 v26, v{vN}, 2, v{vLG}
    s_lshl_b32 s37, s37, 1
    v_mad_u32_u24 v28, v{vROW}, s39, v{vCOL}
    v_add_lshl_u32 v26, s37, v26, 1
    s_mul_i32 s38, s37, s39
    s_lshl_b32 s39, s35, 7
    s_add_u32 s38, s38, s39
    s_mov_b32 s39, {8*5376}""")
    if 'r' in cfg.skip: e('s_cmp_lt_u32 s35, 14\ns_cselect_b32 s39, s39, 0\ns_cselect_b32 s36, -1, 0\nv_and_b32 v28, s36, v28')
    e('s_waitcnt lgkmcnt(0)')
    ts(1)
    e(f"""global_load_ushort v16, v26, s[{sC}:{sC+1}]
    global_load_ushort v17, v26, s[{sC}:{sC+1}] offset:96
    s_add_u32 s44, s{sWM}, s38
    s_addc_u32 s45, s{sWM+1}, 0""")
    for t in range(14):
        e(f'global_load_dwordx4 v[{64+4*t}:{67+4*t}], v28, s[44:45] {cfg.nt}')
        if t < 13: e('v_add_u32 v28, s39, v28')
    if cfg.warm:
        e(f's_cmp_lg_u32 s{sWAVE}, {1 if cfg.adup else 0}')
        L.append('s_cbranch_scc1 L_mod2')
        L.append('L_warm:')
        warm_addr()
        for r in (40, 42, 43): e(f'global_load_dword v63, v{r}, s[{sWQ}:{sWQ+1}] {cfg.nt}')
        e('s_cmp_eq_u32 s1, 7')
        L.append('s_cbranch_scc1 L_fin')
    CARRY['H'] = list(ts_pend); L.append('s_branch L_mod2w' if cfg.warm else 's_branch L_mod2')
    if cfg.slow or cfg.rearly:
        L.append('L_Hoth:'); ts_pend = list(pend)
        if cfg.rearly == 2:
            e(f's_and_b32 s36, s{sWAVE}, 6\ns_cmp_lt_u32 s1, 7\ns_cselect_b32 s36, s36, 0\ns_cmp_lg_u32 s36, 2')
            L.append('s_cbranch_scc1 L_Hot2')
            e(f's_sub_u32 s36, s{sWAVE}, 1\ns_mul_i32 s36, s36, 14\ns_add_u32 s35, s35, s36')
            L.append('s_branch L_mod')
            L.append('L_Hot2:')
        if cfg.slow:
            e(f"""s_sub_u32 s36, s{sWAVE}, 2
            s_cmp_lt_u32 s1, 7
            s_cselect_b32 s36, 7, s36
            s_cmp_ge_u32 s36, 4""")
            L.append('s_cbranch_scc1 L_Hidle')
            e(f'v_add_u32 v40, 64, v0\nv_lshlrev_b32 v40, 13, v40')
            L.append('s_waitcnt lgkmcnt(0)')
            e(f"""s_lshr_b32 s36, s{sWQ}, 7
            s_sub_u32 s36, 3, s36
            s_and_b32 s36, s36, 7
            s_lshl3_add_u32 s36, s0, s36
            s_lshl_b32 s36, s36, 7
            v_add_u32 v40, s36, v40
            global_load_dword v63, v40, s[{sWQ}:{sWQ+1}] {cfg.nt}""")
        L.append('s_branch L_Hidle')
def role_H(pend):
    global ts_pend
    ROLE[0] = 'H'
    def body(extra):
        load_epoch()
        ts(2)
        gemv_consts()
        e(f"""v_lshlrev_b32 v18, 5, v{vN}
        v_lshl_add_u32 v18, v{vLG}, 4, v18
        s_lshl_b32 s46, s34, 12
        s_add_u32 s46, s46, {M1}
        s_lshl_b32 s47, s34, 13
        s_add_u32 s47, s47, {M6 - 4096}
        s_cmp_lt_u32 s35, 14
        s_cselect_b32 s46, s46, s47
        s_lshl_b32 s47, s35, 8
        v_add_u32 v18, s47, v18
        v_mul_u32_u24 v20, 1171, v18
        v_lshrrev_b32 v20, 20, v20
        v_lshl_add_u32 v18, v20, 7, v18
        v_add_u32 v18, s46, v18
        s_waitcnt vmcnt({14+extra})""")
        silu2(16, 17)
        e('s_waitcnt lgkmcnt(0)')
        ts(5)
        make_tag(); tag_consts(19); tag4r_consts(48)
        gemv([(16 + t // 8, 2 * t if t < 8 else 2 * t - 12, 64 + 4 * t, f's_waitcnt vmcnt({13-t+extra})') for t in range(14)], acc=24, val=22, A=28)
    if cfg.warm:
        L.append('L_mod2:'); ts_pend = CARRY['H']
        for r in range(3): L.append(f'global_load_ushort v63, v26, s[{sC}:{sC+1}]')
        L.append('L_mod2w:')
        body(3)
    else:
        L.append('L_mod2:'); ts_pend = CARRY['H']
        body(0)
    fold(24, 32)
    tag4r(24, 19, 48)
    exec_set(0x00FF00FF)
    e(f'global_store_dwordx4 v18, v[24:27], {WS} sc1')
    if cfg.m1c > 1:
        e('s_cmp_ge_u32 s35, 14')
        L.append('s_cbranch_scc1 L_m1c')
        e(f's_add_u32 s44, s{sWS}, {M1C-M1}\ns_addc_u32 s45, s{sWS+1}, 0')
        for k in range(1, cfg.m1c):
            e(f'global_store_dwordx4 v18, v[24:27], s[44:45] sc1')
            if k < cfg.m1c - 1: sadd64(44, 44, 0x4000)
        L.append('L_m1c:')
    exec_set(ALL)
    ts(3)
    if not cfg.rearly:
        e('s_cmp_ge_u32 s35, 14')
        br('s_cbranch_scc1', 'L_Hb2')
        label('L_Hb1')
        e('s_barrier')
    label('L_Hb2')
    ts(4)
    e('s_barrier')
    if cfg.host == 'E': e(f's_mul_i32 s{sR0}, s0, 7\ns_add_u32 s{sR0}, s{sR0}, s1')
    br('s_branch', 'L_EF' if cfg.host == 'E' else 'L_D')
def role_Hidle(pend):
    global ts_pend
    ROLE[0] = 'H'
    ts_pend = list(pend)
    L.append('L_Hidle:')
    e('s_waitcnt lgkmcnt(0)')
    if cfg.warm:
        e(f's_lshl3_add_u32 s36, s1, s{sWAVE}\ns_cmp_eq_u32 s36, 58')
        br('s_cbranch_scc1', 'L_warm')
    e('s_cmp_eq_u32 s1, 7')
    br('s_cbranch_scc1', 'L_fin')
    e(f"""s_and_b32 s36, s{sWAVE}, 6
    s_cmp_lg_u32 s36, 2""")
    br('s_cbranch_scc1', 'L_Hi2')
    if cfg.adup:
        e(f"""s_lshr_b32 s36, s0, 2
        s_mul_i32 s36, s36, 14
        s_add_u32 s35, s35, s36
        s_add_u32 s35, s35, 12""")
    else:
        e(f"""s_sub_u32 s36, s{sWAVE}, 1
        s_mul_i32 s36, s36, 14
        s_add_u32 s35, s35, s36""")
    if not cfg.rearly: e('s_barrier')
    br('s_branch', 'L_mod')
    label('L_Hi2')
    load_epoch()
    gemv_consts()
    e('s_waitcnt lgkmcnt(0)')
    make_tag(); tag_consts(19)
    if cfg.gate:
        e(f's_cmp_lg_u32 s{sWAVE}, 4')
        br('s_cbranch_scc1', 'L_Hb2' if cfg.rearly else 'L_Hb1')
        if not cfg.rearly: e('s_barrier')
        e(f"""s_lshl3_add_u32 s36, s0, s1
        s_lshl_b32 s36, s36, 9
        s_add_u32 s36, s36, {M2+8}
        s_add_u32 s40, s{sWS}, s36
        s_addc_u32 s41, s{sWS+1}, 0""")
        top = lab('gt')
        label(top)
        e(f's_load_dword s36, s[40:41], 0 glc\ns_waitcnt lgkmcnt(0)\ns_cmp_eq_u32 s36, s{sTAG}')
        br('s_cbranch_scc1', 'L_Hb2')
        retry(top)
        br('s_branch', 'L_Hb2')
    else:
        br('s_branch', 'L_Hb2' if cfg.rearly else 'L_Hb1')

def start_B(pend):
    global ts_pend
    ROLE[0] = 'B'
    L.append('L_B:'); ts_pend = list(pend)
    e(f"""s_lshl3_add_u32 s{sR0}, s0, s1
    v_lshlrev_b32 v10, 4, v{vLANE}
    v_min_u32 v10, 880, v10
    v_min_u32 v11, 13, v{vN}
    s_mul_i32 s34, s{sWAVE}, 56
    v_lshl_add_u32 v11, v11, 2, s34
    v_add_lshl_u32 v12, v11, v{vLG}, 1""")
    e(f"""v_lshl_add_u32 v13, v{vROW}, 13, v{vCOL}
    s_lshl_b32 s35, s34, 13
    s_lshl_b32 s36, s{sR0}, 7
    s_add_u32 s35, s35, s36
    s_mov_b32 s36, 0x10000
    s_waitcnt lgkmcnt(0)""")
    ts(1)
    e(f"""global_load_dwordx4 v[16:19], v10, s[{sX}:{sX+1}]
    global_load_ushort v20, v12, s[{sX}:{sX+1}]
    s_add_u32 s40, s{sWQ}, s35
    s_addc_u32 s41, s{sWQ+1}, 0""")
    if cfg.bbar: e('s_barrier')
    for t in range(7):
        e(f'global_load_dwordx4 v[{64+4*t}:{67+4*t}], v13, s[40:41] {cfg.nt}')
        if t < 6: e('v_add_u32 v13, s36, v13')
    CARRY['B'] = list(ts_pend); L.append('s_branch L_B2')
def role_B():
    global ts_pend
    ROLE[0] = 'B'
    L.append('L_B2:'); ts_pend = CARRY['B']
    load_epoch()
    ts(13)
    gemv_consts()
    e(f"""s_lshr_b32 s36, s{sWAVE}, 2
    s_lshl_b32 s36, s36, 7
    s_add_u32 s36, s36, {M1}
    v_lshl_add_u32 v15, v{vLG}, 12, s36
    v_lshl_add_u32 v15, v11, 2, v15""")
    if cfg.m1c > 1:
        e(f"""s_and_b32 s36, s0, {cfg.m1c-1}
        s_mul_i32 s37, s36, {0x4000}
        s_add_u32 s37, s37, {M1C - M1 - 0x4000}
        s_cmp_eq_u32 s36, 0
        s_cselect_b32 s37, 0, s37
        v_add_u32 v15, s37, v15""")
    red_waddr(21, 22, 320)
    quad_raddr(23, 22)
    e(f"""s_lshl_b32 s36, s{sR0}, 9
    s_add_u32 s36, s36, {M2}
    v_lshrrev_b32 v51, 2, v{vLANE}
    v_lshl_add_u32 v50, v51, 4, s36
    s_add_u32 s10, s{sWS}, {FOFF}
    s_addc_u32 s11, s{sWS+1}, 0
    v_cmp_gt_u32 vcc, 56, v{vLANE}
    v_cndmask_b32 v31, 0, 1.0, vcc
    s_waitcnt vmcnt(7)""")
    ts(14)
    for i in range(4):
        e(f'v_lshlrev_b32 v{32+2*i}, 16, v{16+i}\nv_and_b32 v{33+2*i}, 0xffff0000, v{16+i}')
    e("""v_pk_add_f32 v[40:41], v[32:33], v[34:35]
    v_pk_add_f32 v[42:43], v[36:37], v[38:39]
    v_pk_add_f32 v[40:41], v[40:41], v[42:43]
    v_add_f32 v40, v40, v41
    v_mul_f32 v40, v40, v31""")
    wavesum(40, 41)
    e(f'v_mul_f32 v40, {fl(1/448)}, v40')
    for i in range(8): e(f'v_sub_f32 v{32+i}, v{32+i}, v40')
    e('v_mul_f32 v42, v32, v32')
    for i in range(1, 8): e(f'v_fmac_f32 v42, v{32+i}, v{32+i}')
    e('v_mul_f32 v42, v42, v31')
    wavesum(42, 41)
    e(f'v_mul_f32 v42, {fl(1/448)}, v42')
    rnd(40, 40); rnd(42, 42)
    e(f'v_add_f32 v42, {fl(1e-5)}, v42'); rnd(42, 42)
    e('v_sqrt_f32 v42, v42'); rnd(42, 42)
    e('v_rcp_f32 v42, v42\nv_lshlrev_b32 v20, 16, v20\nv_sub_f32 v20, v20, v40'); rnd(20, 20)
    e('v_mul_f32 v20, v20, v42'); rnd(20, 20)
    ts(2)
    e('s_waitcnt lgkmcnt(0)')
    if cfg.fast:
        e(f's_cmp_lg_u32 s{sWAVE}, 0')
        br('s_cbranch_scc1', 'L_Bnd')
        for r in range(4): e(f'v_mov_b32 v{56+r}, s{sTAG}')
        e('global_store_dwordx4 v50, v[56:59], s[10:11]')
        label('L_Bnd')
    make_tag(); tag_consts(19)
    e(f'v_mov_b32 v58, s{sTAG}\nv_mov_b32 v59, s{sTAG}')
    if cfg.dbg: e('s_waitcnt vmcnt(0)'); ts(3)
    L.append('C_B0:')
    def b_issue(r): e(f'global_load_dwordx4 v[{r}:{r+3}], v15, {WS} sc1\nglobal_load_dwordx4 v[{r+4}:{r+7}], v15, {WS} offset:2048 sc1')
    def b_take(r):
        if r != 32:
            for i in range(0, 8, 2): e(f'v_mov_b64 v[{32+i}:{33+i}], v[{r+i}:{r+i+1}]')
    ppoll('bg', cfg.pb, [32] if cfg.pb == 1 else [96 + 8 * k for k in range(cfg.pb)], b_issue, 2, lambda r: chk([r, r + 4], 40), b_take, first=True)
    if cfg.dbg and not cfg.hd: L.append(f'v_writelane_b32 v{VTS}, s{sCNT}, 9')
    red4rows_multi([32, 36])
    ts(4)
    rnd(36, 36); rnd(32, 32)
    e('v_add_f32 v36, 1.0, v36'); rnd(36, 36)
    e('v_mul_f32 v36, v20, v36'); rnd(36, 36)
    e('v_add_f32 v36, v36, v32\nv_cvt_pk_bf16_f32 v36, v36, v36')
    gemv([(36, 2 * t, 64 + 4 * t, None) for t in range(7)], acc=24, val=44, A=28)
    red_write(24, 21)
    e('s_waitcnt lgkmcnt(0)\ns_barrier')
    e(f's_cmp_lg_u32 s{sWAVE}, 0')
    br('s_cbranch_scc1', 'L_Bdone')
    quad_reduce(23, 32)
    e('v_cvt_pk_bf16_f32 v56, v32, v33\nv_cvt_pk_bf16_f32 v57, v34, v35')
    exec_set(0x1111111111111111)
    if cfg.fast: e('global_store_dwordx4 v50, v[56:59], s[10:11]')
    e(f'global_store_dwordx4 v50, v[56:59], {WS} sc1')
    exec_set(ALL)
    ts(5)
    label('L_Bdone'); L.append('C_B1:')
    if cfg.host == 'D':
        e(f"""s_barrier
        s_lshr_b32 s36, s0, 1
        s_mul_i32 s36, s36, 14
        s_and_b32 s37, s0, 1
        s_lshl3_add_u32 s36, s37, s36
        s_add_u32 s{sR0}, s36, s1
        s_lshl1_add_u32 s37, s37, s1
        s_cmp_lt_u32 s37, 8""")
    else: e('s_barrier\ns_cmp_lt_u32 s1, 7')
    br('s_cbranch_scc1', 'L_EF' if cfg.host == 'D' else 'L_D')
    br('s_branch', 'L_fin')

def role_D():
    ROLE[0] = 'D'
    label('L_D')
    w_addr(13, 14, 896)
    e(f'''s_lshl_b32 s34, s0, 3
    s_add_u32 s34, s34, s{sWAVE}
    s_mul_i32 s34, s34, {64*896}
    s_lshl_b32 s35, s1, 7
    s_add_u32 s34, s34, s35
    s_add_u32 s40, s{sWO}, s34
    s_addc_u32 s41, s{sWO+1}, 0''')
    for t in range(8):
        ld(f'global_load_dwordx4 v[{64+4*t}:{67+4*t}], v13, s[40:41] {cfg.nt}', 'o')
        if t < 7: sadd64(40, 40, 7168)
    ts(6)
    e(f'''v_bfe_u32 v10, v{vLANE}, 1, 1
    v_and_b32 v11, 1, v{vLANE}
    s_lshl_b32 s34, s{sWAVE}, 1
    v_add_u32 v10, s34, v10
    v_lshlrev_b32 v30, 8, v10
    v_lshl_add_u32 v30, v11, 4, v30
    s_lshl_b32 s35, s0, 12
    s_add_u32 s35, s35, {ST}
    v_add_u32 v30, s35, v30
    v_lshlrev_b32 v12, 3, v10
    v_lshl_add_u32 v12, v11, 7, v12
    v_lshl_add_u32 v15, v{vLG}, 2, v{vN}
    v_and_b32 v15, 15, v15
    s_lshr_b32 s34, s{sWAVE}, 2
    s_lshl_b32 s35, s34, 7
    v_lshl_add_u32 v15, v15, 3, s35
    v_lshlrev_b32 v31, 13, v{vLG}
    v_lshl_add_u32 v31, v{vN}, 4, v31
    s_lshl_b32 s35, s0, 16
    s_lshl_b32 s34, s34, 15
    s_add_u32 s35, s35, s34
    s_and_b32 s34, s{sWAVE}, 1
    s_lshl_b32 s34, s34, 8
    s_add_u32 s35, s35, s34
    s_and_b32 s34, s{sWAVE}, 2
    s_lshl_b32 s34, s34, 9
    s_add_u32 s35, s35, s34
    s_add_u32 s35, s35, {M3+4096}
    v_add_u32 v31, s35, v31
    s_lshl_b32 s35, s1, 8
    v_lshl_add_u32 v20, v{vLANE}, 2, s35
    v_cmp_lt_u32 vcc, 895, v20
    v_cndmask_b32 v10, 0, 64, vcc
    s_lshl_b32 s34, s0, 11
    s_add_u32 s34, s34, {M4}
    v_lshl_add_u32 v20, v10, 1, v20
    v_add_u32 v20, s34, v20''')
    red_waddr(21, 22, 320)
    quad_raddr(23, 22)
    e(f's_add_u32 s10, s{sWS}, {FOFF if cfg.fast else 0}\ns_addc_u32 s11, s{sWS+1}, 0')
    exec_set(0xF)
    L.append('C_D0:')
    top = lab('sg'); out = lab('sgo')
    label(top)
    fsel(42, 10, sWS)
    e(f'global_load_dwordx3 v[32:34], v30, s[42:43] sc1\ns_waitcnt vmcnt(0)\nv_cmp_ne_u32 vcc, s{sTAG}, v34')
    br('s_cbranch_vccz', out)
    retry(top)
    label(out)
    e(f'ds_write_b64 v12, v[32:33] offset:{STL}')
    exec_set(ALL)
    e('s_waitcnt lgkmcnt(0)')
    ts(7)
    e('s_barrier')
    def o_loads():
        for t in range(4): e(f'global_load_dwordx4 v[{40+4*t}:{43+4*t}], v31, s[42:43] offset:{t*2048-4096} sc1')
    o_loads()
    e(f'ds_read_b64 v[32:33], v15 offset:{STL}\ns_waitcnt lgkmcnt(0)\nv_mov_b32 v34, v32')
    rowsum(34, 'max')
    e(f'''v_sub_f32 v32, v32, v34
    v_mul_f32 v32, {fl(0.0625*LOG2E)}, v32
    v_exp_f32 v32, v32
    v_mul_f32 v33, v33, v32''')
    rowsum(33)
    e('v_rcp_f32 v33, v33\nv_mul_f32 v32, v32, v33')
    for t in range(4): e(f'v_mov_b32_dpp v{36+t}, v32 row_newbcast:{t} row_mask:0xf bank_mask:0xf')
    top = lab('og'); out = lab('ogo')
    label(top)
    e('s_waitcnt vmcnt(0)')
    chk([40, 44, 48, 52], 56)
    br('s_cbranch_vccz', out)
    fsel(42, 10, sWS)
    o_loads()
    retry(top)
    e('s_waitcnt vmcnt(0)')
    label(out)
    ts(8)
    for t in range(4):
        b = 36 + (t & ~1)
        for h in (0, 2):
            if t == 0:
                e(f'v_pk_mul_f32 v[{32+h}:{33+h}], v[{40+h}:{41+h}], v[{b}:{b+1}] op_sel_hi:[1,0]')
            else:
                sel = 'op_sel_hi:[1,0,1]' if t % 2 == 0 else 'op_sel:[0,1,0] op_sel_hi:[1,1,1]'
                e(f'v_pk_fma_f32 v[{32+h}:{33+h}], v[{40+4*t+h}:{41+4*t+h}], v[{b}:{b+1}], v[{32+h}:{33+h}] {sel}')
    red4rows(32)
    e('v_cvt_pk_bf16_f32 v32, v32, v32')
    gemv([(32, 2 * t, 64 + 4 * t, None) for t in range(8)], acc=24, val=44, A=48)
    red_write(24, 21)
    e('s_waitcnt lgkmcnt(0)')
    ts(9)
    e('s_barrier')
    e(f's_cmp_lg_u32 s{sWAVE}, 0')
    br('s_cbranch_scc1', 'L_fin')
    quad_reduce(23, 32)
    tag4(32, 19)
    exec_set(0x1111111111111111)
    e(f'global_store_dwordx4 v20, v[32:35], {WS} sc1')
    exec_set(ALL)
    ts(10)
    br('s_branch', 'L_fin'); L.append('C_D1:')

def role_EF():
    ROLE[0] = 'E'
    label('L_EF')
    if cfg.efrev:
        e(f's_and_b32 s34, s{sR0}, 1\ns_mul_i32 s34, s34, 7\ns_xor_b32 s34, s34, s{sWAVE}\ns_mul_i32 s34, s34, 56')
    else:
        e(f's_mul_i32 s34, s{sWAVE}, 56')
    e(f'''v_lshrrev_b32 v13, 3, v{vN}
    v_lshl_add_u32 v13, v13, 2, v{vLG}
    v_add_u32 v18, s34, v13
    v_mul_u32_u24 v18, 3584, v18
    v_and_b32 v12, 3, v{vN}
    v_lshl_add_u32 v18, v12, 4, v18
    s_lshl_b32 s35, s{sR0}, 6
    v_add_u32 v18, s35, v18
    v_and_b32 v12, 4, v{vN}
    v_cmp_eq_u32 vcc, 0, v12
    v_mov_b32 v16, s{sUP}
    v_mov_b32 v17, s{sGT}
    v_cndmask_b32 v16, v16, v17, vcc
    v_mov_b32 v17, s{sUP+1}
    v_mov_b32 v12, s{sGT+1}
    v_cndmask_b32 v17, v17, v12, vcc
    v_add_co_u32 v16, vcc, v16, v18
    v_addc_co_u32 v17, vcc, 0, v17, vcc
    s_mov_b32 s52, 28672
    s_mov_b32 s53, 0''')
    for t in range(7):
        ld(f'global_load_dwordx4 v[{64+4*t}:{67+4*t}], v[16:17], off {cfg.nt}', 'e')
        if t < 6: e('v_lshl_add_u64 v[16:17], v[16:17], 0, s[52:53]')
    e(f'''v_mul_u32_u24 v13, 896, v13
    v_and_b32 v12, 7, v{vN}
    v_lshl_add_u32 v13, v12, 4, v13
    s_mul_i32 s35, s{sR0}, {32*896}
    s_min_u32 s36, s{sWAVE}, 6
    s_lshl_b32 s36, s36, 7
    s_add_u32 s35, s35, s36
    s_add_u32 s54, s{sDN}, s35
    s_addc_u32 s55, s{sDN+1}, 0
    s_cmp_eq_u32 s{sWAVE}, 7''')
    br('s_cbranch_scc1', 'L_nodn')
    for t in range(4):
        ld(f'global_load_dwordx4 v[{96+4*t}:{99+4*t}], v13, s[54:55] {cfg.nt}', 'e')
        if t < 3: sadd64(54, 54, 7168)
    label('L_nodn')
    ts(6)
    e(f'''v_min_u32 v11, 13, v{vN}
    v_lshl_add_u32 v11, v11, 2, s34
    v_add_lshl_u32 v12, v11, v{vLG}, 1
    global_load_ushort v20, v12, s[{sX}:{sX+1}]
    s_cmp_ge_u32 s34, 224
    s_cselect_b32 s36, 128, 0
    v_lshl_add_u32 v13, v11, 2, s36
    v_lshl_add_u32 v15, v{vLG}, 13, v13
    v_add_u32 v15, {M6+2048}, v15
    v_lshl_add_u32 v14, v{vLG}, 11, v13
    v_add_u32 v14, {M4}, v14
    v_add_u32 v13, 8192, v14
    v_cmp_gt_u32 vcc, 14, v{vN}
    v_cndmask_b32 v31, 0, 1.0, vcc''')
    red_waddr(21, 22, 256)
    e(f'''v_lshlrev_b32 v23, 4, v{vLANE}
    v_lshrrev_b32 v22, 5, v{vLANE}
    v_lshlrev_b32 v22, 2, v22
    s_lshl_b32 s36, s{sWAVE}, 4
    s_add_u32 s36, s36, {STT}
    v_add_u32 v22, s36, v22
    v_and_b32 v18, 7, v{vLANE}
    v_lshlrev_b32 v18, 4, v18
    v_add_u32 v18, {STT}, v18
    v_lshrrev_b32 v10, 1, v{vN}
    s_lshl_b32 s36, s{sWAVE}, 2
    v_add_u32 v10, s36, v10
    v_lshlrev_b32 v10, 13, v10
    v_and_b32 v12, 1, v{vN}
    v_lshl_add_u32 v10, v12, 5, v10
    v_lshl_add_u32 v10, v{vLG}, 4, v10
    s_mul_i32 s36, s{sR0}, 37
    s_lshr_b32 s36, s36, 8
    s_add_u32 s36, s36, s{sR0}
    s_lshl_b32 s36, s36, 7
    s_add_u32 s36, s36, {M5}
    v_add_u32 v10, s36, v10''')
    top = lab('m6'); out = lab('m6o')
    label(top)
    e(f'''global_load_dwordx4 v[32:35], v15, {WS} offset:-2048 sc1
    global_load_dwordx4 v[36:39], v15, {WS} sc1
    global_load_dwordx4 v[40:43], v15, {WS} offset:2048 sc1
    s_waitcnt vmcnt(0)''')
    chk([32, 36, 40], 44)
    br('s_cbranch_vccz', out)
    e('s_sleep 2')
    retry(top)
    label(out)
    red4rows_multi([32, 36, 40])
    rnd(56, 32); rnd(57, 36); rnd(58, 40)
    e('v_add_f32 v58, 1.0, v58'); rnd(58, 58)
    e('v_lshlrev_b32 v20, 16, v20')
    ts(7)
    L.append('C_E0:')
    def e_take(r):
        ts(10)
        for h in (0, 2): e(f'v_pk_add_f32 v[{32+h}:{33+h}], v[{r+h}:{r+h+1}], v[{r+4+h}:{r+5+h}]')
    ppoll('m4', cfg.pe, [112 + 8 * k for k in range(cfg.pe)],
          lambda r: e(f'global_load_dwordx4 v[{r}:{r+3}], v14, {WS} sc1\nglobal_load_dwordx4 v[{r+4}:{r+7}], v13, {WS} sc1'),
          2, lambda r: chk([r, r + 4], 40), e_take)
    red4rows(32)
    rnd(32, 32)
    e('v_mul_f32 v32, v56, v32'); rnd(32, 32)
    e('v_add_f32 v32, v20, v32'); rnd(32, 32)
    e('''v_readfirstlane_b32 s36, v32
    v_subrev_f32 v33, s36, v32
    v_mul_f32 v33, v33, v31
    v_mul_f32 v34, v33, v33
    v_mov_b32 v36, s36
    v_permlane32_swap_b32 v33, v34
    v_add_f32 v33, v33, v34
    v_mov_b32 v34, v33
    v_permlane16_swap_b32 v33, v34
    v_add_f32 v33, v33, v34''')
    rowsum(33)
    exec_set(0x0000000100000001)
    e('ds_write_b32 v22, v33\nds_write_b32 v22, v36 offset:8')
    exec_set(ALL)
    e('s_waitcnt lgkmcnt(0)\ns_barrier\nds_read_b96 v[36:38], v18\ns_waitcnt lgkmcnt(0)')
    e(f'''v_mul_f32 v39, {fl(1/56)}, v36
    v_add_f32 v38, v38, v39
    v_fma_f32 v37, -v36, v39, v37
    v_mov_b32 v40, v38''')
    for p in ('quad_perm:[1,0,3,2]', 'quad_perm:[2,3,0,1]', 'row_half_mirror'): dpp_op(40, 40, p)
    e(f'''v_mul_f32 v40, 0.125, v40
    v_sub_f32 v38, v38, v40
    v_mul_f32 v39, {fl(56.0)}, v38
    v_fmac_f32 v37, v39, v38''')
    for p in ('quad_perm:[1,0,3,2]', 'quad_perm:[2,3,0,1]', 'row_half_mirror'): dpp_op(37, 37, p)
    rnd(40, 40)
    e(f'v_mul_f32 v37, {fl(1/448)}, v37\nv_max_f32 v37, 0, v37'); rnd(37, 37)
    e(f'v_add_f32 v37, {fl(1e-5)}, v37'); rnd(37, 37)
    e('v_sqrt_f32 v37, v37\nv_sub_f32 v32, v32, v40'); rnd(37, 37); rnd(32, 32)
    e('v_rcp_f32 v37, v37\nv_mul_f32 v32, v32, v37'); rnd(32, 32)
    e('v_mul_f32 v32, v32, v58'); rnd(32, 32)
    e('v_add_f32 v32, v32, v57\nv_cvt_pk_bf16_f32 v32, v32, v32')
    gemv([(32, 2 * t, 64 + 4 * t, None) for t in range(7)], acc=24, val=44, A=28)
    red_write(24, 21)
    e('s_waitcnt lgkmcnt(0)\ns_barrier')
    ts(11)
    e(f's_cmp_eq_u32 s{sWAVE}, 7')
    br('s_cbranch_scc1', 'L_fin')
    for i in range(4): e(f'ds_read_b128 v[{32+4*i}:{35+4*i}], v23 offset:{RED+i*1024}')
    e('s_waitcnt lgkmcnt(0)')
    pk_tree(32, 4)
    red4rows(32)
    rnd(32, 32)
    kk = -2 * math.sqrt(2 / math.pi) * LOG2E
    e(f'''v_mul_f32 v33, v32, v32
    v_mov_b32_dpp v35, v32 row_ror:8 row_mask:0xf bank_mask:0xf
    v_mul_f32 v33, {fl(0.044715*kk)}, v33
    v_add_f32 v33, {fl(kk)}, v33
    v_mul_f32 v33, v33, v32
    v_exp_f32 v33, v33
    v_add_f32 v33, 1.0, v33
    v_rcp_f32 v33, v33
    v_mul_f32 v32, v32, v33''')
    rnd(32, 32)
    e('v_mul_f32 v32, v32, v35\nv_cvt_pk_bf16_f32 v32, v32, v32')
    gemv([(32, 2 * t, 96 + 4 * t, None) for t in range(4)], acc=24, val=44, A=28)
    fold(24, 36)
    tag4(24, 19)
    exec_set(0x00FF00FF)
    e(f'global_store_dwordx4 v10, v[24:27], {WS} sc1')
    ts(12)
    exec_set(ALL)
    br('s_branch', 'L_fin'); L.append('C_E1:')

def red16(c):
    red4rows(c)
    dpp_op(c, c, 'row_ror:8'); dpp_op(c, c, 'row_ror:4')
def role_G():
    ROLE[0] = 'G'
    label('L_G')
    e(f'''v_and_b32 v10, 3, v{vLANE}
    v_lshrrev_b32 v11, 2, v{vLANE}
    s_lshl_b32 s34, s1, 4
    v_lshl_add_u32 v12, v10, 2, s34
    v_add_lshl_u32 v13, v12, v{vLG}, 1
    global_load_ushort v20, v13, s[{sX}:{sX+1}]
    s_cmp_ge_u32 s1, 14
    s_cselect_b32 s36, 128, 0
    v_lshl_add_u32 v14, v12, 2, s36
    v_and_b32 v16, 3, v11
    v_lshl_add_u32 v16, v16, 13, v14
    v_add_u32 v16, {M6}, v16
    v_add_u32 v15, 6144, v16
    v_and_b32 v17, 7, v11
    v_min_u32 v18, 6, v17
    v_cmp_gt_u32 vcc, 7, v17
    v_cndmask_b32 v22, 0, 1.0, vcc
    v_lshl_add_u32 v17, v17, 11, v14
    v_add_u32 v17, {M4}, v17
    s_lshl_b32 s35, s1, 13
    s_add_u32 s35, s35, {M5+4096}
    v_lshlrev_b32 v18, 7, v18
    v_lshl_add_u32 v18, v10, 4, v18
    v_lshrrev_b32 v19, 5, v{vLANE}
    v_lshl_add_u32 v18, v19, 10, v18
    v_add_u32 v18, s35, v18''')
    top = lab('g6'); out = lab('g6o')
    label(top)
    e(f'''global_load_dwordx4 v[32:35], v16, {WS} sc1
    global_load_dwordx4 v[36:39], v15, {WS} sc1
    s_waitcnt vmcnt(0)''')
    chk([32, 36], 40)
    br('s_cbranch_vccz', out)
    e('s_sleep 4')
    retry(top)
    label(out)
    for c in (32, 36):
        for r in range(4): dpp_op(c + r, c + r, 'row_ror:8')
        for r in range(4): dpp_op(c + r, c + r, 'row_ror:4')
    for r in range(1, 4):
        e(f'v_cmp_eq_u32 vcc, {r}, v{vLG}\nv_cndmask_b32 v32, v32, v{32+r}, vcc\nv_cndmask_b32 v36, v36, v{36+r}, vcc')
    rnd(56, 32); rnd(57, 36)
    e('v_lshlrev_b32 v20, 16, v20')
    ts(11)
    top = lab('g4'); out = lab('g4o')
    label(top)
    e(f'global_load_dwordx4 v[32:35], v17, {WS} sc1\ns_waitcnt vmcnt(0)')
    chk([32], 40)
    br('s_cbranch_vccz', out)
    e('s_sleep 2')
    retry(top)
    label(out)
    red16(32)
    e('v_mul_f32 v32, 0.5, v32')
    rnd(32, 32)
    e('v_mul_f32 v32, v56, v32'); rnd(32, 32)
    e('v_add_f32 v20, v20, v32'); rnd(20, 20)
    e(f'v_mov_b32 v58, {EPO}\nv_mov_b32 v59, s{sTAG}')
    ts(12)
    L.append('C_G0:')
    def g_issue(r):
        for i in range(4): e(f'global_load_dwordx4 v[{r+4*i}:{r+4*i+3}], v18, {WS} offset:{2048*i-4096} sc1')
    def g_take(r):
        ts(13)
        for i in (0, 1):
            for h in (0, 2): e(f'v_pk_add_f32 v[{32+4*i+h}:{33+4*i+h}], v[{r+8*i+h}:{r+8*i+h+1}], v[{r+8*i+4+h}:{r+8*i+5+h}]')
    ppoll('g5', cfg.pg, [64 + 16 * k for k in range(cfg.pg)], g_issue, 4, lambda r: chk([r, r + 4, r + 8, r + 12], 48), g_take)
    pk_tree(32, 2)
    for h in (0, 2): e(f'v_pk_mul_f32 v[{32+h}:{33+h}], v[{32+h}:{33+h}], v[22:23] op_sel_hi:[1,0]')
    red16(32)
    rnd(32, 32)
    e('v_mul_f32 v32, v57, v32'); rnd(32, 32)
    e('v_add_f32 v32, v20, v32\nv_cvt_pk_bf16_f32 v32, v32, v32')
    exec_set(0x000F000F000F000F)
    e(f'global_store_short v13, v32, s[{sOUT}:{sOUT+1}] {cfg.outpol}')
    e('s_cmp_lg_u32 s1, 0')
    br('s_cbranch_scc1', 'L_Gne')
    exec_set(1)
    e(f'global_store_dword v58, v59, {WS} sc1')
    label('L_Gne'); L.append('C_G1:')
    exec_set(ALL)
    if cfg.hd: e('s_waitcnt vmcnt(0)'); ts(14)
    wave_end()

def tsdump():
    L.append('L_tsdump:')
    if cfg.hd:
        e(f'''s_and_b32 m0, s2, 7
        s_nop 0
        v_readlane_b32 s34, v{VTS}, m0
        s_nop 4
        s_not_b32 s34, s34
        s_mov_b32 s35, 9000
        L_hdw:
        s_sleep 1
        s_memrealtime s[32:33]
        s_waitcnt lgkmcnt(0)
        s_sub_u32 s35, s35, 1
        s_cmp_eq_u32 s35, 0
        s_cbranch_scc1 L_hdo
        s_sub_u32 s32, s32, s34
        s_cmp_lt_u32 s32, 2000
        s_cbranch_scc1 L_hdw
        L_hdo:
        {'s_endpgm' if cfg.hd == 3 else ''}
        v_lshlrev_b32 v10, 2, v{vLANE}
        s_cmp_eq_u32 s{sWAVE}, 0
        s_cselect_b32 s32, 0xff, 0
        s_or_b32 s32, s32, 0xff00
        s_mov_b32 exec_lo, s32
        s_mov_b32 exec_hi, 0
        v_cmp_ne_u32 vcc, 0, v{VTS}
        s_and_b64 exec, exec, vcc
        s_cbranch_execz L_exit
        global_atomic_umax v10, v{VTS}, s[100:101] sc1
        s_endpgm''')
        return
    e(f'''s_lshl_b32 s32, s2, 3
    s_add_u32 s32, s32, s{sWAVE}
    s_lshl_b32 s32, s32, 6
    s_add_u32 s32, s32, {TSB}
    v_lshlrev_b32 v10, 2, v{vLANE}
    v_add_u32 v10, s32, v10
    s_mov_b64 exec, 0xffff
    global_store_dword v10, v{VTS}, {WS}
    s_endpgm''')

pend = prologue()
for r in cfg.order:
    if r == 'X' and cfg.xd == 1: L.append('.p2align 6'); L.append('.fill 16, 4, 0xbf800000') if False else None
    if r == 'X' and cfg.xd == 2: continue
    {'X': start_X, 'H': start_H, 'B': start_B}[r](pend)
role_H(pend)
L.append('P_B:'); role_B()
if cfg.xd == 2: start_X(pend)
L.append('P_X:'); role_X()
L.append('P_D:'); role_D()
L.append('P_E:'); role_EF()
L.append('P_G:'); role_G()
role_Hidle(pend)
if cfg.dbg: tsdump()
L.append('L_exit:')
L.append('s_endpgm')
L.append('L_end:')
L.append('s_endpgm')
body, nn = fix(L)
probs = taint_check(body)
for p in probs: sys.stderr.write(f'TAINT {p}\n')
if probs: sys.exit(1)
def render(body):
  hdr = open('adaLN_cond__sliding_block_cached__geglu_ffn__decode.s.ref').read().split('; Override launch')[0]
  out = hdr + '; generated by gen4.py (persistent fused kernel, one workgroup per CU)\n'
  out += f'; @launch grid=(256,1,1) block=(512,1,1) lds={LDS_BYTES}\n'
  out += f'.amdgcn_target "amdgcn-amd-amdhsa--gfx950"\n.text\n.globl {KN}\n.p2align {cfg.al}\n.p2align 8\n.type {KN},@function\n{KN}:\n'
  out += '\n'.join(l if l.endswith(':') else '    ' + l for l in body) + '\n'
  out += f'''.section .rodata,"a"
.p2align 6
.amdhsa_kernel {KN}
  .amdhsa_next_free_vgpr 160
  .amdhsa_next_free_sgpr 102
  .amdhsa_accum_offset 160
  .amdhsa_group_segment_fixed_size 0
  .amdhsa_kernarg_size 112
  .amdhsa_user_sgpr_count 2
  .amdhsa_user_sgpr_kernarg_segment_ptr 1
  .amdhsa_system_sgpr_workgroup_id_x 1
  .amdhsa_float_denorm_mode_32 3
.end_amdhsa_kernel
'''
  return out
def addrs(text):
    import subprocess, tempfile, os
    d = tempfile.mkdtemp()
    open(d + '/a.s', 'w').write(text)
    subprocess.run(['clang', '-x', 'assembler', '-target', 'amdgcn-amd-amdhsa', '-mcpu=gfx950', '-c', d + '/a.s', '-o', d + '/a.o'], check=True)
    o = subprocess.run(['llvm-readelf', '-s', d + '/a.o'], capture_output=True, text=True).stdout
    return {p[7]: int(p[1], 16) for p in (l.split() for l in o.split('\n')) if len(p) == 8 and p[7][:2] in ('C_', 'L_', 'P_')}
if cfg.lay:
    A = addrs(render(body)); shift = 0; pads = {}
    for r in 'BXDEG':
        b0, b1 = A[f'C_{r}0'] + shift, A[f'C_{r}1'] + shift
        if b0 // 4096 != (b1 - 1) // 4096:
            pads[r] = 4096 - b0 % 4096; shift += pads[r]
    nb = []
    for l in body:
        nb.append(l)
        if l.startswith('P_') and l[2] in pads: nb.append(f'.fill {pads[l[2]]//4}, 4, 0xbf800000')
    body = nb
body = [l for l in body if l[:2] not in ('P_', 'C_')]
out = render(body)
sys.stdout.write(out)
sys.stderr.write(f'instructions {len(body)} nops {nn}\n')
```

```python
import sys, math, struct, re
from hz import fix, taint_check
KN = 'adaLN_cond__sliding_block_cached__geglu_ffn__decode_kernel'

class Cfg:
    dbg = 0
    nt = 'nt'
    pf = 1
    warm = 0
    gate = 0
    adup = 0
    host = 'D'
    xd = 0
    slow = 1
    xw = 9
    xn = 4
    bsl = 0
    esl = 0
    gsl = 0
    qsl = 0
    wpol = 'nt'
    vb = 8
    qp = 0
    qc = 0
    m1c = 1
    fast = 1
    bbar = 1
    pb = 1
    pe = 1
    pg = 1
    psl = 4
    rearly = 0
    lay = 1
    kvbar = 1
    efrev = 1
    outpol = ''
    skip = ''
    order = 'HBX'
    al = 12
    b3 = 0
    hd = 0
cfg = Cfg()
for a in sys.argv[1:]:
    k, v = a.split('=')
    assert hasattr(cfg, k), k
    setattr(cfg, k, int(v) if v.lstrip('-').isdigit() else v)
if cfg.nt == 'none': cfg.nt = ''
if cfg.wpol == 'none': cfg.wpol = ''
if cfg.hd: cfg.dbg = 1
ROLE = ['P']
HD = {('P',0):'st', ('B',4):8, ('B',5):9, ('X',4):10, ('X',7):11, ('D',10):12, ('E',7):13, ('E',11):14, ('G',14):15}
if cfg.hd == 3: HD = {('P',0):'st'}
if cfg.hd == 2: HD = {('P',0):'st', ('H',1):8, ('H',3):9, ('B',1):10, ('B',2):11, ('B',3):12, ('X',2):13, ('X',3):14, ('E',6):15}

M1 = 0x200; EPO = 0x4400; M6 = 0x6200; M4 = 0x10200; ST = 0x18000; M5 = 0x20200; M3 = 0x60200; M2 = 0x100000; M1C = 0x1C0200
TSB = 0x200000
QF = 0x600000
FOFF = 0x400000
FTH = 0x7fff - 32
LOG2E = 1.4426950408889634
def fl(x): return hex(struct.unpack('<I', struct.pack('<f', x))[0])

L = []
def e(s):
    for line in s.split('\n'):
        line = line.strip()
        if line:
            L.append(line)
            if cfg.dbg and line.startswith('s_waitcnt') and 'lgkmcnt(0)' in line: ts_flush()
_lab = [0]
def lab(b):
    _lab[0] += 1
    return f'L_{b}_{_lab[0]}'
def ld(s, tag):
    if tag in cfg.skip:
        a = int(re.search(r'v\[(\d+):', s).group(1))
        for r in range(4): e(f'v_mov_b32 v{a+r}, 0')
    else: e(s)

ts_pend = []
CARRY = {}
VTS = 5
def ts(k):
    if not cfg.dbg: return
    if cfg.hd:
        k = HD.get((ROLE[0], k))
        if k is None: return
    if len(ts_pend) == (1 if cfg.hd else 2): e('s_waitcnt lgkmcnt(0)')
    used = [p for p, _ in ts_pend]
    p = 98 if 98 not in used else 100
    L.append(f's_memrealtime s[{p}:{p+1}]')
    if cfg.hd and ROLE[0] == 'H':
        L.extend(['s_waitcnt lgkmcnt(0)', 's_cmp_lt_u32 s35, 14', f's_cselect_b32 s{p}, s{p}, 0', f'v_writelane_b32 v{VTS}, s{p}, {k}'])
        return
    ts_pend.append((p, k))
def ts_flush():
    global ts_pend
    pend, ts_pend = ts_pend, []
    for p, k in pend:
        if k == 'st':
            L.append(f's_not_b32 s{p}, s{p}'); L.append(f's_and_b32 m0, s2, 7'); L.append('s_nop 0'); L.append(f'v_writelane_b32 v{VTS}, s{p}, m0')
            L.append('s_mov_b64 s[100:101], s[28:29]')
        else: L.append(f'v_writelane_b32 v{VTS}, s{p}, {k}')
def ts_sync():
    if cfg.dbg and ts_pend: e('s_waitcnt lgkmcnt(0)')
def wave_end():
    if cfg.dbg:
        ts(15); ts_sync()
        e('s_branch L_tsdump')
    else:
        e('s_endpgm')
def br(op, target):
    ts_sync(); e(f'{op} {target}')
def label(name):
    ts_sync(); e(f'{name}:')

sX, sK, sV, sWQ, sWO, sGT, sUP, sDN, sC, sWM, sOUT, sDBG, sWS = 4, 6, 8, 10, 12, 16, 18, 20, 22, 24, 26, 28, 30
sWAVE = 3; sCNT = 96; sR0 = 97
sTAG = 14
sT1, sT2, sT3 = 28, 29, 15
sP01, sP23 = 22, 23
vLANE, vLG, vN, vHM, vCJ = 1, 2, 3, 4, 6
vROW, vCOL = 62, 61
WS = f's[{sWS}:{sWS+1}]'
ALL = (1 << 64) - 1

def exec_set(mask):
    lo = mask & 0xffffffff; hi = mask >> 32
    if mask == ALL: e('s_mov_b64 exec, -1')
    elif hi == 0 and lo < 0x80000000: e(f's_mov_b64 exec, {hex(lo)}')
    else:
        e(f's_mov_b32 exec_lo, {hex(lo)}'); e(f's_mov_b32 exec_hi, {hex(hi)}')
def rnd(dst, src, tmp=None):
    tmp = dst if tmp is None else tmp
    e(f'v_cvt_pk_bf16_f32 v{tmp}, v{src}, v{src}')
    e(f'v_and_b32 v{dst}, 0xffff0000, v{tmp}')
def red4rows(c):
    e(f'''v_permlane32_swap_b32 v{c}, v{c+2}
    v_permlane32_swap_b32 v{c+1}, v{c+3}
    v_add_f32 v{c}, v{c}, v{c+2}
    v_add_f32 v{c+1}, v{c+1}, v{c+3}
    v_permlane16_swap_b32 v{c}, v{c+1}
    v_add_f32 v{c}, v{c}, v{c+1}''')
def red4rows_multi(cs):
    for c in cs: e(f'v_permlane32_swap_b32 v{c}, v{c+2}\nv_permlane32_swap_b32 v{c+1}, v{c+3}')
    for c in cs: e(f'v_add_f32 v{c}, v{c}, v{c+2}\nv_add_f32 v{c+1}, v{c+1}, v{c+3}')
    for c in cs: e(f'v_permlane16_swap_b32 v{c}, v{c+1}')
    for c in cs: e(f'v_add_f32 v{c}, v{c}, v{c+1}')
def dpp_op(dst, src, pat, op='add'):
    e(f'v_{op}_f32_dpp v{dst}, v{src}, v{src} {pat} row_mask:0xf bank_mask:0xf')
def rowsum(v, op='add'):
    for p in ('quad_perm:[1,0,3,2]', 'quad_perm:[2,3,0,1]', 'row_half_mirror', 'row_mirror'): dpp_op(v, v, p, op)
def xrows(v, t, op='add'):
    e(f'v_mov_b32 v{t}, v{v}\nv_permlane16_swap_b32 v{v}, v{t}\nv_{op}_f32 v{v}, v{v}, v{t}')
    e(f'v_mov_b32 v{t}, v{v}\nv_permlane32_swap_b32 v{v}, v{t}\nv_{op}_f32 v{v}, v{v}, v{t}')
def wavesum(v, t):
    rowsum(v); xrows(v, t)
def gemv_consts(t=60):
    e(f'''v_and_b32 v{t}, 1, v{vLANE}
    v_cmp_eq_u32 vcc, 1, v{t}
    v_mov_b32 v{t+1}, 0xffff
    v_mov_b32 v{t+2}, 0xffff0000
    v_cndmask_b32 v{vHM}, v{t+1}, v{t+2}, vcc
    v_bfe_u32 v{t}, v{vLANE}, 1, 2''')
    for j in range(4):
        e(f'v_cmp_eq_u32 vcc, {j}, v{t}\nv_cndmask_b32 v{vCJ+j}, 0, 1.0, vcc')
def pkmul(A, val):
    b = val & ~1
    sel = 'op_sel_hi:[0,1]' if val % 2 == 0 else 'op_sel:[1,0] op_sel_hi:[1,1]'
    e(f'v_pk_mul_f32 v[{A}:{A+1}], v[{b}:{b+1}], v[{vCJ}:{vCJ+1}] {sel}')
    e(f'v_pk_mul_f32 v[{A+2}:{A+3}], v[{b}:{b+1}], v[{vCJ+2}:{vCJ+3}] {sel}')
def gemv(steps, acc, val, A):
    n = len(steps)
    def andA(t): e(f'v_and_b32_dpp v{val+t%2}, v{steps[t][0]}, v{vHM} row_newbcast:{steps[t][1]} row_mask:0xf bank_mask:0x3')
    def andB(t): e(f'v_and_b32_dpp v{val+t%2}, v{steps[t][0]}, v{vHM} row_newbcast:{steps[t][1]+1} row_mask:0xf bank_mask:0xc')
    andA(0)
    if n > 1: andA(1)
    andB(0)
    for t in range(n):
        pkmul(A, val + t % 2)
        if t + 1 < n: andB(t + 1)
        if t + 2 < n: andA(t + 2)
        if steps[t][3]: e(steps[t][3])
        Ws = steps[t][2] if isinstance(steps[t][2], list) else [steps[t][2]]
        for q, W in enumerate(Ws):
            a = acc + 4 * q
            e(f'v_mfma_f32_16x16x32_bf16 v[{a}:{a+3}], v[{A}:{A+3}], v[{W}:{W+3}], ' + ('0' if t == 0 else f'v[{a}:{a+3}]'))
def fold(acc, tmp):
    for r in range(4): e(f'v_permlane32_swap_b32 v{acc+r}, v{tmp+r}')
    for r in range(4): e(f'v_add_f32_dpp v{acc+r}, v{tmp+r}, v{acc+r} row_ror:8 row_mask:0xf bank_mask:0xf')
def sadd64(d, s, imm):
    e(f's_add_u32 s{d}, s{s}, {imm}\ns_addc_u32 s{d+1}, s{s+1}, 0')
def retry(top):
    ts_sync()
    e(f's_sub_i32 s{sCNT}, s{sCNT}, 1\ns_cmp_gt_i32 s{sCNT}, 0\ns_cbranch_scc1 {top}')
def ppoll(name, D, sets, issue, nld, check, take, first=False, sl=0):
    top = lab(name); out = lab(name + 'o'); oks = [lab(name + 'k') for _ in range(D)]
    if D == 1:
        label(top); issue(sets[0]); e('s_waitcnt vmcnt(0)'); check(sets[0])
        br('s_cbranch_vccz', oks[0])
        if sl: e(f's_sleep {sl}')
        retry(top); label(oks[0]); take(sets[0])
        return
    if first:
        issue(sets[0]); e('s_waitcnt vmcnt(0)'); check(sets[0]); br('s_cbranch_vccz', oks[0])
    for k in range(D):
        issue(sets[k]); e(f's_sleep {cfg.psl}')
    label(top)
    for k in range(D):
        e(f's_waitcnt vmcnt({(D-1)*nld})'); check(sets[k]); br('s_cbranch_vccz', oks[k])
        issue(sets[k]); e(f's_sleep {cfg.psl}')
    retry(top)
    for k in range(D - 1, -1, -1):
        label(oks[k]); take(sets[k])
        if k: br('s_branch', out)
    label(out)
def fsel(d, f, sl):
    e(f's_cmpk_lt_u32 s{sCNT}, {FTH}\ns_cselect_b32 s{d}, s{sl}, s{f}\ns_cselect_b32 s{d+1}, s{sl+1}, s{f+1}')
def load_epoch():
    e(f's_load_dword s{sTAG}, {WS}, {EPO}')
def make_tag():
    e(f's_add_u32 s{sTAG}, s{sTAG}, 0x01010101')
def tag_consts(vff):
    e(f'''s_lshr_b32 s{sT1}, s{sTAG}, 8
    s_lshr_b32 s{sT2}, s{sTAG}, 16
    s_lshr_b32 s{sT3}, s{sTAG}, 24
    s_mov_b32 s{sP01}, 0x0c0c0400
    s_mov_b32 s{sP23}, 0x04000c0c
    v_mov_b32 v{vff}, 0xff''')
def tag4(d, vff):
    for r, s in enumerate((sTAG, sT1, sT2, sT3)): e(f'v_bfi_b32 v{d+r}, v{vff}, s{s}, v{d+r}')
def tag4r(d, vff, st):
    for r, s in enumerate((sTAG, sT1, sT2, sT3)): e(f'v_add_u32 v{d+r}, s{st+r}, v{d+r}')
    tag4(d, vff)
def tag4r_consts(st):
    for r, s in enumerate((sTAG, sT1, sT2, sT3)): e(f's_and_b32 s{st+r}, s{s}, 0xff\ns_sub_u32 s{st+r}, 0x80, s{st+r}')
def chk(gs, t):
    for i, g in enumerate(gs):
        e(f'v_perm_b32 v{t+2*i}, v{g+1}, v{g}, s{sP01}\nv_perm_b32 v{t+2*i+1}, v{g+3}, v{g+2}, s{sP23}')
    for i, g in enumerate(gs):
        e(f'v_bitop3_b32 v{t+2*i}, v{t+2*i}, v{t+2*i+1}, s{sTAG} bitop3:0x56')
    rest = [t + 2 * i for i in range(1, len(gs))]
    while rest:
        if len(rest) >= 2: e(f'v_or3_b32 v{t}, v{t}, v{rest[0]}, v{rest[1]}'); rest = rest[2:]
        else: e(f'v_or_b32 v{t}, v{t}, v{rest[0]}'); rest = []
    e(f'v_cmp_ne_u32 vcc, 0, v{t}')
def silu2(a, b):
    for r in (a, b): e(f'v_lshlrev_b32 v{r}, 16, v{r}')
    for r in (a, b): e(f'v_mul_f32 v{r+6}, {fl(-LOG2E)}, v{r}')
    for r in (a, b): e(f'v_exp_f32 v{r+6}, v{r+6}')
    for r in (a, b): e(f'v_add_f32 v{r+6}, 1.0, v{r+6}')
    for r in (a, b): e(f'v_rcp_f32 v{r+6}, v{r+6}')
    for r in (a, b): e(f'v_mul_f32 v{r}, v{r}, v{r+6}')
    for r in (a, b): e(f'v_cvt_pk_bf16_f32 v{r}, v{r}, v{r}')
def c_addr(a, b, skq, st):
    e(f'''s_mul_i32 s{st}, s{skq}, 112
    v_lshl_add_u32 v{a}, v{vN}, 2, v{vLG}
    v_add_lshl_u32 v{a}, s{st}, v{a}, 1
    v_add_u32 v{b}, 128, v{a}
    v_min_u32 v{b}, 894, v{b}''')
def w_addr(v, t, stride):
    e(f'v_lshrrev_b32 v{v}, 3, v{vN}\nv_lshl_add_u32 v{v}, v{v}, 2, v{vLG}')
    if stride & (stride - 1) == 0: e(f'v_lshlrev_b32 v{v}, {stride.bit_length()-1}, v{v}')
    else: e(f'v_mul_u32_u24 v{v}, {stride}, v{v}')
    e(f'v_and_b32 v{t}, 7, v{vN}\nv_lshl_add_u32 v{v}, v{t}, 4, v{v}')
RED = 0; STT = 5120; STL = 5376
VALID = 0xFF00FF0000FF00FF
def red_write(acc, vaddr):
    exec_set(VALID)
    e(f'ds_write_b128 v{vaddr}, v[{acc}:{acc+3}]')
    exec_set(ALL)
def red_waddr(dst, tmp, pstr):
    e(f'''v_lshrrev_b32 v{tmp}, 1, v{vLG}
    s_lshl_b32 s32, s{sWAVE}, 1
    v_add_u32 v{tmp}, s32, v{tmp}
    v_mul_u32_u24 v{dst}, {pstr}, v{tmp}
    v_and_b32 v{tmp}, 7, v{vN}
    v_lshl_add_u32 v{dst}, v{tmp}, 5, v{dst}
    v_and_b32 v{tmp}, 1, v{vLG}
    v_lshl_add_u32 v{dst}, v{tmp}, 4, v{dst}''')
def quad_raddr(dst, tmp):
    e(f'''v_and_b32 v{tmp}, 3, v{vLANE}
    v_mul_u32_u24 v{dst}, 320, v{tmp}
    v_lshrrev_b32 v{tmp}, 2, v{vLANE}
    v_lshl_add_u32 v{dst}, v{tmp}, 4, v{dst}''')
def pk_tree(d, n):
    s = 1
    while s < n:
        for i in range(0, n - s, 2 * s):
            for h in (0, 2):
                a = d + 4 * i + h; b = d + 4 * (i + s) + h
                e(f'v_pk_add_f32 v[{a}:{a+1}], v[{a}:{a+1}], v[{b}:{b+1}]')
        s *= 2
def quad_reduce(raddr, d):
    for i in range(4): e(f'ds_read_b128 v[{d+4*i}:{d+4*i+3}], v{raddr} offset:{i*1280}')
    e('s_waitcnt lgkmcnt(0)')
    pk_tree(d, 4)
    for p in ('quad_perm:[1,0,3,2]', 'quad_perm:[2,3,0,1]'):
        for r in range(4): dpp_op(d + r, d + r, p)

def prologue():
    e(f"""s_cmp_ge_u32 s2, 256
    s_cbranch_scc1 L_exit
    s_load_dwordx16 s[4:19], s[0:1], 0
    s_load_dwordx8 s[20:27], s[0:1], 64
    s_load_dwordx4 s[28:31], s[0:1], 96""")
    if cfg.dbg:
        e(f'v_mov_b32 v{VTS}, 0'); ts(0)
        if cfg.hd: ts_sync()
    e('s_lshr_b32 s34, s2, 3')
    if cfg.pf:
        e(f"""s_cmp_lg_u32 s34, 31""")
        L.append('s_cbranch_scc1 L_nopf')
        e(f"""s_getpc_b64 s[40:41]
        L_pc:
        v_lshlrev_b32 v15, 7, v0
        v_min_u32 v15, L_end-L_pc-4, v15
        global_load_dword v63, v15, s[40:41]
        L_nopf:""")
    e(f"""v_lshrrev_b32 v10, 6, v0
    v_and_b32 v{vLANE}, 63, v0
    v_readfirstlane_b32 s{sWAVE}, v10
    v_bfe_u32 v{vLG}, v0, 4, 2
    v_and_b32 v{vN}, 15, v0
    s_movk_i32 s{sCNT}, 0x7fff
    s_and_b32 s0, s2, 7
    s_and_b32 s1, s34, 7
    v_lshrrev_b32 v{vROW}, 3, v{vN}
    v_and_b32 v{vCOL}, 7, v0
    v_lshl_add_u32 v{vROW}, v{vROW}, 2, v{vLG}
    v_lshlrev_b32 v{vCOL}, 4, v{vCOL}""")
    tests = {'X': ('s_cmp_lt_u32 s34, 16', 'L_X'), 'H': ('s_cmp_ge_u32 s34, 24', 'L_H'), 'B': ('s_bitcmp1_b32 0xff0000, s34', 'L_B')}
    for r in cfg.order[:0:-1]:
        e(tests[r][0]); L.append(f's_cbranch_scc1 {tests[r][1]}')
    return list(ts_pend)

HS = 2096; KB = 0; OB = KB; SB = 65536; LDS_BYTES = 65536 + 4608
def v_loads(a=0, b=8):
    if cfg.kvbar and a == 0: e('s_barrier')
    for i in range(a, b):
        if i == 4: sadd64(42, 42, 32768)
        ld(f'global_load_dwordx4 v[{VA}:{VA+1}]'.replace(f'v[{VA}:{VA+1}]', f'v[{64+4*i}:{67+4*i}]') + f', v{VA}, s[42:43] offset:{(i&1)*256+((i>>1)&1)*2048} {cfg.nt}', 'v')
    if b == 8: ts(2)
VA = 26
def QADDR():
    if cfg.qc: return f'''s_lshl3_add_u32 s36, s0, s{sWAVE}
    s_lshl_b32 s36, s36, 13
    s_add_u32 s36, s36, {QF}
    s_add_u32 s8, s{sWS}, s36
    s_addc_u32 s9, s{sWS+1}, 0
    s_mov_b64 s[16:17], s[6:7]'''
    return f'''s_add_u32 s8, s6, {FOFF if cfg.fast else 0}
    s_addc_u32 s9, s7, 0
    s_mov_b64 s[16:17], s[8:9]'''
def start_X(pend):
    global ts_pend
    ROLE[0] = 'X'
    L.append('L_X:'); ts_pend = list(pend)
    e(f"""s_lshl_b32 s36, s0, 6
    s_add_u32 s36, s36, s34
    s_add_u32 s36, s36, 48
    s_lshl4_add_u32 s36, s36, s{sWAVE}
    s_lshl_b32 s36, s36, 12
    s_lshl_b32 m0, s{sWAVE}, 12
    s_and_b32 s37, s{sWAVE}, 1
    s_lshl_b32 s37, s37, 3
    v_lshrrev_b32 v14, 5, v{vLANE}
    v_and_b32 v15, 31, v{vLANE}
    v_bitop3_b32 v15, v15, v14, s37 bitop3:0x96
    v_lshlrev_b32 v15, 4, v15
    v_lshl_add_u32 v10, v14, 9, v15
    v_xor_b32 v11, 32, v10
    v_xor_b32 v12, 64, v10
    v_xor_b32 v13, 96, v10
    v_lshlrev_b32 v{VA}, 9, v{vLG}
    v_lshl_add_u32 v{VA}, v{vN}, 4, v{VA}
    s_waitcnt lgkmcnt(0)""")
    ts(1)
    e(f"""s_add_u32 s40, s{sK}, s36
    s_addc_u32 s41, s{sK+1}, 0
    s_add_u32 s42, s{sV}, s36
    s_addc_u32 s43, s{sV+1}, 0""")
    for t in range(8):
        if t == 4: e('s_add_u32 m0, m0, 32768'); sadd64(40, 40, 32768)
        if cfg.xw <= t <= cfg.xn: e(f's_waitcnt vmcnt({cfg.xw-1})')
        if 'k' not in cfg.skip: e(f'global_load_lds_dwordx4 v{10+t%4}, s[40:41] offset:{1024*(t%4)} {cfg.nt}')
    load_epoch()
    if not cfg.fast: v_loads(0, cfg.vb)
    CARRY['X'] = list(ts_pend); L.append('s_branch L_X2')
def role_X():
    global ts_pend
    ROLE[0] = 'X'
    L.append('L_X2:'); ts_pend = CARRY['X']
    e(f"""s_lshl4_add_u32 s{sR0}, s0, s34
    s_lshl_b32 s36, s0, 16
    s_lshl_b32 s37, s{sWAVE}, 15
    s_add_u32 s36, s36, s37
    s_lshl_b32 s37, s34, 11
    s_add_u32 s36, s36, s37
    s_add_u32 s36, s36, {M3}
    v_lshl_add_u32 v39, v{vLANE}, 4, s36
    v_and_b32 v40, 32, v{vLANE}
    v_lshl_add_u32 v39, v40, 4, v39
    s_lshl_b32 s36, s{sR0}, 8
    s_add_u32 s36, s36, {ST}
    v_lshl_add_u32 v15, v{vLANE}, 4, s36
    s_add_u32 s10, s{sWS}, {FOFF}
    s_addc_u32 s11, s{sWS+1}, 0""")
    if cfg.fast:
        e(f's_sub_u32 s36, s{sWAVE}, 2\ns_cmp_lt_u32 s36, 5')
        L.append('s_cbranch_scc1 L_Xnd')
        e(f"""s_cmp_eq_u32 s{sWAVE}, 7
        s_cselect_b64 vcc, -1, 0
        v_cndmask_b32 v12, v39, v15, vcc
        s_cselect_b64 exec, 0xff, -1""")
        L.append('s_waitcnt lgkmcnt(0)')
        for r in range(4): e(f'v_mov_b32 v{40+r}, s{sTAG}')
        e('global_store_dwordx4 v12, v[40:43], s[10:11]')
        exec_set(ALL)
        L.append('L_Xnd:')
        v_loads(0, cfg.vb)
    gemv_consts()
    e(f"""
    s_and_b32 s36, s{sWAVE}, 3
    s_lshl_b32 s37, s36, 3
    v_xor_b32 v16, s37, v{vN}
    v_lshlrev_b32 v16, 4, v16
    v_lshl_add_u32 v16, v{vLANE}, 9, v16""")
    for i in range(1, 8): e(f'v_xor_b32 v{16+i}, {16*i}, v16')
    e(f"""s_lshr_b32 s37, s{sWAVE}, 2
    s_mul_i32 s37, s37, {HS}
    s_lshl_b32 s36, s36, 2
    s_add_u32 s36, s36, s37
    s_add_u32 s36, s36, {SB}
    v_lshl_add_u32 v36, v{vLANE}, 4, s36
    v_and_b32 v40, 1, v{vN}
    v_mul_u32_u24 v40, {HS}, v40
    v_add_u32 v40, {SB}, v40
    v_lshl_add_u32 v40, v{vLG}, 4, v40
    v_bfe_u32 v41, v{vN}, 1, 1
    v_lshl_add_u32 v40, v41, 6, v40
    v_bfe_u32 v41, v{vN}, 2, 1
    v_mul_u32_u24 v41, 1056, v41
    v_add_u32 v40, v40, v41
    v_lshrrev_b32 v41, 3, v{vN}
    v_add_u32 v41, s{sWAVE}, v41""")
    for r in range(4):
        e(f'v_add_u32 v42, {2*r}, v41\nv_and_b32 v42, 7, v42\nv_lshl_add_u32 v{32+r}, v42, 7, v40')
    e(f"""v_lshrrev_b32 v40, 1, v{vLG}
    v_lshlrev_b32 v37, 10, v40
    v_lshl_add_u32 v37, v{vN}, 5, v37
    v_and_b32 v40, 1, v{vLG}
    v_lshl_add_u32 v37, v40, 4, v37
    s_lshl_b32 s36, s{sWAVE}, 11
    v_add_u32 v37, s36, v37
    s_lshl_b32 s36, s{sWAVE}, 10
    v_lshl_add_u32 v38, v{vLANE}, 4, s36
    s_lshl3_add_u32 s36, s0, s{sWAVE}
    s_lshl_b32 s36, s36, 9
    s_add_u32 s36, s36, {M2}
    s_add_u32 s6, s{sWS}, s36
    s_addc_u32 s7, s{sWS+1}, 0
    {QADDR()}
    s_mov_b32 s1, s34
    v_mov_b32 v24, 0
    v_mov_b32 v25, 0
    s_waitcnt lgkmcnt(0)""")
    make_tag(); tag_consts(14)
    e(f's_lshl_b32 s18, s{sTAG}, 4\ns_waitcnt vmcnt({cfg.vb})\ns_barrier')
    ts(3)
    for h in range(2):
        for i in range(8):
            r = 96 + 32 * h + 4 * i
            e(f'ds_read_b128 v[{r}:{r+3}], v{16+i} offset:{32768*h}')
    if cfg.vb < 8: v_loads(cfg.vb, 8)
    L.append('C_X0:')
    top = lab('qg'); out = lab('qo')
    if cfg.qc:
        t2 = lab('qc')
        label(t2)
        for i in range(4): e(f's_load_dwordx16 s[{32+16*i}:{47+16*i}], s[8:9], {64*i}')
        e('s_waitcnt lgkmcnt(0)\ns_add_u32 s20, s34, s38')
        for g in range(2, 16): e(f's_add_u32 s20, s20, s{34+4*g}')
        e('s_cmp_eq_u32 s20, s18')
        br('s_cbranch_scc1', out)
        if cfg.qsl: e(f's_sleep {cfg.qsl}')
        e(f's_add_u32 s8, s8, 512\ns_addc_u32 s9, s9, 0\ns_sub_u32 s{sCNT}, s{sCNT}, 1\ns_cmpk_gt_u32 s{sCNT}, {0x7fff-cfg.qc}')
        br('s_cbranch_scc1', t2)
    label(top)
    if cfg.qp:
        pre = lab('qp'); label(pre)
        e(f's_load_dword s20, s[16:17], {cfg.qp*4} glc\ns_waitcnt lgkmcnt(0)\ns_cmp_eq_u32 s20, s{sTAG}')
        pok = lab('qk'); br('s_cbranch_scc1', pok)
        if cfg.fast: fsel(16, 8, 6)
        retry(pre); label(pok)
    for i in range(4): e(f's_load_dwordx16 s[{32+16*i}:{47+16*i}], s[16:17], {64*i} glc')
    e('s_waitcnt lgkmcnt(0)\ns_add_u32 s20, s34, s38')
    for g in range(2, 16): e(f's_add_u32 s20, s20, s{34+4*g}')
    e('s_cmp_eq_u32 s20, s18')
    br('s_cbranch_scc1', out)
    if cfg.fast and not cfg.qc: fsel(16, 8, 6)
    if cfg.qsl and not cfg.qc: e(f's_sleep {cfg.qsl}')
    retry(top)
    label(out)
    if cfg.dbg and not cfg.hd: L.append(f'v_writelane_b32 v{VTS}, s{sCNT}, 14')
    ts(4)
    for m in range(32):
        for h in range(2): e(f'v_dot2c_f32_bf16 v{24+h}, s{32+4*(m>>1)+(m&1)}, v{96+32*h+m}')
    e('ds_write_b32 v36, v24\nds_write_b32 v36, v25 offset:1056\ns_waitcnt lgkmcnt(0)\ns_barrier')
    ts(5); ts_sync()
    for r in range(4): e(f'ds_read_b128 v[{40+4*r}:{43+4*r}], v{32+r}')
    for r in range(4):
        L.append(f's_waitcnt lgkmcnt({3-r})')
        e(f'v_pk_add_f32 v[{40+4*r}:{41+4*r}], v[{40+4*r}:{41+4*r}], v[{42+4*r}:{43+4*r}]')
    for r in range(4): e(f'v_add_f32 v{40+4*r}, v{40+4*r}, v{41+4*r}')
    e('v_max3_f32 v56, v40, v44, v48\nv_max_f32 v56, v56, v52')
    for p in (2, 4, 8): dpp_op(56, 56, f'row_ror:{p}', 'max')
    xrows(56, 57, 'max')
    SC = fl(0.0625 * LOG2E)
    e(f"""v_cvt_pk_bf16_f32 v57, v40, v56
    v_lshlrev_b32 v40, 16, v57
    v_and_b32 v56, 0xffff0000, v57
    v_sub_f32 v40, v40, v56
    v_mul_f32 v40, {SC}, v40
    v_exp_f32 v40, v40
    s_cmp_eq_u32 s{sWAVE}, 7""")
    br('s_cbranch_scc1', 'L_Xst')
    ts(9)
    e('s_waitcnt vmcnt(0)')
    ts(10)
    label('L_Xpv')
    e('v_cvt_pk_bf16_f32 v40, v40, v40')
    gemv([(40, 2 * t, [64 + 8 * t, 68 + 8 * t], None) for t in range(4)], acc=24, val=44, A=48)
    e('ds_write_b128 v37, v[24:27]\nds_write_b128 v37, v[28:31] offset:512\ns_waitcnt lgkmcnt(0)')
    ts(6)
    e('s_barrier')
    e(f's_cmp_ge_u32 s{sWAVE}, 2')
    br('s_cbranch_scc1', 'L_Xg')
    for i in range(8): e(f'ds_read_b128 v[{64+4*i}:{67+4*i}], v38 offset:{2048*i}')
    for i in range(0, 8, 2):
        L.append(f's_waitcnt lgkmcnt({6-i})')
        for h in (0, 2):
            a = 64 + 4 * i + h
            e(f'v_pk_add_f32 v[{a}:{a+1}], v[{a}:{a+1}], v[{a+4}:{a+5}]')
    for a, b in ((64, 72), (80, 88), (64, 80)):
        for h in (0, 2): e(f'v_pk_add_f32 v[{a+h}:{a+h+1}], v[{a+h}:{a+h+1}], v[{b+h}:{b+h+1}]')
    tag4(64, 14)
    if cfg.fast: e(f'global_store_dwordx4 v39, v[64:67], s[10:11]')
    e(f'global_store_dwordx4 v39, v[64:67], {WS} sc1')
    ts(7)
    label('L_fin')
    wave_end()
    label('L_Xg')
    e(f"""s_lshl_b32 s1, s1, 3
    s_add_u32 s1, s1, s0
    s_cmp_eq_u32 s{sWAVE}, 3
    s_cselect_b32 s1, s1, 99
    s_cmp_lt_u32 s1, 28""")
    br('s_cbranch_scc1', 'L_G')
    br('s_branch', 'L_fin')
    label('L_Xst')
    e(f"""v_cvt_pk_bf16_f32 v44, v44, v48
    v_cvt_pk_bf16_f32 v52, v52, v52
    v_and_b32 v48, 0xffff0000, v44
    v_lshlrev_b32 v44, 16, v44
    v_and_b32 v52, 0xffff0000, v52""")
    for r in (44, 48, 52): e(f'v_sub_f32 v{r}, v{r}, v56')
    for r in (44, 48, 52): e(f'v_mul_f32 v{r}, {SC}, v{r}')
    for r in (44, 48, 52): e(f'v_exp_f32 v{r}, v{r}')
    e(f'v_add_f32 v57, v40, v44\nv_add_f32 v48, v48, v52\nv_mov_b32 v58, s{sTAG}\nv_add_f32 v57, v57, v48')
    for p in (2, 4, 8): dpp_op(57, 57, f'row_ror:{p}')
    xrows(57, 59)
    exec_set(3)
    if cfg.fast: e(f'global_store_dwordx4 v15, v[56:59], s[10:11]')
    e(f'global_store_dwordx4 v15, v[56:59], {WS} sc1')
    ts(8)
    exec_set(ALL)
    e(f's_waitcnt vmcnt({2 if cfg.fast else 1})')
    br('s_branch', 'L_Xpv'); L.append('C_X1:')

def warm_addr():
    e(f"""v_lshrrev_b32 v40, 3, v{vLANE}
    v_mul_u32_u24 v40, 7168, v40
    v_lshl_add_u32 v40, v{vLANE}, 7, v40
    s_mul_i32 s42, s1, 24
    s_addk_i32 s42, 256
    s_lshl3_add_u32 s42, s42, s0
    s_lshl_b32 s42, s42, 10
    s_mov_b32 s46, 0x10000
    v_add_u32 v40, s42, v40
    v_add_u32 v42, s46, v40
    v_add_u32 v43, s46, v42""")
def start_H(pend):
    global ts_pend
    ROLE[0] = 'H'
    L.append('L_H:'); ts_pend = list(pend)
    if cfg.adup:
        e(f"""s_and_b32 s34, s0, 3
        s_lshl1_add_u32 s35, s1, s{sWAVE}
        s_cmp_lt_u32 s1, 7
        s_cselect_b32 s36, s{sWAVE}, 2
        s_cmp_ge_u32 s36, 2""")
    else:
        e(f"""s_lshr_b32 s34, s0, 1
        s_and_b32 s35, s0, 1
        s_mul_i32 s35, s35, 7
        s_add_u32 s35, s35, s1
        s_cmp_lt_u32 s1, 7
        s_cselect_b32 s36, s{sWAVE}, 1
        s_cmp_lg_u32 s36, 0""")
    L.append('s_cbranch_scc1 L_Hoth' if cfg.slow or cfg.rearly else 's_cbranch_scc1 L_Hidle')
    L.append('L_mod:')
    e(f"""s_mul_i32 s37, s34, 56
    s_movk_i32 s39, 5376
    v_lshl_add_u32 v26, v{vN}, 2, v{vLG}
    s_lshl_b32 s37, s37, 1
    v_mad_u32_u24 v28, v{vROW}, s39, v{vCOL}
    v_add_lshl_u32 v26, s37, v26, 1
    s_mul_i32 s38, s37, s39
    s_lshl_b32 s39, s35, 7
    s_add_u32 s38, s38, s39
    s_mov_b32 s39, {8*5376}""")
    if 'r' in cfg.skip: e('s_cmp_lt_u32 s35, 14\ns_cselect_b32 s39, s39, 0\ns_cselect_b32 s36, -1, 0\nv_and_b32 v28, s36, v28')
    e('s_waitcnt lgkmcnt(0)')
    ts(1)
    e(f"""global_load_ushort v16, v26, s[{sC}:{sC+1}]
    global_load_ushort v17, v26, s[{sC}:{sC+1}] offset:96
    s_add_u32 s44, s{sWM}, s38
    s_addc_u32 s45, s{sWM+1}, 0""")
    for t in range(14):
        e(f'global_load_dwordx4 v[{64+4*t}:{67+4*t}], v28, s[44:45] {cfg.nt}')
        if t < 13: e('v_add_u32 v28, s39, v28')
    if cfg.warm:
        e(f's_cmp_lg_u32 s{sWAVE}, {1 if cfg.adup else 0}')
        L.append('s_cbranch_scc1 L_mod2')
        L.append('L_warm:')
        warm_addr()
        for r in (40, 42, 43): e(f'global_load_dword v63, v{r}, s[{sWQ}:{sWQ+1}] {cfg.wpol}')
        e('s_cmp_eq_u32 s1, 7')
        L.append('s_cbranch_scc1 L_fin')
    CARRY['H'] = list(ts_pend); L.append('s_branch L_mod2w' if cfg.warm else 's_branch L_mod2')
    if cfg.slow or cfg.rearly:
        L.append('L_Hoth:'); ts_pend = list(pend)
        if cfg.rearly == 2:
            e(f's_and_b32 s36, s{sWAVE}, 6\ns_cmp_lt_u32 s1, 7\ns_cselect_b32 s36, s36, 0\ns_cmp_lg_u32 s36, 2')
            L.append('s_cbranch_scc1 L_Hot2')
            e(f's_sub_u32 s36, s{sWAVE}, 1\ns_mul_i32 s36, s36, 14\ns_add_u32 s35, s35, s36')
            L.append('s_branch L_mod')
            L.append('L_Hot2:')
        if cfg.slow:
            e(f"""s_sub_u32 s36, s{sWAVE}, 2
            s_cmp_lt_u32 s1, 7
            s_cselect_b32 s36, 7, s36
            s_cmp_ge_u32 s36, 4""")
            L.append('s_cbranch_scc1 L_Hidle')
            e(f'v_add_u32 v40, 64, v0\nv_lshlrev_b32 v40, 13, v40')
            L.append('s_waitcnt lgkmcnt(0)')
            e(f"""s_lshr_b32 s36, s{sWQ}, 7
            s_sub_u32 s36, 3, s36
            s_and_b32 s36, s36, 7
            s_lshl3_add_u32 s36, s0, s36
            s_lshl_b32 s36, s36, 7
            v_add_u32 v40, s36, v40
            global_load_dword v63, v40, s[{sWQ}:{sWQ+1}] {cfg.wpol}""")
        L.append('s_branch L_Hidle')
def role_H(pend):
    global ts_pend
    ROLE[0] = 'H'
    def body(extra):
        load_epoch()
        ts(2)
        gemv_consts()
        e(f"""v_lshlrev_b32 v18, 5, v{vN}
        v_lshl_add_u32 v18, v{vLG}, 4, v18
        s_lshl_b32 s46, s34, 12
        s_add_u32 s46, s46, {M1}
        s_lshl_b32 s47, s34, 13
        s_add_u32 s47, s47, {M6 - 4096}
        s_cmp_lt_u32 s35, 14
        s_cselect_b32 s46, s46, s47
        s_lshl_b32 s47, s35, 8
        v_add_u32 v18, s47, v18
        v_mul_u32_u24 v20, 1171, v18
        v_lshrrev_b32 v20, 20, v20
        v_lshl_add_u32 v18, v20, 7, v18
        v_add_u32 v18, s46, v18
        s_waitcnt vmcnt({14+extra})""")
        silu2(16, 17)
        e('s_waitcnt lgkmcnt(0)')
        ts(5)
        make_tag(); tag_consts(19); tag4r_consts(48)
        gemv([(16 + t // 8, 2 * t if t < 8 else 2 * t - 12, 64 + 4 * t, f's_waitcnt vmcnt({13-t+extra})') for t in range(14)], acc=24, val=22, A=28)
    if cfg.warm:
        L.append('L_mod2:'); ts_pend = CARRY['H']
        for r in range(3): L.append(f'global_load_ushort v63, v26, s[{sC}:{sC+1}]')
        L.append('L_mod2w:')
        body(3)
    else:
        L.append('L_mod2:'); ts_pend = CARRY['H']
        body(0)
    fold(24, 32)
    tag4r(24, 19, 48)
    exec_set(0x00FF00FF)
    e(f'global_store_dwordx4 v18, v[24:27], {WS} sc1')
    if cfg.m1c > 1:
        e('s_cmp_ge_u32 s35, 14')
        L.append('s_cbranch_scc1 L_m1c')
        e(f's_add_u32 s44, s{sWS}, {M1C-M1}\ns_addc_u32 s45, s{sWS+1}, 0')
        for k in range(1, cfg.m1c):
            e(f'global_store_dwordx4 v18, v[24:27], s[44:45] sc1')
            if k < cfg.m1c - 1: sadd64(44, 44, 0x4000)
        L.append('L_m1c:')
    exec_set(ALL)
    ts(3)
    if not cfg.rearly:
        e('s_cmp_ge_u32 s35, 14')
        br('s_cbranch_scc1', 'L_Hb2')
        label('L_Hb1')
        e('s_barrier')
    label('L_Hb2')
    ts(4)
    e('s_barrier')
    if cfg.host == 'E': e(f's_mul_i32 s{sR0}, s0, 7\ns_add_u32 s{sR0}, s{sR0}, s1')
    br('s_branch', 'L_EF' if cfg.host == 'E' else 'L_D')
def role_Hidle(pend):
    global ts_pend
    ROLE[0] = 'H'
    ts_pend = list(pend)
    L.append('L_Hidle:')
    e('s_waitcnt lgkmcnt(0)')
    if cfg.warm:
        e(f's_lshl3_add_u32 s36, s1, s{sWAVE}\ns_cmp_eq_u32 s36, 58')
        br('s_cbranch_scc1', 'L_warm')
    e('s_cmp_eq_u32 s1, 7')
    br('s_cbranch_scc1', 'L_H7' if cfg.fast else 'L_fin')
    e(f"""s_and_b32 s36, s{sWAVE}, 6
    s_cmp_lg_u32 s36, 2""")
    br('s_cbranch_scc1', 'L_Hi2')
    if cfg.adup:
        e(f"""s_lshr_b32 s36, s0, 2
        s_mul_i32 s36, s36, 14
        s_add_u32 s35, s35, s36
        s_add_u32 s35, s35, 12""")
    else:
        e(f"""s_sub_u32 s36, s{sWAVE}, 1
        s_mul_i32 s36, s36, 14
        s_add_u32 s35, s35, s36""")
    if not cfg.rearly: e('s_barrier')
    br('s_branch', 'L_mod')
    label('L_Hi2')
    load_epoch()
    gemv_consts()
    e('s_waitcnt lgkmcnt(0)')
    make_tag(); tag_consts(19)
    if cfg.gate:
        e(f's_cmp_lg_u32 s{sWAVE}, 4')
        br('s_cbranch_scc1', 'L_Hb2' if cfg.rearly else 'L_Hb1')
        if not cfg.rearly: e('s_barrier')
        e(f"""s_lshl3_add_u32 s36, s0, s1
        s_lshl_b32 s36, s36, 9
        s_add_u32 s36, s36, {M2+8}
        s_add_u32 s40, s{sWS}, s36
        s_addc_u32 s41, s{sWS+1}, 0""")
        top = lab('gt')
        label(top)
        e(f's_load_dword s36, s[40:41], 0 glc\ns_waitcnt lgkmcnt(0)\ns_cmp_eq_u32 s36, s{sTAG}')
        br('s_cbranch_scc1', 'L_Hb2')
        retry(top)
        br('s_branch', 'L_Hb2')
    else:
        br('s_branch', 'L_Hb2' if cfg.rearly else 'L_Hb1')
    if cfg.fast:
        label('L_H7')
        if cfg.qc:
            e(f'''s_lshl3_add_u32 s36, s0, s{sWAVE}
            s_lshl_b32 s36, s36, 13
            s_add_u32 s36, s36, {QF}
            v_lshrrev_b32 v40, 1, v{vLANE}
            v_min_u32 v40, {cfg.qc-1}, v40
            v_lshl_add_u32 v40, v40, 9, s36
            v_and_b32 v41, 1, v{vLANE}
            v_lshl_add_u32 v40, v41, 7, v40
            global_load_dword v63, v40, {WS}''')
            br('s_branch', 'L_fin')
        e(f's_cmp_lg_u32 s{sWAVE}, 1')
        br('s_cbranch_scc1', 'L_fin')
        load_epoch()
        e(f"""s_lshl_b32 s36, s0, 12
        s_add_u32 s36, s36, {M2+FOFF}
        v_lshl_add_u32 v40, v{vLG}, 9, s36
        v_lshl_add_u32 v40, v{vN}, 4, v40
        s_waitcnt lgkmcnt(0)""")
        for r in range(4): e(f'v_mov_b32 v{44+r}, s{sTAG}')
        e(f'global_store_dwordx4 v40, v[44:47], {WS}\nglobal_store_dwordx4 v40, v[44:47], {WS} offset:2048')
        br('s_branch', 'L_fin')

def start_B(pend):
    global ts_pend
    ROLE[0] = 'B'
    L.append('L_B:'); ts_pend = list(pend)
    e(f"""s_lshl3_add_u32 s{sR0}, s0, s1
    v_lshlrev_b32 v10, 4, v{vLANE}
    v_min_u32 v10, 880, v10
    v_min_u32 v11, 13, v{vN}
    s_mul_i32 s34, s{sWAVE}, 56
    v_lshl_add_u32 v11, v11, 2, s34
    v_add_lshl_u32 v12, v11, v{vLG}, 1""")
    e(f"""v_lshl_add_u32 v13, v{vROW}, 13, v{vCOL}
    s_lshl_b32 s35, s34, 13
    s_lshl_b32 s36, s{sR0}, 7
    s_add_u32 s35, s35, s36
    s_mov_b32 s36, 0x10000
    s_waitcnt lgkmcnt(0)""")
    ts(1)
    e(f"""global_load_dwordx4 v[16:19], v10, s[{sX}:{sX+1}]
    global_load_ushort v20, v12, s[{sX}:{sX+1}]
    s_add_u32 s40, s{sWQ}, s35
    s_addc_u32 s41, s{sWQ+1}, 0""")
    if cfg.bbar: e('s_barrier')
    for t in range(7):
        e(f'global_load_dwordx4 v[{64+4*t}:{67+4*t}], v13, s[40:41] {cfg.nt}')
        if t < 6: e('v_add_u32 v13, s36, v13')
    CARRY['B'] = list(ts_pend); L.append('s_branch L_B2')
def role_B():
    global ts_pend
    ROLE[0] = 'B'
    L.append('L_B2:'); ts_pend = CARRY['B']
    load_epoch()
    ts(13)
    gemv_consts()
    e(f"""s_lshr_b32 s36, s{sWAVE}, 2
    s_lshl_b32 s36, s36, 7
    s_add_u32 s36, s36, {M1}
    v_lshl_add_u32 v15, v{vLG}, 12, s36
    v_lshl_add_u32 v15, v11, 2, v15""")
    if cfg.m1c > 1:
        e(f"""s_and_b32 s36, s0, {cfg.m1c-1}
        s_mul_i32 s37, s36, {0x4000}
        s_add_u32 s37, s37, {M1C - M1 - 0x4000}
        s_cmp_eq_u32 s36, 0
        s_cselect_b32 s37, 0, s37
        v_add_u32 v15, s37, v15""")
    red_waddr(21, 22, 320)
    quad_raddr(23, 22)
    e(f"""s_lshl_b32 s36, s{sR0}, 9
    s_add_u32 s36, s36, {M2}
    v_lshrrev_b32 v51, 2, v{vLANE}
    v_lshl_add_u32 v50, v51, 4, s36
    s_lshl_b32 s36, s{sR0}, 13
    s_add_u32 s36, s36, {QF+4096}
    v_lshl_add_u32 v52, v51, 4, s36
    v_and_b32 v51, 3, v{vLANE}
    v_lshl_add_u32 v52, v51, 9, v52
    s_add_u32 s10, s{sWS}, {FOFF}
    s_addc_u32 s11, s{sWS+1}, 0
    v_cmp_gt_u32 vcc, 56, v{vLANE}
    v_cndmask_b32 v31, 0, 1.0, vcc
    s_waitcnt vmcnt(7)""")
    ts(14)
    for i in range(4):
        e(f'v_lshlrev_b32 v{32+2*i}, 16, v{16+i}\nv_and_b32 v{33+2*i}, 0xffff0000, v{16+i}')
    e("""v_pk_add_f32 v[40:41], v[32:33], v[34:35]
    v_pk_add_f32 v[42:43], v[36:37], v[38:39]
    v_pk_add_f32 v[40:41], v[40:41], v[42:43]
    v_add_f32 v40, v40, v41
    v_mul_f32 v40, v40, v31""")
    wavesum(40, 41)
    e(f'v_mul_f32 v40, {fl(1/448)}, v40')
    for i in range(8): e(f'v_sub_f32 v{32+i}, v{32+i}, v40')
    e('v_mul_f32 v42, v32, v32')
    for i in range(1, 8): e(f'v_fmac_f32 v42, v{32+i}, v{32+i}')
    e('v_mul_f32 v42, v42, v31')
    wavesum(42, 41)
    e(f'v_mul_f32 v42, {fl(1/448)}, v42')
    rnd(40, 40); rnd(42, 42)
    e(f'v_add_f32 v42, {fl(1e-5)}, v42'); rnd(42, 42)
    e('v_sqrt_f32 v42, v42'); rnd(42, 42)
    e('v_rcp_f32 v42, v42\nv_lshlrev_b32 v20, 16, v20\nv_sub_f32 v20, v20, v40'); rnd(20, 20)
    e('v_mul_f32 v20, v20, v42'); rnd(20, 20)
    ts(2)
    e('s_waitcnt lgkmcnt(0)')
    make_tag(); tag_consts(19)
    e(f'v_mov_b32 v58, s{sTAG}\nv_mov_b32 v59, s{sTAG}')
    if cfg.b3 == 1: e('s_waitcnt vmcnt(0)')
    if cfg.b3 == 2: e('s_waitcnt vmcnt(0)\ns_barrier')
    if cfg.b3 == 3:
        e(f's_cmp_ge_u32 s{sWAVE}, 4'); br('s_cbranch_scc1', 'L_B3'); e('s_waitcnt vmcnt(0)'); label('L_B3'); e('s_barrier')
    ts(3)
    L.append('C_B0:')
    def b_issue(r): e(f'global_load_dwordx4 v[{r}:{r+3}], v15, {WS} sc1\nglobal_load_dwordx4 v[{r+4}:{r+7}], v15, {WS} offset:2048 sc1')
    def b_take(r):
        if r != 32:
            for i in range(0, 8, 2): e(f'v_mov_b64 v[{32+i}:{33+i}], v[{r+i}:{r+i+1}]')
    ppoll('bg', cfg.pb, [32] if cfg.pb == 1 else [96 + 8 * k for k in range(cfg.pb)], b_issue, 2, lambda r: chk([r, r + 4], 40), b_take, first=True, sl=cfg.bsl)
    if cfg.dbg and not cfg.hd: L.append(f'v_writelane_b32 v{VTS}, s{sCNT}, 9')
    red4rows_multi([32, 36])
    ts(4)
    rnd(36, 36); rnd(32, 32)
    e('v_add_f32 v36, 1.0, v36'); rnd(36, 36)
    e('v_mul_f32 v36, v20, v36'); rnd(36, 36)
    e('v_add_f32 v36, v36, v32\nv_cvt_pk_bf16_f32 v36, v36, v36')
    gemv([(36, 2 * t, 64 + 4 * t, None) for t in range(7)], acc=24, val=44, A=28)
    red_write(24, 21)
    e('s_waitcnt lgkmcnt(0)\ns_barrier')
    e(f's_cmp_lg_u32 s{sWAVE}, 0')
    br('s_cbranch_scc1', 'L_Bdone')
    quad_reduce(23, 32)
    e('v_cvt_pk_bf16_f32 v56, v32, v33\nv_cvt_pk_bf16_f32 v57, v34, v35')
    if cfg.qc:
        for k in range(cfg.qc // 4): e(f'global_store_dwordx4 v52, v[56:59], {WS} offset:{2048*k-4096}')
    exec_set(0x1111111111111111)
    if cfg.fast and not cfg.qc: e('global_store_dwordx4 v50, v[56:59], s[10:11]')
    e(f'global_store_dwordx4 v50, v[56:59], {WS} sc1')
    exec_set(ALL)
    ts(5)
    label('L_Bdone'); L.append('C_B1:')
    if cfg.host == 'D':
        e(f"""s_barrier
        s_lshr_b32 s36, s0, 1
        s_mul_i32 s36, s36, 14
        s_and_b32 s37, s0, 1
        s_lshl3_add_u32 s36, s37, s36
        s_add_u32 s{sR0}, s36, s1
        s_lshl1_add_u32 s37, s37, s1
        s_cmp_lt_u32 s37, 8""")
    else: e('s_barrier\ns_cmp_lt_u32 s1, 7')
    br('s_cbranch_scc1', 'L_EF' if cfg.host == 'D' else 'L_D')
    br('s_branch', 'L_fin')

def role_D():
    ROLE[0] = 'D'
    label('L_D')
    w_addr(13, 14, 896)
    e(f'''s_lshl_b32 s34, s0, 3
    s_add_u32 s34, s34, s{sWAVE}
    s_mul_i32 s34, s34, {64*896}
    s_lshl_b32 s35, s1, 7
    s_add_u32 s34, s34, s35
    s_add_u32 s40, s{sWO}, s34
    s_addc_u32 s41, s{sWO+1}, 0''')
    for t in range(8):
        ld(f'global_load_dwordx4 v[{64+4*t}:{67+4*t}], v13, s[40:41] {cfg.nt}', 'o')
        if t < 7: sadd64(40, 40, 7168)
    ts(6)
    e(f'''v_bfe_u32 v10, v{vLANE}, 1, 1
    v_and_b32 v11, 1, v{vLANE}
    s_lshl_b32 s34, s{sWAVE}, 1
    v_add_u32 v10, s34, v10
    v_lshlrev_b32 v30, 8, v10
    v_lshl_add_u32 v30, v11, 4, v30
    s_lshl_b32 s35, s0, 12
    s_add_u32 s35, s35, {ST}
    v_add_u32 v30, s35, v30
    v_lshlrev_b32 v12, 3, v10
    v_lshl_add_u32 v12, v11, 7, v12
    v_lshl_add_u32 v15, v{vLG}, 2, v{vN}
    v_and_b32 v15, 15, v15
    s_lshr_b32 s34, s{sWAVE}, 2
    s_lshl_b32 s35, s34, 7
    v_lshl_add_u32 v15, v15, 3, s35
    v_lshlrev_b32 v31, 13, v{vLG}
    v_lshl_add_u32 v31, v{vN}, 4, v31
    s_lshl_b32 s35, s0, 16
    s_lshl_b32 s34, s34, 15
    s_add_u32 s35, s35, s34
    s_and_b32 s34, s{sWAVE}, 1
    s_lshl_b32 s34, s34, 8
    s_add_u32 s35, s35, s34
    s_and_b32 s34, s{sWAVE}, 2
    s_lshl_b32 s34, s34, 9
    s_add_u32 s35, s35, s34
    s_add_u32 s35, s35, {M3+4096}
    v_add_u32 v31, s35, v31
    s_lshl_b32 s35, s1, 8
    v_lshl_add_u32 v20, v{vLANE}, 2, s35
    v_cmp_lt_u32 vcc, 895, v20
    v_cndmask_b32 v10, 0, 64, vcc
    s_lshl_b32 s34, s0, 11
    s_add_u32 s34, s34, {M4}
    v_lshl_add_u32 v20, v10, 1, v20
    v_add_u32 v20, s34, v20''')
    red_waddr(21, 22, 320)
    quad_raddr(23, 22)
    e(f's_add_u32 s10, s{sWS}, {FOFF if cfg.fast else 0}\ns_addc_u32 s11, s{sWS+1}, 0')
    exec_set(0xF)
    L.append('C_D0:')
    top = lab('sg'); out = lab('sgo')
    label(top)
    fsel(42, 10, sWS)
    e(f'global_load_dwordx3 v[32:34], v30, s[42:43] sc1\ns_waitcnt vmcnt(0)\nv_cmp_ne_u32 vcc, s{sTAG}, v34')
    br('s_cbranch_vccz', out)
    retry(top)
    label(out)
    e(f'ds_write_b64 v12, v[32:33] offset:{STL}')
    exec_set(ALL)
    e('s_waitcnt lgkmcnt(0)')
    ts(7)
    e('s_barrier')
    def o_loads():
        for t in range(4): e(f'global_load_dwordx4 v[{40+4*t}:{43+4*t}], v31, s[42:43] offset:{t*2048-4096} sc1')
    o_loads()
    e(f'ds_read_b64 v[32:33], v15 offset:{STL}\ns_waitcnt lgkmcnt(0)\nv_mov_b32 v34, v32')
    rowsum(34, 'max')
    e(f'''v_sub_f32 v32, v32, v34
    v_mul_f32 v32, {fl(0.0625*LOG2E)}, v32
    v_exp_f32 v32, v32
    v_mul_f32 v33, v33, v32''')
    rowsum(33)
    e('v_rcp_f32 v33, v33\nv_mul_f32 v32, v32, v33')
    for t in range(4): e(f'v_mov_b32_dpp v{36+t}, v32 row_newbcast:{t} row_mask:0xf bank_mask:0xf')
    top = lab('og'); out = lab('ogo')
    label(top)
    e('s_waitcnt vmcnt(0)')
    chk([40, 44, 48, 52], 56)
    br('s_cbranch_vccz', out)
    fsel(42, 10, sWS)
    o_loads()
    retry(top)
    e('s_waitcnt vmcnt(0)')
    label(out)
    ts(8)
    for t in range(4):
        b = 36 + (t & ~1)
        for h in (0, 2):
            if t == 0:
                e(f'v_pk_mul_f32 v[{32+h}:{33+h}], v[{40+h}:{41+h}], v[{b}:{b+1}] op_sel_hi:[1,0]')
            else:
                sel = 'op_sel_hi:[1,0,1]' if t % 2 == 0 else 'op_sel:[0,1,0] op_sel_hi:[1,1,1]'
                e(f'v_pk_fma_f32 v[{32+h}:{33+h}], v[{40+4*t+h}:{41+4*t+h}], v[{b}:{b+1}], v[{32+h}:{33+h}] {sel}')
    red4rows(32)
    e('v_cvt_pk_bf16_f32 v32, v32, v32')
    gemv([(32, 2 * t, 64 + 4 * t, None) for t in range(8)], acc=24, val=44, A=48)
    red_write(24, 21)
    e('s_waitcnt lgkmcnt(0)')
    ts(9)
    e('s_barrier')
    e(f's_cmp_lg_u32 s{sWAVE}, 0')
    br('s_cbranch_scc1', 'L_fin')
    quad_reduce(23, 32)
    tag4(32, 19)
    exec_set(0x1111111111111111)
    e(f'global_store_dwordx4 v20, v[32:35], {WS} sc1')
    exec_set(ALL)
    ts(10)
    br('s_branch', 'L_fin'); L.append('C_D1:')

def role_EF():
    ROLE[0] = 'E'
    label('L_EF')
    if cfg.efrev:
        e(f's_and_b32 s34, s{sR0}, 1\ns_mul_i32 s34, s34, 7\ns_xor_b32 s34, s34, s{sWAVE}\ns_mul_i32 s34, s34, 56')
    else:
        e(f's_mul_i32 s34, s{sWAVE}, 56')
    e(f'''v_lshrrev_b32 v13, 3, v{vN}
    v_lshl_add_u32 v13, v13, 2, v{vLG}
    v_add_u32 v18, s34, v13
    v_mul_u32_u24 v18, 3584, v18
    v_and_b32 v12, 3, v{vN}
    v_lshl_add_u32 v18, v12, 4, v18
    s_lshl_b32 s35, s{sR0}, 6
    v_add_u32 v18, s35, v18
    v_and_b32 v12, 4, v{vN}
    v_cmp_eq_u32 vcc, 0, v12
    v_mov_b32 v16, s{sUP}
    v_mov_b32 v17, s{sGT}
    v_cndmask_b32 v16, v16, v17, vcc
    v_mov_b32 v17, s{sUP+1}
    v_mov_b32 v12, s{sGT+1}
    v_cndmask_b32 v17, v17, v12, vcc
    v_add_co_u32 v16, vcc, v16, v18
    v_addc_co_u32 v17, vcc, 0, v17, vcc
    s_mov_b32 s52, 28672
    s_mov_b32 s53, 0''')
    for t in range(7):
        ld(f'global_load_dwordx4 v[{64+4*t}:{67+4*t}], v[16:17], off {cfg.nt}', 'e')
        if t < 6: e('v_lshl_add_u64 v[16:17], v[16:17], 0, s[52:53]')
    e(f'''v_mul_u32_u24 v13, 896, v13
    v_and_b32 v12, 7, v{vN}
    v_lshl_add_u32 v13, v12, 4, v13
    s_mul_i32 s35, s{sR0}, {32*896}
    s_min_u32 s36, s{sWAVE}, 6
    s_lshl_b32 s36, s36, 7
    s_add_u32 s35, s35, s36
    s_add_u32 s54, s{sDN}, s35
    s_addc_u32 s55, s{sDN+1}, 0
    s_cmp_eq_u32 s{sWAVE}, 7''')
    br('s_cbranch_scc1', 'L_nodn')
    for t in range(4):
        ld(f'global_load_dwordx4 v[{96+4*t}:{99+4*t}], v13, s[54:55] {cfg.nt}', 'e')
        if t < 3: sadd64(54, 54, 7168)
    label('L_nodn')
    ts(6)
    e(f'''v_min_u32 v11, 13, v{vN}
    v_lshl_add_u32 v11, v11, 2, s34
    v_add_lshl_u32 v12, v11, v{vLG}, 1
    global_load_ushort v20, v12, s[{sX}:{sX+1}]
    s_cmp_ge_u32 s34, 224
    s_cselect_b32 s36, 128, 0
    v_lshl_add_u32 v13, v11, 2, s36
    v_lshl_add_u32 v15, v{vLG}, 13, v13
    v_add_u32 v15, {M6+2048}, v15
    v_lshl_add_u32 v14, v{vLG}, 11, v13
    v_add_u32 v14, {M4}, v14
    v_add_u32 v13, 8192, v14
    v_cmp_gt_u32 vcc, 14, v{vN}
    v_cndmask_b32 v31, 0, 1.0, vcc''')
    red_waddr(21, 22, 256)
    e(f'''v_lshlrev_b32 v23, 4, v{vLANE}
    v_lshrrev_b32 v22, 5, v{vLANE}
    v_lshlrev_b32 v22, 2, v22
    s_lshl_b32 s36, s{sWAVE}, 4
    s_add_u32 s36, s36, {STT}
    v_add_u32 v22, s36, v22
    v_and_b32 v18, 7, v{vLANE}
    v_lshlrev_b32 v18, 4, v18
    v_add_u32 v18, {STT}, v18
    v_lshrrev_b32 v10, 1, v{vN}
    s_lshl_b32 s36, s{sWAVE}, 2
    v_add_u32 v10, s36, v10
    v_lshlrev_b32 v10, 13, v10
    v_and_b32 v12, 1, v{vN}
    v_lshl_add_u32 v10, v12, 5, v10
    v_lshl_add_u32 v10, v{vLG}, 4, v10
    s_mul_i32 s36, s{sR0}, 37
    s_lshr_b32 s36, s36, 8
    s_add_u32 s36, s36, s{sR0}
    s_lshl_b32 s36, s36, 7
    s_add_u32 s36, s36, {M5}
    v_add_u32 v10, s36, v10''')
    top = lab('m6'); out = lab('m6o')
    label(top)
    e(f'''global_load_dwordx4 v[32:35], v15, {WS} offset:-2048 sc1
    global_load_dwordx4 v[36:39], v15, {WS} sc1
    global_load_dwordx4 v[40:43], v15, {WS} offset:2048 sc1
    s_waitcnt vmcnt(0)''')
    chk([32, 36, 40], 44)
    br('s_cbranch_vccz', out)
    e('s_sleep 2')
    retry(top)
    label(out)
    red4rows_multi([32, 36, 40])
    rnd(56, 32); rnd(57, 36); rnd(58, 40)
    e('v_add_f32 v58, 1.0, v58'); rnd(58, 58)
    e('v_lshlrev_b32 v20, 16, v20')
    ts(7)
    L.append('C_E0:')
    def e_take(r):
        ts(10)
        for h in (0, 2): e(f'v_pk_add_f32 v[{32+h}:{33+h}], v[{r+h}:{r+h+1}], v[{r+4+h}:{r+5+h}]')
    ppoll('m4', cfg.pe, [112 + 8 * k for k in range(cfg.pe)],
          lambda r: e(f'global_load_dwordx4 v[{r}:{r+3}], v14, {WS} sc1\nglobal_load_dwordx4 v[{r+4}:{r+7}], v13, {WS} sc1'),
          2, lambda r: chk([r, r + 4], 40), e_take, sl=cfg.esl)
    red4rows(32)
    rnd(32, 32)
    e('v_mul_f32 v32, v56, v32'); rnd(32, 32)
    e('v_add_f32 v32, v20, v32'); rnd(32, 32)
    e('''v_readfirstlane_b32 s36, v32
    v_subrev_f32 v33, s36, v32
    v_mul_f32 v33, v33, v31
    v_mul_f32 v34, v33, v33
    v_mov_b32 v36, s36
    v_permlane32_swap_b32 v33, v34
    v_add_f32 v33, v33, v34
    v_mov_b32 v34, v33
    v_permlane16_swap_b32 v33, v34
    v_add_f32 v33, v33, v34''')
    rowsum(33)
    exec_set(0x0000000100000001)
    e('ds_write_b32 v22, v33\nds_write_b32 v22, v36 offset:8')
    exec_set(ALL)
    e('s_waitcnt lgkmcnt(0)\ns_barrier\nds_read_b96 v[36:38], v18\ns_waitcnt lgkmcnt(0)')
    e(f'''v_mul_f32 v39, {fl(1/56)}, v36
    v_add_f32 v38, v38, v39
    v_fma_f32 v37, -v36, v39, v37
    v_mov_b32 v40, v38''')
    for p in ('quad_perm:[1,0,3,2]', 'quad_perm:[2,3,0,1]', 'row_half_mirror'): dpp_op(40, 40, p)
    e(f'''v_mul_f32 v40, 0.125, v40
    v_sub_f32 v38, v38, v40
    v_mul_f32 v39, {fl(56.0)}, v38
    v_fmac_f32 v37, v39, v38''')
    for p in ('quad_perm:[1,0,3,2]', 'quad_perm:[2,3,0,1]', 'row_half_mirror'): dpp_op(37, 37, p)
    rnd(40, 40)
    e(f'v_mul_f32 v37, {fl(1/448)}, v37\nv_max_f32 v37, 0, v37'); rnd(37, 37)
    e(f'v_add_f32 v37, {fl(1e-5)}, v37'); rnd(37, 37)
    e('v_sqrt_f32 v37, v37\nv_sub_f32 v32, v32, v40'); rnd(37, 37); rnd(32, 32)
    e('v_rcp_f32 v37, v37\nv_mul_f32 v32, v32, v37'); rnd(32, 32)
    e('v_mul_f32 v32, v32, v58'); rnd(32, 32)
    e('v_add_f32 v32, v32, v57\nv_cvt_pk_bf16_f32 v32, v32, v32')
    gemv([(32, 2 * t, 64 + 4 * t, None) for t in range(7)], acc=24, val=44, A=28)
    red_write(24, 21)
    e('s_waitcnt lgkmcnt(0)\ns_barrier')
    ts(11)
    e(f's_cmp_eq_u32 s{sWAVE}, 7')
    br('s_cbranch_scc1', 'L_fin')
    for i in range(4): e(f'ds_read_b128 v[{32+4*i}:{35+4*i}], v23 offset:{RED+i*1024}')
    e('s_waitcnt lgkmcnt(0)')
    pk_tree(32, 4)
    red4rows(32)
    rnd(32, 32)
    kk = -2 * math.sqrt(2 / math.pi) * LOG2E
    e(f'''v_mul_f32 v33, v32, v32
    v_mov_b32_dpp v35, v32 row_ror:8 row_mask:0xf bank_mask:0xf
    v_mul_f32 v33, {fl(0.044715*kk)}, v33
    v_add_f32 v33, {fl(kk)}, v33
    v_mul_f32 v33, v33, v32
    v_exp_f32 v33, v33
    v_add_f32 v33, 1.0, v33
    v_rcp_f32 v33, v33
    v_mul_f32 v32, v32, v33''')
    rnd(32, 32)
    e('v_mul_f32 v32, v32, v35\nv_cvt_pk_bf16_f32 v32, v32, v32')
    gemv([(32, 2 * t, 96 + 4 * t, None) for t in range(4)], acc=24, val=44, A=28)
    fold(24, 36)
    tag4(24, 19)
    exec_set(0x00FF00FF)
    e(f'global_store_dwordx4 v10, v[24:27], {WS} sc1')
    ts(12)
    exec_set(ALL)
    br('s_branch', 'L_fin'); L.append('C_E1:')

def red16(c):
    red4rows(c)
    dpp_op(c, c, 'row_ror:8'); dpp_op(c, c, 'row_ror:4')
def role_G():
    ROLE[0] = 'G'
    label('L_G')
    e(f'''v_and_b32 v10, 3, v{vLANE}
    v_lshrrev_b32 v11, 2, v{vLANE}
    s_lshl_b32 s34, s1, 4
    v_lshl_add_u32 v12, v10, 2, s34
    v_add_lshl_u32 v13, v12, v{vLG}, 1
    global_load_ushort v20, v13, s[{sX}:{sX+1}]
    s_cmp_ge_u32 s1, 14
    s_cselect_b32 s36, 128, 0
    v_lshl_add_u32 v14, v12, 2, s36
    v_and_b32 v16, 3, v11
    v_lshl_add_u32 v16, v16, 13, v14
    v_add_u32 v16, {M6}, v16
    v_add_u32 v15, 6144, v16
    v_and_b32 v17, 7, v11
    v_min_u32 v18, 6, v17
    v_cmp_gt_u32 vcc, 7, v17
    v_cndmask_b32 v22, 0, 1.0, vcc
    v_lshl_add_u32 v17, v17, 11, v14
    v_add_u32 v17, {M4}, v17
    s_lshl_b32 s35, s1, 13
    s_add_u32 s35, s35, {M5+4096}
    v_lshlrev_b32 v18, 7, v18
    v_lshl_add_u32 v18, v10, 4, v18
    v_lshrrev_b32 v19, 5, v{vLANE}
    v_lshl_add_u32 v18, v19, 10, v18
    v_add_u32 v18, s35, v18''')
    top = lab('g6'); out = lab('g6o')
    label(top)
    e(f'''global_load_dwordx4 v[32:35], v16, {WS} sc1
    global_load_dwordx4 v[36:39], v15, {WS} sc1
    s_waitcnt vmcnt(0)''')
    chk([32, 36], 40)
    br('s_cbranch_vccz', out)
    e('s_sleep 4')
    retry(top)
    label(out)
    for c in (32, 36):
        for r in range(4): dpp_op(c + r, c + r, 'row_ror:8')
        for r in range(4): dpp_op(c + r, c + r, 'row_ror:4')
    for r in range(1, 4):
        e(f'v_cmp_eq_u32 vcc, {r}, v{vLG}\nv_cndmask_b32 v32, v32, v{32+r}, vcc\nv_cndmask_b32 v36, v36, v{36+r}, vcc')
    rnd(56, 32); rnd(57, 36)
    e('v_lshlrev_b32 v20, 16, v20')
    ts(11)
    top = lab('g4'); out = lab('g4o')
    label(top)
    e(f'global_load_dwordx4 v[32:35], v17, {WS} sc1\ns_waitcnt vmcnt(0)')
    chk([32], 40)
    br('s_cbranch_vccz', out)
    e('s_sleep 2')
    retry(top)
    label(out)
    red16(32)
    e('v_mul_f32 v32, 0.5, v32')
    rnd(32, 32)
    e('v_mul_f32 v32, v56, v32'); rnd(32, 32)
    e('v_add_f32 v20, v20, v32'); rnd(20, 20)
    e(f'v_mov_b32 v58, {EPO}\nv_mov_b32 v59, s{sTAG}')
    ts(12)
    L.append('C_G0:')
    def g_issue(r):
        for i in range(4): e(f'global_load_dwordx4 v[{r+4*i}:{r+4*i+3}], v18, {WS} offset:{2048*i-4096} sc1')
    def g_take(r):
        ts(13)
        for i in (0, 1):
            for h in (0, 2): e(f'v_pk_add_f32 v[{32+4*i+h}:{33+4*i+h}], v[{r+8*i+h}:{r+8*i+h+1}], v[{r+8*i+4+h}:{r+8*i+5+h}]')
    ppoll('g5', cfg.pg, [64 + 16 * k for k in range(cfg.pg)], g_issue, 4, lambda r: chk([r, r + 4, r + 8, r + 12], 48), g_take, sl=cfg.gsl)
    pk_tree(32, 2)
    for h in (0, 2): e(f'v_pk_mul_f32 v[{32+h}:{33+h}], v[{32+h}:{33+h}], v[22:23] op_sel_hi:[1,0]')
    red16(32)
    rnd(32, 32)
    e('v_mul_f32 v32, v57, v32'); rnd(32, 32)
    e('v_add_f32 v32, v20, v32\nv_cvt_pk_bf16_f32 v32, v32, v32')
    exec_set(0x000F000F000F000F)
    e(f'global_store_short v13, v32, s[{sOUT}:{sOUT+1}] {cfg.outpol}')
    e('s_cmp_lg_u32 s1, 0')
    br('s_cbranch_scc1', 'L_Gne')
    exec_set(1)
    e(f'global_store_dword v58, v59, {WS} sc1')
    label('L_Gne'); L.append('C_G1:')
    exec_set(ALL)
    if cfg.hd: e('s_waitcnt vmcnt(0)'); ts(14)
    wave_end()

def tsdump():
    L.append('L_tsdump:')
    if cfg.hd:
        e(f'''s_and_b32 m0, s2, 7
        s_nop 0
        v_readlane_b32 s34, v{VTS}, m0
        s_nop 4
        s_not_b32 s34, s34
        s_mov_b32 s35, 9000
        L_hdw:
        s_sleep 1
        s_memrealtime s[32:33]
        s_waitcnt lgkmcnt(0)
        s_sub_u32 s35, s35, 1
        s_cmp_eq_u32 s35, 0
        s_cbranch_scc1 L_hdo
        s_sub_u32 s32, s32, s34
        s_cmp_lt_u32 s32, 2000
        s_cbranch_scc1 L_hdw
        L_hdo:
        {'s_endpgm' if cfg.hd == 3 else ''}
        v_lshlrev_b32 v10, 2, v{vLANE}
        s_cmp_eq_u32 s{sWAVE}, 0
        s_cselect_b32 s32, 0xff, 0
        s_or_b32 s32, s32, 0xff00
        s_mov_b32 exec_lo, s32
        s_mov_b32 exec_hi, 0
        v_cmp_ne_u32 vcc, 0, v{VTS}
        s_and_b64 exec, exec, vcc
        s_cbranch_execz L_exit
        global_atomic_umax v10, v{VTS}, s[100:101] sc1
        s_endpgm''')
        return
    e(f'''s_lshl_b32 s32, s2, 3
    s_add_u32 s32, s32, s{sWAVE}
    s_lshl_b32 s32, s32, 6
    s_add_u32 s32, s32, {TSB}
    v_lshlrev_b32 v10, 2, v{vLANE}
    v_add_u32 v10, s32, v10
    s_mov_b64 exec, 0xffff
    global_store_dword v10, v{VTS}, {WS}
    s_endpgm''')

pend = prologue()
for r in cfg.order:
    if r == 'X' and cfg.xd == 1: L.append('.p2align 6'); L.append('.fill 16, 4, 0xbf800000') if False else None
    if r == 'X' and cfg.xd == 2: continue
    {'X': start_X, 'H': start_H, 'B': start_B}[r](pend)
role_H(pend)
L.append('P_B:'); role_B()
if cfg.xd == 2: start_X(pend)
L.append('P_X:'); role_X()
L.append('P_D:'); role_D()
L.append('P_E:'); role_EF()
L.append('P_G:'); role_G()
role_Hidle(pend)
if cfg.dbg: tsdump()
L.append('L_exit:')
L.append('s_endpgm')
L.append('L_end:')
L.append('s_endpgm')
body, nn = fix(L)
probs = taint_check(body)
for p in probs: sys.stderr.write(f'TAINT {p}\n')
if probs: sys.exit(1)
def render(body):
  hdr = open('adaLN_cond__sliding_block_cached__geglu_ffn__decode.s.ref').read().split('; Override launch')[0]
  out = hdr + '; generated by gen4.py (persistent fused kernel, one workgroup per CU)\n'
  out += f'; @launch grid=(256,1,1) block=(512,1,1) lds={LDS_BYTES}\n'
  out += f'.amdgcn_target "amdgcn-amd-amdhsa--gfx950"\n.text\n.globl {KN}\n.p2align {cfg.al}\n.p2align 8\n.type {KN},@function\n{KN}:\n'
  out += '\n'.join(l if l.endswith(':') else '    ' + l for l in body) + '\n'
  out += f'''.section .rodata,"a"
.p2align 6
.amdhsa_kernel {KN}
  .amdhsa_next_free_vgpr 160
  .amdhsa_next_free_sgpr 102
  .amdhsa_accum_offset 160
  .amdhsa_group_segment_fixed_size 0
  .amdhsa_kernarg_size 112
  .amdhsa_user_sgpr_count 2
  .amdhsa_user_sgpr_kernarg_segment_ptr 1
  .amdhsa_system_sgpr_workgroup_id_x 1
  .amdhsa_float_denorm_mode_32 3
.end_amdhsa_kernel
'''
  return out
def addrs(text):
    import subprocess, tempfile, os
    d = tempfile.mkdtemp()
    open(d + '/a.s', 'w').write(text)
    subprocess.run(['clang', '-x', 'assembler', '-target', 'amdgcn-amd-amdhsa', '-mcpu=gfx950', '-c', d + '/a.s', '-o', d + '/a.o'], check=True)
    o = subprocess.run(['llvm-readelf', '-s', d + '/a.o'], capture_output=True, text=True).stdout
    return {p[7]: int(p[1], 16) for p in (l.split() for l in o.split('\n')) if len(p) == 8 and p[7][:2] in ('C_', 'L_', 'P_')}
if cfg.lay:
    A = addrs(render(body)); shift = 0; pads = {}
    for r in 'BXDEG':
        b0, b1 = A[f'C_{r}0'] + shift, A[f'C_{r}1'] + shift
        if b0 // 4096 != (b1 - 1) // 4096:
            pads[r] = 4096 - b0 % 4096; shift += pads[r]
    nb = []
    for l in body:
        nb.append(l)
        if l.startswith('P_') and l[2] in pads: nb.append(f'.fill {pads[l[2]]//4}, 4, 0xbf800000')
    body = nb
body = [l for l in body if l[:2] not in ('P_', 'C_')]
out = render(body)
sys.stdout.write(out)
sys.stderr.write(f'instructions {len(body)} nops {nn}\n')
```
